```python
import torch

def _softmax(x, axis=-1):
    return torch.softmax(x, dim=axis)
def _gelu(x):
    return torch.nn.functional.gelu(x, approximate="tanh")
def _silu(x):
    return torch.nn.functional.silu(x)
def _sigmoid(x):
    return torch.sigmoid(x)
def _layernorm(x, axis=-1, eps=1e-5):
    m = x.mean(dim=axis, keepdim=True)
    v = x.var(dim=axis, keepdim=True, unbiased=False)
    return (x - m) / torch.sqrt(v + eps)
def _scatter_add(tgt, idx, src, axis=0):
    return tgt.clone().index_add_(axis, idx, src)
def _segment_sum(src, seg, n):
    out = torch.zeros((n,) + src.shape[1:], dtype=src.dtype)
    return out.index_add_(0, seg, src)
def _pad(x, pw):
    flat = tuple(v for pair in reversed(pw) for v in pair)
    return torch.nn.functional.pad(x, flat)

kernel_name = 'parallel_sum__sliding_block__glu_gated_geglu__prompt'

def setup_inputs():

    _w = (lambda a: (lambda t: t.to(torch.bfloat16) if t.is_floating_point() else t)(torch.as_tensor(a)))
    def _A_setup():
        B, S, D = 1, 2048, 512
        return {
            "x": _w((lambda *s: torch.randn(*s, dtype=torch.bfloat16) * 0.05)(B, S, D)),
            "wqkv": _w((lambda *s: torch.randn(*s, dtype=torch.bfloat16) * 0.05)(D, 3 * D)),
            "wo": _w((lambda *s: torch.randn(*s, dtype=torch.bfloat16) * 0.05)(D, D)),
        }
    _A_in = _A_setup()

    def _B_setup():
        B, S, Dm, Df = 1, 2048, 512, 1792
        return {
            "x": _w((lambda *s: torch.randn(*s, dtype=torch.bfloat16) * 0.05)(B, S, Dm)),
            "w_gate": _w((lambda *s: torch.randn(*s, dtype=torch.bfloat16) * 0.8)(Dm, Df) * (Dm ** -0.5)),
            "w_up": _w((lambda *s: torch.randn(*s, dtype=torch.bfloat16) * 0.8)(Dm, Df) * (Dm ** -0.5)),
            "w_down": _w((lambda *s: torch.randn(*s, dtype=torch.bfloat16) * 0.8)(Df, Dm) * (Df ** -0.5)),
        }
    _B_in = _B_setup()

    return {
        "A_x": _A_in["x"],
        "A_wqkv": _A_in["wqkv"],
        "A_wo": _A_in["wo"],
        "B_x": _B_in["x"],
        "B_w_gate": _B_in["w_gate"],
        "B_w_up": _B_in["w_up"],
        "B_w_down": _B_in["w_down"],
    }

def reference(A_x, A_wqkv, A_wo, B_x, B_w_gate, B_w_up, B_w_down):
    def _A_ref(x, wqkv, wo):
        B, S, D = x.shape
        H = 32; Dh = D // H; W = 256
        qkv = (lambda x, *d: x.permute(*d))((x @ wqkv).reshape(B, S, 3, H, Dh), 2, 0, 3, 1, 4)
        q, k, v = qkv[0], qkv[1], qkv[2]
        scores = torch.einsum("bhqd,bhkd->bhqk", q, k) * (Dh ** -0.5)
        idx = torch.arange(S)
        mask = (idx[:, None] - idx[None, :] >= 0) & (idx[:, None] - idx[None, :] < W)
        scores = torch.where(mask[None, None], scores, -1e9)
        p = _softmax(scores, axis=-1)
        o = torch.einsum("bhqk,bhkd->bhqd", p, v)
        return (lambda x, *d: x.permute(*d))(o, 0, 2, 1, 3).reshape(B, S, D) @ wo

    def _B_ref(x, w_gate, w_up, w_down):
        g = torch.einsum("bsd,df->bsf", x, w_gate)
        u = torch.einsum("bsd,df->bsf", x, w_up)
        h = _gelu(g) * u
        return torch.einsum("bsf,fd->bsd", h, w_down)

    x = A_x
    xn = _layernorm(x, axis=-1)
    return x + _A_ref(xn, A_wqkv, A_wo) + _B_ref(xn, B_w_gate, B_w_up, B_w_down)
```

```python
import re

REG_RE = re.compile(r'^(-?)(?:abs\()?([vas])(\d+)\)?$')
RANGE_RE = re.compile(r'^(-?)([vas])\[(\d+):(\d+)\]$')

def split_ops(s):
    ops, depth, cur = [], 0, ''
    for ch in s:
        if ch in '[(':
            depth += 1
        if ch in '])':
            depth -= 1
        if ch == ',' and depth == 0:
            ops.append(cur.strip()); cur = ''
        else:
            cur += ch
    if cur.strip():
        ops.append(cur.strip())
    return ops

def regs_of(op):
    op = op.strip()
    m = REG_RE.match(op)
    if m:
        return {(m.group(2), int(m.group(3)))}
    m = RANGE_RE.match(op)
    if m:
        return {(m.group(2), i) for i in range(int(m.group(3)), int(m.group(4)) + 1)}
    if op in ('vcc',):
        return {('s', 106), ('s', 107)}
    if op == 'vcc_lo':
        return {('s', 106)}
    if op == 'vcc_hi':
        return {('s', 107)}
    if op == 'exec':
        return {('s', 126), ('s', 127)}
    if op == 'm0':
        return {('s', 124)}
    return set()

TRANS = ('v_exp_f32', 'v_log_f32', 'v_rcp_f32', 'v_rsq_f32', 'v_sqrt_f32', 'v_sin_f32', 'v_cos_f32', 'v_rcp_iflag_f32')

class Ins:
    __slots__ = ('text', 'mn', 'wr', 'rd', 'kind', 'passes', 'srcc', 'ab', 'sdata', 'is_label', 'skip')
    def __init__(self, text):
        self.text = text
        self.skip = False
        self.is_label = False
        self.wr, self.rd = set(), set()
        self.kind = 'other'
        self.passes = 0
        self.srcc = set(); self.ab = set(); self.sdata = set()
        t = text.split(';')[0].strip()
        if not t or t.endswith(':') or t.startswith('.'):
            self.mn = ''
            self.is_label = t.endswith(':')
            self.kind = 'nop0'
            return
        parts = t.split(None, 1)
        mn = parts[0]
        self.mn = mn
        rest = parts[1] if len(parts) > 1 else ''
        ops = split_ops(rest)
        if ops:
            last = ops[-1].split()
            mods = last[1:]
            ops[-1] = last[0] if last else ''
        else:
            mods = []
        R = [regs_of(o) for o in ops]
        base = mn.replace('_e32', '').replace('_e64', '')
        if mn.startswith('v_mfma'):
            self.kind = 'mfma'
            self.passes = 8 if '32x32x16' in mn else 4 if '16x16x32' in mn else None
            assert self.passes
            self.wr = R[0]; self.ab = R[1] | R[2]; self.srcc = R[3]; self.rd = self.ab | self.srcc
        elif mn.startswith('v_cmp'):
            self.kind = 'valu'; self.wr = R[0]; self.rd = set().union(*R[1:])
        elif mn.startswith('v_readfirstlane') or mn.startswith('v_readlane'):
            self.kind = 'valu_rl'; self.wr = R[0]; self.rd = set().union(*R[1:])
        elif mn.startswith('v_permlane'):
            self.kind = 'valu_perm'; self.wr = R[0] | R[1]; self.rd = R[0] | R[1]
        elif mn.startswith('v_'):
            self.kind = 'trans' if base in TRANS else 'valu'
            if '_co_' in mn:
                self.wr = R[0] | R[1]; self.rd = set().union(*R[2:])
            else:
                self.wr = R[0]; self.rd = set().union(*R[1:]) if len(R) > 1 else set()
            if base in ('v_fmac_f32', 'v_dot2c_f32_bf16', 'v_writelane_b32'):
                self.rd |= R[0]
            if base == 'v_cndmask_b32' and len(ops) == 3:
                self.rd |= regs_of('vcc')
            if base.startswith('v_dot2'):
                self.ab = R[1] | R[2]
        elif mn.startswith('ds_'):
            self.kind = 'ds'
            if mn.startswith('ds_read') or mn.startswith('ds_bpermute') or mn.startswith('ds_swizzle') or '_rtn' in mn:
                self.wr = R[0]; self.rd = set().union(*R[1:])
            else:
                self.rd = set().union(*R)
        elif mn.startswith('buffer_') or mn.startswith('global_'):
            self.kind = 'vmem'
            is_lds = 'lds' in mods or '_lds_' in mn
            if 'load' in mn and not is_lds:
                self.wr = R[0]; self.rd = set().union(*R[1:])
            elif 'atomic' in mn and 'sc0' in mods:
                self.wr = R[0]; self.rd = set().union(*R[1:])
            else:
                self.rd = set().union(*R)
                if is_lds:
                    self.rd |= regs_of('m0'); self.kind = 'vmem_lds'
                if 'store' in mn and ('x4' in mn or 'x3' in mn):
                    self.sdata = R[0] if mn.startswith('buffer_') else R[1]
            if mn in ('buffer_wbl2', 'buffer_inv'):
                self.rd = set(); self.wr = set()
        elif mn.startswith('s_'):
            self.kind = 'salu'
            if mn.startswith(('s_cmp', 's_cbranch', 's_branch', 's_waitcnt', 's_barrier', 's_nop', 's_endpgm', 's_setprio', 's_sleep')):
                self.rd = set().union(*R) if R else set()
            else:
                self.wr = R[0] if R else set(); self.rd = set().union(*R[1:]) if len(R) > 1 else set()
                if 'saveexec' in mn:
                    self.wr |= regs_of('exec')
        else:
            raise ValueError('unknown instr ' + text)

    def states(self):
        if self.kind == 'nop0':
            return 0
        if self.mn == 's_nop':
            return int(self.text.split()[1], 0) + 1
        return 1

def isv(r): return r[0] in 'va'

def need(p, c):
    n = 0
    pv = p.kind in ('valu', 'trans', 'valu_rl', 'valu_perm')
    cv = c.kind in ('valu', 'trans', 'valu_rl', 'valu_perm')
    if pv:
        wv = {r for r in p.wr if isv(r)}
        ws = {r for r in p.wr if r[0] == 's'}
        if c.kind == 'mfma' and wv & c.rd: n = max(n, 2)
        if c.kind == 'valu_rl' and wv & c.rd: n = max(n, 1)
        if c.kind == 'valu_perm' and wv & c.rd: n = max(n, 2)
        if p.kind == 'trans' and cv and c.kind != 'trans' and wv & c.rd: n = max(n, 1)
        if p.kind == 'trans' and c.kind == 'trans' and wv & c.rd: n = max(n, 1)
        if ws:
            if cv and ws & c.rd: n = max(n, 4 if c.kind == 'valu_rl' else 2)
            if c.kind in ('vmem', 'vmem_lds') and ws & c.rd: n = max(n, 5)
            if c.kind == 'salu' and ws & c.rd: n = max(n, 1)
        if 'dpp' in c.text and wv & c.rd: n = max(n, 2)
        if p.mn.startswith('v_dot2') and c.kind != 'nop0':
            if c.mn == p.mn:
                if wv & c.ab: n = max(n, 3)
            elif wv & (c.rd | c.wr): n = max(n, 3)
    if p.kind == 'mfma':
        big = {8: 12, 4: 8}[p.passes]
        if c.kind == 'mfma':
            if p.wr & c.ab: n = max(n, big)
            if p.wr & c.srcc:
                if not (p.wr == c.srcc and p.passes == c.passes): n = max(n, {8: 10, 4: 6}[p.passes])
            elif p.wr & c.wr: n = max(n, big)
        elif cv or c.kind in ('ds', 'vmem', 'vmem_lds'):
            if p.wr & (c.rd | c.wr): n = max(n, big)
        if cv and p.srcc & c.wr: n = max(n, {8: 7, 4: 3}[p.passes])
    if p.kind == 'salu' and ('s', 124) in p.wr and c.kind == 'vmem_lds': n = max(n, 1)
    if p.sdata and (cv or c.kind in ('ds', 'vmem')) and p.sdata & c.wr: n = max(n, 2)
    return n

class Asm:
    def __init__(self):
        self.ins = []
    def __call__(self, text):
        for line in text.split('\n'):
            line = line.strip()
            if line:
                self.ins.append(Ins(line))
    def extend(self, other):
        self.ins.extend(other.ins)
    def finalize(self):
        out = []
        for c in self.ins:
            if c.is_label:
                lab = c.text.split(':')[0].strip()
                for k in range(len(out) - 1, max(-1, len(out) - 200), -1):
                    if out[k].mn.startswith(('s_cbranch', 's_branch')) and out[k].text.split()[1] == lab:
                        for z in out[k + 1:]: z.skip = True
                        break
            if c.kind != 'nop0':
                dist = 0; req = 0; seen = 0
                for p in reversed(out):
                    if dist > 24 or seen > 300: break
                    seen += 1
                    if p.kind != 'nop0':
                        req = max(req, need(p, c) - dist)
                    if not p.skip: dist += p.states()
                while req > 0:
                    k = min(req, 16)
                    out.append(Ins('s_nop %d' % (k - 1)))
                    req -= k
            out.append(c)
        return '\n'.join(('' if (i.is_label or i.text.startswith('.')) else '  ') + i.text for i in out) + '\n'

def interleave(main, side, start=0, end=None):
    if end is None: end = len(main)
    n = end - start
    out = list(main[:start])
    k = 0
    for i in range(n):
        out.append(main[start + i])
        tgt = (len(side) * (i + 1)) // n
        while k < tgt:
            out.append(side[k]); k += 1
    out.extend(main[end:])
    return out

def kernel_desc(name, vgpr, sgpr, accum=None):
    if accum is None: accum = (vgpr + 3) // 4 * 4
    return f'''.section .rodata,"a"
.p2align 6
.amdhsa_kernel {name}
  .amdhsa_next_free_vgpr {vgpr}
  .amdhsa_next_free_sgpr {sgpr}
  .amdhsa_accum_offset {accum}
  .amdhsa_group_segment_fixed_size 0
  .amdhsa_kernarg_size 80
  .amdhsa_user_sgpr_count 2
  .amdhsa_user_sgpr_kernarg_segment_ptr 1
  .amdhsa_system_sgpr_workgroup_id_x 1
.end_amdhsa_kernel
'''
```

```python
from asmlib import *
from sched import *

QF, KF, VF, HF, OF = 0, 2 << 20, 4 << 20, 6 << 20, 14 << 20
WS_RANGE = 16 << 20
P2T0, P2X0, P1G, P1U, STG, CS, ST = 3072, 11264, 19712, 68992, 118272, 0, 768
LDS_K1 = 151040
XR = 128
ACC = 48
BR = 24
K0 = -2.0 * 0.7978845608028654 * 1.4426950408889634
K1C = K0 * 0.044715
import struct
def f2u(f): return struct.unpack('<I', struct.pack('<f', f))[0]
def vr(b, n=4): return 'v[%d:%d]' % (b, b + n - 1)
def acc(u): return vr(ACC + 16 * u, 16)

def prologue(a):
    a('''
s_cmp_ge_u32 s2, 256
s_cbranch_scc1 K1_END
s_load_dwordx2 s[4:5], s[0:1], 0
s_load_dwordx2 s[28:29], s[0:1], 8
s_load_dwordx4 s[32:35], s[0:1], 32
s_load_dwordx2 s[16:17], s[0:1], 72
v_lshrrev_b32 v1, 6, v0
v_and_b32 v0, 63, v0
v_readfirstlane_b32 s20, v1
s_and_b32 s36, s2, 7
s_lshr_b32 s37, s2, 3
s_and_b32 s38, s36, 1
s_lshl_b32 s38, s38, 2
s_and_b32 s39, s37, 3
s_add_u32 s21, s38, s39
s_lshr_b32 s38, s36, 1
s_lshl_b32 s38, s38, 3
s_lshr_b32 s39, s37, 2
s_add_u32 s22, s38, s39
s_lshr_b32 s30, s22, 1
s_and_b32 s23, s22, 1
s_mul_i32 s31, s30, 112
s_mul_i32 s38, s23, 48
s_add_u32 s31, s31, s38
s_lshl_b32 s21, s21, 3
s_add_u32 s21, s21, s20
s_lshl_b32 s24, s21, 15
s_add_u32 s25, s24, 8192
s_add_u32 s26, s24, 16384
s_add_u32 s27, s24, 24576
s_mov_b32 s47, 0x3f803f80
''')
    a('''
v_lshrrev_b32 v2, 3, v0
v_and_b32 v3, 7, v0
v_lshlrev_b32 v1, 10, v2
v_lshl_add_u32 v1, v3, 4, v1
v_lshrrev_b32 v4, 4, v0
v_xor_b32 v3, v3, v4
v_lshlrev_b32 v3, 4, v3
v_lshl_add_u32 v2, v2, 7, v3
s_lshl_b32 s36, s20, 12
s_add_u32 s36, s36, %d
v_add_u32 v2, s36, v2
v_xor_b32 v3, 64, v2
v_and_b32 v4, 31, v0
v_lshrrev_b32 v5, 5, v0
v_lshrrev_b32 v6, 1, v4
v_and_b32 v6, 7, v6
v_xor_b32 v6, v6, v5
v_lshlrev_b32 v6, 4, v6
v_lshl_add_u32 v4, v4, 7, v6
v_add_u32 v4, s36, v4
v_xor_b32 v5, 32, v4
v_xor_b32 v6, 64, v4
v_xor_b32 v7, 0x60, v4
''' % STG)
    a('''
v_bfe_u32 v28, v0, 4, 1
v_lshrrev_b32 v29, 5, v0
v_lshlrev_b32 v29, 3, v29
v_bfe_u32 v30, v0, 2, 2
v_add_u32 v29, v29, v30
v_and_b32 v30, 3, v0
v_lshlrev_b32 v30, 3, v30
v_mul_u32_u24 v8, %d, v28
v_mul_u32_u24 v31, 96, v29
v_add3_u32 v8, v8, v31, v30
v_add_u32 v8, %d, v8
v_lshlrev_b32 v13, 6, v29
v_lshl_add_u32 v13, v28, 5, v13
v_add_u32 v13, v13, v30
v_lshlrev_b32 v22, 4, v0
''' % (P1U - P1G, P1G))
    for i in range(3):
        a('''
v_add_u32 v31, %d, v0
v_mul_u32_u24 v32, 43691, v31
v_lshrrev_b32 v32, 18, v32
v_mul_u32_u24 v33, 6, v32
v_sub_u32 v33, v31, v33
v_mul_u32_u24 v32, 3584, v32
v_lshl_add_u32 v%d, v33, 4, v32
''' % (64 * i, 9 + i))
    a('''
v_mov_b32 v15, 0
v_mov_b32 v16, 0
v_mov_b32 v17, 0
v_mov_b32 v18, 0
v_mov_b32 v19, 0
v_mov_b32 v20, 0
v_mov_b32 v21, 0
s_waitcnt lgkmcnt(0)
s_mov_b32 s6, 0x200000
s_mov_b32 s7, 0x20000
s_mov_b32 s18, %d
s_mov_b32 s19, 0x20000
s_cmp_lt_u32 s20, 4
s_cselect_b32 s8, s32, s34
s_cselect_b32 s9, s33, s35
s_mov_b32 s10, 1835008
s_mov_b32 s11, 0x20000
s_mov_b32 s41, %d
s_cselect_b32 s41, s41, %d
s_and_b32 s36, s20, 3
s_mul_i32 s40, s36, 114688
s_lshl_b32 s37, s31, 1
s_add_u32 s40, s40, s37
s_mul_i32 s37, s36, 3072
s_add_u32 s41, s41, s37
''' % (WS_RANGE, P1G, P1U))
    a('''
s_mov_b32 s15, 0x20000
s_cmp_lt_u32 s20, 4
s_cbranch_scc1 K1_P2_QKV
s_cmp_eq_u32 s23, 0
s_cbranch_scc1 K1_P2_QKV
s_cmp_lt_u32 s20, 6
s_cselect_b32 s12, s32, s34
s_cselect_b32 s13, s33, s35
s_cselect_b32 s37, 0, 4224
s_mov_b32 s14, 1835008
v_lshrrev_b32 v31, 1, v0
v_mul_u32_u24 v31, 3584, v31
v_and_b32 v12, 1, v0
v_lshl_add_u32 v12, v12, 4, v31
s_and_b32 s36, s20, 1
s_mul_i32 s42, s36, 229376
s_mul_i32 s38, s30, 224
s_add_u32 s42, s42, s38
s_add_u32 s42, s42, 192
s_mov_b32 s43, 458752
s_mov_b32 s44, 114688
s_lshl_b32 s36, s36, 11
s_add_u32 s37, s37, s36
s_add_u32 s45, s37, %d
s_add_u32 s46, s37, %d
s_branch K1_P2_DONE
K1_P2_QKV:
s_mov_b32 s12, s28
s_mov_b32 s13, s29
s_mov_b32 s14, 1572864
v_lshrrev_b32 v31, 2, v0
v_mul_u32_u24 v31, 3072, v31
v_and_b32 v12, 3, v0
v_lshl_add_u32 v12, v12, 4, v31
s_and_b32 s36, s20, 3
s_mul_i32 s42, s36, 98304
s_lshl_b32 s37, s22, 6
s_lshl_b32 s38, s30, 6
s_add_u32 s38, s38, 2048
s_lshl_b32 s36, s36, 11
s_cmp_lt_u32 s20, 4
s_cselect_b32 s37, s37, s38
s_mov_b32 s45, %d
s_cselect_b32 s45, s45, %d
s_mov_b32 s46, %d
s_cselect_b32 s46, s46, %d
s_add_u32 s42, s42, s37
s_mov_b32 s43, 393216
s_mov_b32 s44, 49152
s_add_u32 s45, s45, s36
s_add_u32 s46, s46, s36
K1_P2_DONE:
''' % (P2X0, P1U, P2T0, P2X0, P1G, P1U))
    a('''
s_cmp_eq_u32 s23, 0
s_cbranch_scc1 K1_XA
v_mul_u32_u24 v14, 4224, v28
v_lshl_add_u32 v14, v29, 5, v14
v_add_u32 v14, v14, v30
s_branch K1_XB
K1_XA:
v_mov_b32 v14, v13
K1_XB:
v_add_u32 v23, %d, v14
v_add_u32 v14, %d, v14
''' % (P1U, P2X0))
    a('''
s_mul_i32 s48, s21, 112
s_lshr_b32 s36, s31, 4
s_add_u32 s48, s48, s36
s_lshl_b32 s48, s48, 10
s_add_u32 s48, s48, %d
s_and_b32 s36, s22, 15
s_lshl_b32 s36, s36, 7
s_add_u32 s36, s36, s21
s_lshl_b32 s36, s36, 10
s_cmp_lt_u32 s22, 16
s_cselect_b32 s37, %d, %d
s_cselect_b32 s51, 0x%08x, 0x3f800000
s_add_u32 s49, s36, s37
s_lshl_b32 s36, s30, 7
s_add_u32 s36, s36, s21
s_lshl_b32 s36, s36, 10
s_add_u32 s36, s36, %d
s_add_u32 s37, s48, 3072
s_cmp_eq_u32 s23, 0
s_cselect_b32 s50, s36, s37
''' % (HF, QF, KF, f2u(0.25 * 1.4426950408889634), VF))

def w1_dma(d):
    out = []
    out.append(I('s_add_u32 s52, s40, %d' % (d * 128 * 3584)))
    for i in range(3):
        out.append(I('s_add_u32 m0, s41, %d' % (d * 12288 + i * 1024)))
        out.append(VM('buffer_load_dwordx4 v%d, s[8:11], s52 offen lds' % (9 + i), 'W1_%d' % d))
    return out

def p2_dma(d):
    out = []
    out.append(I('s_mul_i32 s52, s43, %d' % d))
    out.append(I('s_add_u32 s52, s52, s42'))
    out.append(I('s_add_u32 s53, s52, s44'))
    for i in range(2):
        if d == 0: out.append(I('s_add_u32 m0, s45, %d' % (i * 1024)))
        else: out.append(I('s_add_u32 m0, s46, %d' % ((d - 1) * 12288 + i * 1024)))
        out.append(VM('buffer_load_dwordx4 v12, s[12:15], s%d offen lds' % (52 + i), 'P2_%d' % d))
    return out

def x_load(c):
    return [VM('buffer_load_dwordx4 %s, v1, s[4:7], s%d offen offset:%d' % (vr(XR + 16 * c + 4 * j), 24 + j, c * 128), 'X%d' % c) for j in range(4)]

def stage(c):
    out = [W(vm='X%d' % c)]
    for j in range(4):
        out.append(DS('ds_write_b128 v%d, %s offset:%d' % (2 + (j & 1), vr(XR + 16 * c + 4 * j), j * 1024), 'SW%d' % c))
    for s in range(4):
        out.append(DS('ds_read_b128 %s, v%d' % (vr(XR + 16 * c + 4 * s), 4 + s), 'XF%d' % c))
    return out

def tr1(ks):
    out = []
    for u in range(3):
        b = BR + 12 * (ks & 1) + 4 * u
        for sec in range(2):
            out.append(DS('ds_read_b64_tr_b16 %s, v8 offset:%d' % (vr(b + 2 * sec, 2), ks * 1536 + u * 32 + sec * 384), 'T1_%d' % ks))
    return out

def tr2(ks, var):
    d, k = ks >> 3, ks & 7
    out = []
    b = BR + 8 * (ks & 1)
    tb = P2T0 if d == 0 else P1G + (d - 1) * 12288
    for sec in range(2):
        out.append(DS('ds_read_b64_tr_b16 %s, v13 offset:%d' % (vr(b + 2 * sec, 2), tb + k * 1024 + sec * 256), 'T2_%d' % ks))
    xreg = 14 if d == 0 else 23
    xb = 0 if d == 0 else (d - 1) * 12288
    for sec in range(2):
        off = xb + (k * 1024 + sec * 256 if var == 0 else k * 512 + sec * 128)
        out.append(DS('ds_read_b64_tr_b16 %s, v%d offset:%d' % (vr(b + 4 + 2 * sec, 2), xreg, off), 'T2_%d' % ks))
    return out

_lbl = [0]
def csum(ks, bbase, nu, acc0):
    _lbl[0] += 1
    L = 'K1_CS%d' % _lbl[0]
    out = [I('s_cmp_lg_u32 s20, %d' % (ks & 7)), I('s_cbranch_scc1 %s' % L)]
    for j in range(4):
        for u in range(nu):
            out.append(I('v_dot2_f32_bf16 v%d, v%d, s47, v%d' % (acc0 + u, bbase + 4 * u + j, acc0 + u)))
    out.append(I(L + ':'))
    return out

def g_epilogue(u, soff_expr, tmp=(1, 2, 3, 11), cs=40, outr=4, tagp='G'):
    A = ACC + 16 * u
    out = []
    for q in range(2):
        tg = '%s%d_%d' % (tagp, u, q)
        out.append(DS('ds_read_b128 %s, v10 offset:%d' % (vr(cs), u * 128 + q * 32), tg))
        out.append(DS('ds_read_b128 %s, v10 offset:%d' % (vr(cs + 4), u * 128 + 64 + q * 32), tg))
        out.append(W(ds=tg))
        g = [A + 4 * q + i for i in range(4)]
        uu = [A + 8 + 4 * q + i for i in range(4)]
        for i in range(4): out.append(I('v_fma_f32 v%d, v%d, v15, v%d' % (g[i], cs + i, g[i])))
        for i in range(4): out.append(I('v_fma_f32 v%d, v%d, v15, v%d' % (uu[i], cs + 4 + i, uu[i])))
        for i in range(4): out.append(I('v_mul_f32 v%d, v%d, v16' % (g[i], g[i])))
        for i in range(4): out.append(I('v_mul_f32 v%d, v%d, v%d' % (tmp[i], g[i], g[i])))
        for i in range(4): out.append(I('v_fmaak_f32 v%d, v9, v%d, 0x%08x' % (tmp[i], tmp[i], f2u(K0))))
        for i in range(4): out.append(I('v_mul_f32 v%d, v%d, v%d' % (tmp[i], tmp[i], g[i])))
        for i in range(4): out.append(I('v_exp_f32 v%d, v%d' % (tmp[i], tmp[i])))
        for i in range(4): out.append(I('v_mul_f32 v%d, v%d, v16' % (uu[i], uu[i])))
        for i in range(4): out.append(I('v_add_f32 v%d, 1.0, v%d' % (tmp[i], tmp[i])))
        for i in range(4): out.append(I('v_rcp_f32 v%d, v%d' % (tmp[i], tmp[i])))
        for i in range(4): out.append(I('v_mul_f32 v%d, v%d, v%d' % (g[i], g[i], uu[i])))
        for i in range(4): out.append(I('v_mul_f32 v%d, v%d, v%d' % (g[i], g[i], tmp[i])))
        out.append(I('v_cvt_pk_bf16_f32 v%d, v%d, v%d' % (outr + 2 * q, g[0], g[1])))
        out.append(I('v_cvt_pk_bf16_f32 v%d, v%d, v%d' % (outr + 2 * q + 1, g[2], g[3])))
    sreg, add = soff_expr
    out.append(I('s_add_u32 s54, s%d, %d' % (sreg, add)))
    out.append(VM('buffer_store_dwordx4 %s, v22, s[16:19], s54 offen' % vr(outr), 'ST'))
    return out

def t_epilogue():
    A = ACC + 48
    cs = XR
    out = []
    for q in range(4):
        out.append(DS('ds_read_b128 %s, v10 offset:%d' % (vr(cs + 4 * q), 3 * 128 + q * 32), 'TE'))
    out.append(I('v_mul_f32 v1, s51, v16'))
    out.append(W(ds='TE'))
    for r in range(16): out.append(I('v_fma_f32 v%d, v%d, v15, v%d' % (A + r, cs + r, A + r)))
    for r in range(16): out.append(I('v_mul_f32 v%d, v%d, v1' % (A + r, A + r)))
    for p in range(8): out.append(I('v_cvt_pk_bf16_f32 v%d, v%d, v%d' % (cs + 16 + p, A + 2 * p, A + 2 * p + 1)))
    out.append(I('s_add_u32 s54, s49, 65536'))
    out.append(VM('buffer_store_dwordx4 %s, v22, s[16:19], s49 offen' % vr(cs + 16), 'ST'))
    out.append(VM('buffer_store_dwordx4 %s, v22, s[16:19], s54 offen' % vr(cs + 20), 'ST'))
    return out

def v_epilogue():
    A = ACC + 64
    nm, rs, o = XR + 32, XR + 48, XR + 64
    out = []
    out.append(I('v_lshrrev_b32 v2, 5, v0'))
    out.append(I('v_lshlrev_b32 v2, 4, v2'))
    out.append(I('s_lshl_b32 s54, s20, 8'))
    out.append(I('s_add_u32 s54, s54, %d' % ST))
    out.append(I('v_add_u32 v2, s54, v2'))
    out.append(I('v_and_b32 v3, 31, v0'))
    out.append(I('v_lshlrev_b32 v3, 2, v3'))
    out.append(DS('ds_read_b32 v3, v3 offset:%d' % (CS + 4 * 128), 'VE'))
    for q in range(4):
        out.append(DS('ds_read_b128 %s, v2 offset:%d' % (vr(nm + 4 * q), q * 32), 'VE'))
        out.append(DS('ds_read_b128 %s, v2 offset:%d' % (vr(rs + 4 * q), 128 + q * 32), 'VE'))
    out.append(I('v_bfe_u32 v4, v0, 4, 1'))
    out.append(I('v_lshlrev_b32 v4, 16, v4'))
    out.append(I('v_lshrrev_b32 v5, 5, v0'))
    out.append(I('v_lshl_add_u32 v4, v5, 8, v4'))
    out.append(I('v_and_b32 v5, 15, v0'))
    out.append(I('v_lshl_add_u32 v4, v5, 4, v4'))
    out.append(W(ds='VE'))
    for r in range(16): out.append(I('v_fma_f32 v%d, v%d, v3, v%d' % (A + r, nm + r, A + r)))
    for r in range(16): out.append(I('v_mul_f32 v%d, v%d, v%d' % (A + r, A + r, rs + r)))
    for p in range(8): out.append(I('v_cvt_pk_bf16_f32 v%d, v%d, v%d' % (o + p, A + 2 * p, A + 2 * p + 1)))
    out.append(VM('buffer_store_dwordx4 %s, v4, s[16:19], s50 offen' % vr(o), 'ST'))
    out.append(VM('buffer_store_dwordx4 %s, v4, s[16:19], s50 offen offset:512' % vr(o + 4), 'ST'))
    return out

def rne_bf16(dst, src):
    return [I('v_cvt_pk_bf16_f32 v%d, v%d, v%d' % (dst, src, src)), I('v_lshlrev_b32 v%d, 16, v%d' % (dst, dst))]

def stats_final():
    out = []
    out += [I('v_mov_b32 v1, v15'), I('v_mov_b32 v2, v16'),
            I('v_permlane32_swap_b32 v15, v1'), I('v_permlane32_swap_b32 v16, v2'),
            I('v_add_f32 v15, v15, v1'), I('v_add_f32 v16, v16, v2'),
            I('v_mul_f32 v15, 0x3b000000, v15'), I('v_mul_f32 v16, 0x3b000000, v16'),
            I('v_fma_f32 v16, -v15, v15, v16'), I('v_max_f32 v16, 0, v16')]
    out += rne_bf16(15, 15)
    out += rne_bf16(16, 16)
    out += [I('v_add_f32 v16, 0x%08x, v16' % f2u(1e-5))]
    out += rne_bf16(16, 16)
    out += [I('v_sqrt_f32 v16, v16')]
    out += rne_bf16(16, 16)
    out += [I('v_rcp_f32 v16, v16'), I('v_sub_f32 v15, 0, v15')]
    out += [I('v_and_b32 v1, 31, v0'), I('v_lshlrev_b32 v1, 2, v1'), I('s_lshl_b32 s54, s20, 8'), I('s_add_u32 s54, s54, %d' % ST),
            I('v_add_u32 v1, s54, v1'),
            DS('ds_write_b32 v1, v15', 'STW'), DS('ds_write_b32 v1, v16 offset:128', 'STW')]
    out += [I('v_mov_b32 v9, 0x%08x' % f2u(K1C)), I('v_lshrrev_b32 v10, 5, v0'), I('v_lshlrev_b32 v10, 4, v10'), I('v_add_u32 v10, %d, v10' % CS)]
    return out

def cs_publish(units):
    out = [I('v_and_b32 v11, 31, v0'), I('v_lshlrev_b32 v11, 2, v11')]
    for u in units:
        out.append(DS('ds_add_f32 v11, v%d offset:%d' % (17 + u, CS + u * 128), 'CSA'))
    return out

def build_k1():
    a = Asm()
    prologue(a)
    R = Resolver(a)
    pre = []
    pre += [I('s_lshl_b32 s52, s20, 8'), I('v_lshl_add_u32 v31, v0, 2, s52'), I('v_mov_b32 v32, 0'),
            I('v_cmp_gt_u32 vcc, 640, v31'), I('s_and_saveexec_b64 s[56:57], vcc'),
            DS('ds_write_b32 v31, v32 offset:%d' % CS, 'Z'), I('s_mov_b64 exec, s[56:57]')]
    for d in range(4):
        pre += w1_dma(d) + x_load(2 * d) + x_load(2 * d + 1)
    pre += p2_dma(0)
    pre += [W(vm='W1_0', ds='Z'), I('s_barrier')]
    pre += stage(0) + tr1(0)
    R.run(pre)
    for ks in range(32):
        c, d = ks >> 2, ks >> 3
        it = []
        if (ks & 7) == 7 and ks < 31:
            it += [W(vm='W1_%d' % (d + 1), ds='T1_%d' % ks), I('s_barrier')] + p2_dma(d + 1)
        if ks < 31: it += tr1(ks + 1)
        if (ks & 3) == 1 and c < 7: it += stage(c + 1)
        it += [W(ds=('T1_%d' % ks, 'XF%d' % c))]
        b = BR + 12 * (ks & 1)
        x = XR + 4 * ks
        side = []
        for j in range(4):
            side.append(I('v_dot2_f32_bf16 v15, v%d, s47, v15' % (x + j)))
            side.append(I('v_dot2_f32_bf16 v16, v%d, v%d, v16' % (x + j, x + j)))
        mm = [I('v_mfma_f32_32x32x16_bf16 %s, %s, %s, %s' % (acc(u), vr(b + 4 * u), vr(x), '0' if ks == 0 else acc(u))) for u in range(3)]
        it += [mm[0]] + side[:3] + [mm[1]] + side[3:6] + [mm[2]] + side[6:]
        it += csum(ks, b, 3, 17)
        R.run(it)
    mid = stats_final() + cs_publish((0, 1, 2)) + [W(vm=('P2_0', 'P2_1', 'P2_2', 'P2_3'), ds='ALL'), I('s_barrier')]
    R.run(mid)
    a('s_cmp_eq_u32 s23, 0\ns_cbranch_scc0 K1_VARB')
    import copy
    for var in range(2):
        if var == 1: a('K1_VARB:')
        RR = copy.deepcopy(R); RR.a = a
        main = tr2(0, var)
        body = []
        for ks in range(32):
            if ks < 31: body += tr2(ks + 1, var)
            body += [W(ds='T2_%d' % ks)]
            b = BR + 8 * (ks & 1); x = XR + 4 * ks
            body.append(I('v_mfma_f32_32x32x16_bf16 %s, %s, %s, %s' % (acc(3), vr(b), vr(x), '0' if ks == 0 else acc(3))))
            if var == 0:
                body.append(I('v_mfma_f32_32x32x16_bf16 %s, %s, %s, %s' % (acc(4), vr(x), vr(b + 4), '0' if ks == 0 else acc(4))))
            else:
                body.append(I('v_mfma_f32_32x32x16_bf16 %s, %s, %s, %s' % (acc(4), vr(b + 4), vr(x), '0' if ks == 0 else acc(4))))
            body.append(('CS', ks))
        side = []
        for u in range(3): side += g_epilogue(u, (48, u * 1024))
        merged = merge(body, side)
        flat = []
        for x in merged:
            if isinstance(x, tuple): flat += csum(x[1], BR + 8 * (x[1] & 1), 2, 20)
            else: flat.append(x)
        RR.run(main + flat)
        fin = cs_publish((3, 4)) + [W(ds='ALL'), I('s_barrier')]
        fin += t_epilogue()
        if var == 0: fin += v_epilogue()
        else: fin += g_epilogue(4, (50, 0), tagp='GF')
        RR.run(fin)
        a('s_endpgm' if var == 0 else 'K1_END:\ns_endpgm')
    return a.finalize()

if __name__ == '__main__':
    src = build_k1()
    print(len(src.splitlines()))
```

```python
from asmlib import *
from sched import *
from k1 import QF, KF, VF, HF, OF, WS_RANGE, vr, f2u
import copy

RSZ = 17408
FLAG = 4 * RSZ
LDS_K2 = FLAG + 256
NEG_BIG = 0xf149f2ca
GA, GB, GACC = 16, 80, 96
AQ, AK, AV, SA, SB, CN, CT, AP, AO = 16, 24, 64, 144, 160, 176, 192, 208, 216
XRES = 232
FLAGPOS = 20

def prologue(a):
    a('''
s_cmp_ge_u32 s2, 256
s_cbranch_scc1 K2_END
s_load_dwordx2 s[4:5], s[0:1], 0
s_load_dwordx2 s[8:9], s[0:1], 16
s_load_dwordx2 s[12:13], s[0:1], 48
s_load_dwordx4 s[24:27], s[0:1], 56
s_load_dwordx2 s[16:17], s[0:1], 72
v_mov_b32 v15, v0
v_lshrrev_b32 v1, 6, v0
v_and_b32 v0, 63, v0
v_readfirstlane_b32 s20, v1
s_and_b32 s36, s2, 7
s_lshr_b32 s37, s2, 3
s_lshl_b32 s21, s36, 2
s_lshr_b32 s38, s37, 3
s_add_u32 s21, s21, s38
s_and_b32 s22, s37, 7
v_lshlrev_b32 v14, 4, v0
v_lshrrev_b32 v1, 3, v15
v_and_b32 v2, 7, v15
v_lshlrev_b32 v13, 10, v1
v_lshl_add_u32 v13, v2, 4, v13
v_mul_u32_u24 v12, 272, v1
v_lshl_add_u32 v12, v2, 5, v12
s_lshl_b32 s23, s21, 16
s_lshl_b32 s36, s22, 7
s_add_u32 s23, s23, s36
v_mov_b32 v1, 0
v_mov_b32 v2, %d
ds_write_b32 v2, v1
s_waitcnt lgkmcnt(0)
s_mov_b32 s6, 0x200000
s_mov_b32 s7, 0x20000
s_mov_b32 s10, 0x80000
s_mov_b32 s11, 0x20000
s_mov_b32 s14, 1835008
s_mov_b32 s15, 0x20000
s_mov_b32 s18, %d
s_mov_b32 s19, 0x20000
s_mov_b32 s28, s24
s_mov_b32 s29, s25
s_mov_b32 s30, 0x200000
s_mov_b32 s31, 0x20000
s_barrier
''' % (FLAG, WS_RANGE))

def final_reduce(tagp):
    out = [I('s_barrier')]
    T = 96
    for g in range(4):
        for hlf in range(2):
            out.append(DS('ds_read_b128 %s, v12 offset:%d' % (vr(T + 8 * g + 4 * hlf), g * RSZ + 16 * hlf), tagp + 'R'))
    out.append(W(vm='XRES'))
    for i in range(4):
        out.append(I('v_lshlrev_b32 v%d, 16, v%d' % (64 + 2 * i, XRES + i)))
        out.append(I('v_and_b32 v%d, 0xffff0000, v%d' % (65 + 2 * i, XRES + i)))
    out.append(W(ds=tagp + 'R'))
    for i in range(8): out.append(I('v_add_f32 v%d, v%d, v%d' % (T + i, T + i, T + 8 + i)))
    for i in range(8): out.append(I('v_add_f32 v%d, v%d, v%d' % (T + 16 + i, T + 16 + i, T + 24 + i)))
    for i in range(8): out.append(I('v_add_f32 v%d, v%d, v%d' % (T + i, T + i, T + 16 + i)))
    for i in range(8): out.append(I('v_add_f32 v%d, v%d, v%d' % (T + i, T + i, 64 + i)))
    for i in range(4): out.append(I('v_cvt_pk_bf16_f32 v%d, v%d, v%d' % (72 + i, T + 2 * i, T + 2 * i + 1)))
    out.append(VM('buffer_store_dwordx4 v[72:75], v13, s[28:31], s23 offen', 'OUT'))
    out.append(I('s_endpgm'))
    return out

def gemm(a):
    R = Resolver(a)
    txt = ('''
v_lshrrev_b32 v1, 3, v0
v_and_b32 v2, 7, v0
v_bfe_u32 v3, v0, 4, 1
v_lshlrev_b32 v3, 2, v3
v_xor_b32 v2, v2, v3
v_lshlrev_b32 v1, 10, v1
v_lshl_add_u32 v1, v2, 4, v1
v_lshrrev_b32 v2, 5, v0
v_bfe_u32 v3, v0, 2, 2
v_lshl_add_u32 v2, v2, 2, v3
v_lshlrev_b32 v2, 7, v2
v_lshrrev_b32 v3, 1, v3
v_lshl_add_u32 v2, v3, 6, v2
v_bfe_u32 v3, v0, 4, 1
v_lshl_add_u32 v2, v3, 5, v2
v_and_b32 v3, 3, v0
v_lshl_add_u32 v2, v3, 3, v2
s_mul_i32 s40, s20, %d
v_add_u32 v2, s40, v2
v_xor_b32 v3, 64, v2
s_mul_i32 s41, s21, 224
s_mul_i32 s36, s20, 28
s_add_u32 s41, s41, s36
s_lshl_b32 s41, s41, 10
s_add_u32 s41, s41, %d
s_add_u32 s42, s41, 114688
s_mul_i32 s43, s20, 458752
s_lshl_b32 s36, s22, 7
s_add_u32 s43, s43, s36
s_lshl_b32 s44, s21, 6
s_lshl_b32 s37, s20, 3
s_add_u32 s44, s44, s37
s_lshl_b32 s44, s44, 10
s_add_u32 s44, s44, %d
s_add_u32 s45, s44, 32768
s_lshl_b32 s46, s20, 17
s_add_u32 s46, s46, s36
v_mov_b32 v4, %d
''' % (RSZ, HF, OF, FLAG))
    a(txt)
    def LA(s):
        out = []
        for t in range(2):
            dst = vr(GA + 8 * (s & 7) + 4 * t)
            if s < 28:
                out.append(I('s_add_u32 s50, s%d, %d' % (41 + t, s * 1024)))
                out.append(VM('buffer_load_dwordx4 %s, v14, s[16:19], s50 offen' % dst, 'A%d' % s))
            else:
                out.append(I('s_add_u32 s50, s%d, %d' % (44 + t, (s - 28) * 1024)))
                out.append(VM('buffer_load_dwordx4 %s, v14, s[16:19], s50 offen sc1' % dst, 'A%d' % s))
        return out
    def LW(s):
        out = []
        for i in range(2):
            if s < 28:
                out.append(I('s_add_u32 s51, s43, %d' % ((16 * s + 8 * i) * 1024))); srd = 's[12:15]'
            else:
                out.append(I('s_add_u32 s51, s46, %d' % ((16 * (s - 28) + 8 * i) * 1024))); srd = 's[8:11]'
            out.append(I('s_add_u32 m0, s40, %d' % ((s & 7) * 2048 + i * 1024)))
            out.append(VM('buffer_load_dwordx4 v1, %s, s51 offen lds' % srd, 'W%d' % s))
        return out
    def TR(s):
        out = [W(vm='W%d' % s)]
        for cti in range(2):
            for sec in range(2):
                out.append(DS('ds_read_b64_tr_b16 %s, v%d offset:%d' % (vr(GB + 8 * (s & 1) + 4 * cti + 2 * sec, 2), 2 + cti, (s & 7) * 2048 + sec * 1024), 'T%d' % s))
        return out
    it = []
    for s in range(8): it += LW(s) + LA(s)
    it.append(VM('buffer_load_dwordx4 %s, v13, s[4:7], s23 offen' % vr(XRES), 'XRES'))
    it += TR(0)
    pend = []
    for s in range(36):
        if s < 35: it += TR(s + 1)
        it.append(W(vm='A%d' % s, ds='T%d' % s))
        for t in range(2):
            for cti in range(2):
                ac = vr(GACC + 16 * (2 * t + cti), 16)
                it.append(I('v_mfma_f32_32x32x16_bf16 %s, %s, %s, %s' % (ac, vr(GB + 8 * (s & 1) + 4 * cti), vr(GA + 8 * (s & 7) + 4 * t), '0' if s == 0 else ac)))
        n = s + 8
        if n < 36:
            it += LW(n)
            if n < 28: it += LA(n)
            elif s < FLAGPOS: pend.append(n)
            else:
                if s == FLAGPOS:
                    it += [I('K2_FW:'), DS('ds_read_b32 v5, v4', 'FL'), W(ds='ALL'), I('v_readfirstlane_b32 s52, v5'),
                           I('s_cmp_lg_u32 s52, 0'), I('s_cbranch_scc1 K2_FOK'), I('s_sleep 1'), I('s_branch K2_FW'), I('K2_FOK:')]
                    for p in pend: it += LA(p)
                it += LA(n)
    it += [I('v_and_b32 v5, 31, v0'), I('v_mul_u32_u24 v5, 272, v5'), I('v_lshrrev_b32 v6, 5, v0'), I('v_lshl_add_u32 v5, v6, 4, v5'), I('v_add_u32 v5, s40, v5')]
    for t in range(2):
        for cti in range(2):
            for q in range(4):
                it.append(DS('ds_write_b128 v5, %s offset:%d' % (vr(GACC + 16 * (2 * t + cti) + 4 * q), t * 32 * 272 + cti * 128 + q * 32), 'RW'))
    it.append(W(ds='ALL'))
    it += final_reduce('G')
    R.run(it)

_l = [0]
def lab(p):
    _l[0] += 1
    return 'K2_%s%d' % (p, _l[0])

def attn(a):
    R = Resolver(a)
    a('''
s_sub_u32 s36, s20, 4
s_lshl_b32 s40, s22, 2
s_add_u32 s40, s40, s36
s_lshl_b32 s41, s21, 1
s_sub_u32 s41, s41, 8
s_lshl_b32 s42, s40, 16
v_and_b32 v1, 15, v0
v_lshrrev_b32 v2, 5, v0
v_lshlrev_b32 v1, 4, v1
v_lshl_add_u32 v1, v2, 8, v1
v_and_b32 v3, 31, v0
v_lshlrev_b32 v2, 2, v2
v_sub_u32 v3, v3, v2
v_mov_b32 v4, 0x%08x
''' % NEG_BIG)
    it = []
    it += [I('s_lshl_b32 s36, s21, 11'), I('s_add_u32 s36, s36, s42')]
    it.append(VM('buffer_load_dwordx4 %s, v14, s[16:19], s36 offen' % vr(AQ), 'Q'))
    it.append(VM('buffer_load_dwordx4 %s, v14, s[16:19], s36 offen offset:1024' % vr(AQ + 4), 'Q'))
    for jj in range(10):
        it += [I('s_add_i32 s36, s41, %d' % jj), I('s_max_i32 s36, s36, 0'), I('s_lshl_b32 s36, s36, 10'), I('s_add_u32 s%d, s36, s42' % (44 + jj)),
               I('s_add_u32 s36, s%d, %d' % (44 + jj, KF))]
        it.append(VM('buffer_load_dwordx4 %s, v14, s[16:19], s36 offen' % vr(AK + 4 * jj), 'K%d' % jj))
    for r in range(80): it.append(I('v_mov_b32 v%d, 0x3f803f80' % (AV + r)))
    it += [I('s_mov_b32 s56, 0xffff'), I('s_mov_b32 s57, 0xffff'), I('s_mov_b64 exec, s[56:57]')]
    for jj in range(10):
        it.append(I('s_add_u32 s36, s%d, %d' % (44 + jj, VF)))
        for hf in range(2):
            it.append(VM('buffer_load_dwordx4 %s, v1, s[16:19], s36 offen offset:%d' % (vr(AV + 8 * jj + 4 * hf), hf * 512), 'V%d' % jj))
    it.append(I('s_mov_b64 exec, -1'))
    it.append(VM('buffer_load_dwordx4 %s, v13, s[4:7], s23 offen' % vr(XRES), 'XRES'))
    for r in range(16):
        it.append(I('v_cmp_ge_i32 s[%d:%d], v3, %d' % (64 + 2 * r, 65 + 2 * r, 8 * (r >> 2) + (r & 3))))
    def smfma(qi, jp, buf, cmode):
        jj = qi + jp
        out = [W(vm=('Q', 'K%d' % jj))]
        pre = []
        if jp == 8 or jp == 0:
            val = '0' if cmode == 'A' else 'v%d' % CN
            for r in range(16):
                m = 's[%d:%d]' % (64 + 2 * r, 65 + 2 * r)
                if jp == 8: pre.append(I('v_cndmask_b32 v%d, v4, %s, %s' % (CT + r, val, m)))
                else: pre.append(I('v_cndmask_b32 v%d, %s, v4, %s' % (CT + r, val, m)))
            c = vr(CT, 16)
        else:
            c = '0' if cmode == 'A' else vr(CN, 16)
        mf = I('v_mfma_f32_32x32x16_bf16 %s, %s, %s, %s' % (vr(buf, 16), vr(AK + 4 * jj), vr(AQ + 4 * qi), c))
        out += pre
        if jp == 8:
            out.append(mf)
        else:
            L1, L2 = lab('I'), lab('J')
            out += [I('s_add_i32 s36, s41, %d' % jj), I('s_cmp_lt_i32 s36, 0'), I('s_cbranch_scc1 %s' % L1), mf, I('s_branch %s' % L2), I(L1 + ':')]
            out += [I('s_nop 15')]
            out += [I('v_mov_b32 v%d, v4' % (buf + r)) for r in range(16)]
            out += [I(L2 + ':')]
        return out
    for qi in range(2):
        bufs = (SA, SB)
        it += smfma(qi, 0, SA, 'A')
        it.append(I('v_mov_b32 v5, v4'))
        for jp in range(9):
            if jp < 8: it += smfma(qi, jp + 1, bufs[(jp + 1) & 1], 'A')
            b = bufs[jp & 1]
            for i in range(8): it.append(I('v_max3_f32 v5, v%d, v%d, v5' % (b + 2 * i, b + 2 * i + 1)))
        it += [I('v_mov_b32 v6, v5'), I('v_permlane32_swap_b32 v5, v6'), I('v_max_f32 v5, v5, v6'), I('v_sub_f32 v%d, 0, v5' % CN)]
        for r in range(1, 16): it.append(I('v_mov_b32 v%d, v%d' % (CN + r, CN)))
        it += smfma(qi, 0, SA, 'B')
        for jp in range(9):
            if jp < 8: it += smfma(qi, jp + 1, bufs[(jp + 1) & 1], 'B')
            b = bufs[jp & 1]; jj = qi + jp
            for r in range(16): it.append(I('v_exp_f32 v%d, v%d' % (b + r, b + r)))
            for p in range(8): it.append(I('v_cvt_pk_bf16_f32 v%d, v%d, v%d' % (AP + p, b + 2 * p, b + 2 * p + 1)))
            it.append(W(vm='V%d' % jj))
            for hf in range(2):
                it.append(I('v_mfma_f32_32x32x16_bf16 %s, %s, %s, %s' % (vr(AO, 16), vr(AV + 8 * jj + 4 * hf), vr(AP + 4 * hf), '0' if (jp == 0 and hf == 0) else vr(AO, 16))))
        it.append(I('v_rcp_f32 v6, v%d' % (AO + 8)))
        for r in range(8): it.append(I('v_mul_f32 v%d, v%d, v6' % (AO + r, AO + r)))
        for p in range(4): it.append(I('v_cvt_pk_bf16_f32 v%d, v%d, v%d' % (8 + p, AO + 2 * p, AO + 2 * p + 1)))
        it += [I('s_lshl_b32 s36, s21, 6'), I('s_add_u32 s36, s36, s40'), I('s_lshl_b32 s36, s36, 10'), I('s_add_u32 s36, s36, %d' % (OF + qi * 32768))]
        it.append(VM('buffer_store_dwordx4 v[8:11], v14, s[16:19], s36 offen sc1', 'OST'))
    it += [W(vm='ALL'), I('s_lshl_b32 s36, s21, 2'), I('v_mov_b32 v5, s36'), I('v_mov_b32 v6, 1'),
           I('s_mov_b64 exec, 1'), VM('global_atomic_add v5, v6, s[26:27] sc1', 'AT'), I('s_mov_b64 exec, -1'),
           I('s_cmp_lg_u32 s20, 4'), I('s_cbranch_scc1 K2_AFIN'),
           I('K2_POLL:'), VM('global_load_dword v7, v5, s[26:27] sc1', 'PL'), W(vm='ALL'), I('v_readfirstlane_b32 s36, v7'),
           I('s_cmp_ge_u32 s36, 32'), I('s_cbranch_scc1 K2_PDONE'), I('s_sleep 2'), I('s_branch K2_POLL'), I('K2_PDONE:'),
           I('v_mov_b32 v5, %d' % FLAG), DS('ds_write_b32 v5, v6', 'FW'), W(ds='ALL'), I('K2_AFIN:')]
    it += final_reduce('A')
    R.run(it)

def build_k2():
    a = Asm()
    prologue(a)
    a('s_cmp_ge_u32 s20, 4\ns_cbranch_scc1 K2_ATT')
    gemm(a)
    a('K2_ATT:')
    attn(a)
    a('K2_END:\ns_endpgm')
    return a.finalize()

if __name__ == '__main__':
    print(len(build_k2().splitlines()))
```

```python
from asmlib import Asm

class It:
    __slots__ = ('text', 'q', 'tag', 'wait')
    def __init__(self, text=None, q=None, tag=None, wait=None):
        self.text, self.q, self.tag, self.wait = text, q, tag, wait

def I(text): return It(text)
def VM(text, tag=None): return It(text, 'vm', tag)
def DS(text, tag=None): return It(text, 'ds', tag)
def W(vm=(), ds=()):
    if isinstance(vm, str): vm = (vm,)
    if isinstance(ds, str): ds = (ds,)
    return It(None, None, None, (tuple(vm), tuple(ds)))

class Resolver:
    def __init__(self, asm):
        self.a = asm
        self.iss = {'vm': [], 'ds': []}
        self.done = {'vm': 0, 'ds': 0}
    def _need(self, q, tags):
        L = self.iss[q]
        if 'ALL' in tags:
            last = len(L)
        else:
            last = 0
            for i in range(len(L) - 1, -1, -1):
                if L[i] in tags:
                    last = i + 1; break
            for t in tags:
                assert t in L, ('wait on never-issued tag', q, t)
        if last <= self.done[q]:
            return None
        n = len(L) - last
        mx = 63 if q == 'vm' else 15
        n = min(n, mx)
        self.done[q] = len(L) - n
        return n
    def run(self, items):
        for it in items:
            if it.wait is not None:
                vm, ds = it.wait
                nv = self._need('vm', vm) if vm else None
                nd = self._need('ds', ds) if ds else None
                s = []
                if nv is not None: s.append('vmcnt(%d)' % nv)
                if nd is not None: s.append('lgkmcnt(%d)' % nd)
                if s: self.a('s_waitcnt ' + ' '.join(s))
            else:
                if it.q: self.iss[it.q].append(it.tag)
                self.a(it.text)
    def outstanding(self, q):
        return len(self.iss[q]) - self.done[q]

def merge(main, side, start=0, end=None):
    if end is None: end = len(main)
    n = end - start
    out = list(main[:start]); k = 0
    for i in range(n):
        out.append(main[start + i])
        tgt = (len(side) * (i + 1)) // n
        while k < tgt:
            out.append(side[k]); k += 1
    out.extend(main[end:])
    return out
```

```python
import sys
from asmlib import kernel_desc
import k1
HDR = open('parallel_sum__sliding_block__glu_gated_geglu__prompt.s.ref').read().split('; Override launch')[0]
def kern(name, body): return '.text\n.globl %s\n.p2align 8\n.type %s,@function\n%s:\n%s' % (name, name, name, body)
def build(path, kernels):
    s = HDR
    for (name, body, grid, block, lds, vg, sg) in kernels:
        s += '; @launch kernel=%s grid=(%d,1,1) block=(%d,1,1) lds=%d\n' % (name, grid, block, lds)
    s += '.amdgcn_target "amdgcn-amd-amdhsa--gfx950"\n'
    for (name, body, grid, block, lds, vg, sg) in kernels: s += kern(name, body)
    s += 'CODE_END:\n s_endpgm\n'
    for (name, body, grid, block, lds, vg, sg) in kernels: s += kernel_desc(name, vg, sg)
    open(path, 'w').write(s)
if __name__ == '__main__':
    ks = [('k1_kernel', k1.build_k1(), 256, 512, k1.LDS_K1, 256, 102)]
    if len(sys.argv) > 1 and sys.argv[1] == 'all':
        import k2
        ks.append(('k2_kernel', k2.build_k2(), 256, 512, k2.LDS_K2, 256, 102))
        build(sys.argv[2] if len(sys.argv) > 2 else 'parallel_sum__sliding_block__glu_gated_geglu__prompt.s', ks)
    else:
        build('k1only.s', ks)
```

```python
import re

REG_RE = re.compile(r'^(-?)(?:abs\()?([vas])(\d+)\)?$')
RANGE_RE = re.compile(r'^(-?)([vas])\[(\d+):(\d+)\]$')

def split_ops(s):
    ops, depth, cur = [], 0, ''
    for ch in s:
        if ch in '[(':
            depth += 1
        if ch in '])':
            depth -= 1
        if ch == ',' and depth == 0:
            ops.append(cur.strip()); cur = ''
        else:
            cur += ch
    if cur.strip():
        ops.append(cur.strip())
    return ops

def regs_of(op):
    op = op.strip()
    m = REG_RE.match(op)
    if m:
        return {(m.group(2), int(m.group(3)))}
    m = RANGE_RE.match(op)
    if m:
        return {(m.group(2), i) for i in range(int(m.group(3)), int(m.group(4)) + 1)}
    if op in ('vcc',):
        return {('s', 106), ('s', 107)}
    if op == 'vcc_lo':
        return {('s', 106)}
    if op == 'vcc_hi':
        return {('s', 107)}
    if op == 'exec':
        return {('s', 126), ('s', 127)}
    if op == 'm0':
        return {('s', 124)}
    return set()

TRANS = ('v_exp_f32', 'v_log_f32', 'v_rcp_f32', 'v_rsq_f32', 'v_sqrt_f32', 'v_sin_f32', 'v_cos_f32', 'v_rcp_iflag_f32')

class Ins:
    __slots__ = ('text', 'mn', 'wr', 'rd', 'kind', 'passes', 'srcc', 'ab', 'sdata', 'is_label', 'skip')
    def __init__(self, text):
        self.text = text
        self.skip = False
        self.is_label = False
        self.wr, self.rd = set(), set()
        self.kind = 'other'
        self.passes = 0
        self.srcc = set(); self.ab = set(); self.sdata = set()
        t = text.split(';')[0].strip()
        if not t or t.endswith(':') or t.startswith('.'):
            self.mn = ''
            self.is_label = t.endswith(':')
            self.kind = 'nop0'
            return
        parts = t.split(None, 1)
        mn = parts[0]
        self.mn = mn
        rest = parts[1] if len(parts) > 1 else ''
        ops = split_ops(rest)
        if ops:
            last = ops[-1].split()
            mods = last[1:]
            ops[-1] = last[0] if last else ''
        else:
            mods = []
        R = [regs_of(o) for o in ops]
        base = mn.replace('_e32', '').replace('_e64', '')
        if mn.startswith('v_mfma'):
            self.kind = 'mfma'
            self.passes = 8 if '32x32x16' in mn else 4 if '16x16x32' in mn else 2 if '4x4x4' in mn else None
            assert self.passes
            self.wr = R[0]; self.ab = R[1] | R[2]; self.srcc = R[3]; self.rd = self.ab | self.srcc
        elif mn.startswith('v_cmp'):
            self.kind = 'valu'; self.wr = R[0]; self.rd = set().union(*R[1:])
        elif mn.startswith('v_readfirstlane') or mn.startswith('v_readlane'):
            self.kind = 'valu_rl'; self.wr = R[0]; self.rd = set().union(*R[1:])
        elif mn.startswith('v_permlane'):
            self.kind = 'valu_perm'; self.wr = R[0] | R[1]; self.rd = R[0] | R[1]
        elif mn.startswith('v_'):
            self.kind = 'trans' if base in TRANS else 'valu'
            if '_co_' in mn:
                self.wr = R[0] | R[1]; self.rd = set().union(*R[2:])
            else:
                self.wr = R[0]; self.rd = set().union(*R[1:]) if len(R) > 1 else set()
            if base in ('v_fmac_f32', 'v_dot2c_f32_bf16', 'v_writelane_b32'):
                self.rd |= R[0]
            if base == 'v_cndmask_b32' and len(ops) == 3:
                self.rd |= regs_of('vcc')
            if base.startswith('v_dot2'):
                self.ab = R[1] | R[2]
        elif mn.startswith('ds_'):
            self.kind = 'ds'
            if mn.startswith('ds_read') or mn.startswith('ds_bpermute') or mn.startswith('ds_swizzle') or '_rtn' in mn:
                self.wr = R[0]; self.rd = set().union(*R[1:])
            else:
                self.rd = set().union(*R)
        elif mn.startswith('buffer_') or mn.startswith('global_'):
            self.kind = 'vmem'
            is_lds = 'lds' in mods or '_lds_' in mn
            if 'load' in mn and not is_lds:
                self.wr = R[0]; self.rd = set().union(*R[1:])
            elif 'atomic' in mn and 'sc0' in mods:
                self.wr = R[0]; self.rd = set().union(*R[1:])
            else:
                self.rd = set().union(*R)
                if is_lds:
                    self.rd |= regs_of('m0'); self.kind = 'vmem_lds'
                if 'store' in mn and ('x4' in mn or 'x3' in mn):
                    self.sdata = R[0] if mn.startswith('buffer_') else R[1]
            if mn in ('buffer_wbl2', 'buffer_inv'):
                self.rd = set(); self.wr = set()
        elif mn.startswith('s_'):
            self.kind = 'salu'
            if mn.startswith(('s_cmp', 's_cbranch', 's_branch', 's_waitcnt', 's_barrier', 's_nop', 's_endpgm', 's_setprio', 's_sleep')):
                self.rd = set().union(*R) if R else set()
            else:
                self.wr = R[0] if R else set(); self.rd = set().union(*R[1:]) if len(R) > 1 else set()
                if 'saveexec' in mn:
                    self.wr |= regs_of('exec')
        else:
            raise ValueError('unknown instr ' + text)

    def states(self):
        if self.kind == 'nop0':
            return 0
        if self.mn == 's_nop':
            return int(self.text.split()[1], 0) + 1
        return 1

def isv(r): return r[0] in 'va'

def need(p, c):
    n = 0
    pv = p.kind in ('valu', 'trans', 'valu_rl', 'valu_perm')
    cv = c.kind in ('valu', 'trans', 'valu_rl', 'valu_perm')
    if pv:
        wv = {r for r in p.wr if isv(r)}
        ws = {r for r in p.wr if r[0] == 's'}
        if c.kind == 'mfma' and wv & c.rd: n = max(n, 2)
        if c.kind == 'valu_rl' and wv & c.rd: n = max(n, 1)
        if c.kind == 'valu_perm' and wv & c.rd: n = max(n, 2)
        if p.kind == 'trans' and cv and c.kind != 'trans' and wv & c.rd: n = max(n, 1)
        if p.kind == 'trans' and c.kind == 'trans' and wv & c.rd: n = max(n, 1)
        if ws:
            if cv and ws & c.rd: n = max(n, 4 if c.kind == 'valu_rl' else 2)
            if c.kind in ('vmem', 'vmem_lds') and ws & c.rd: n = max(n, 5)
            if c.kind == 'salu' and ws & c.rd: n = max(n, 1)
        if 'dpp' in c.text and wv & c.rd: n = max(n, 2)
        if p.mn.startswith('v_dot2') and c.kind != 'nop0':
            if c.mn == p.mn:
                if wv & c.ab: n = max(n, 3)
            elif wv & (c.rd | c.wr): n = max(n, 3)
    if p.kind == 'mfma':
        big = {8: 12, 4: 8, 2: 5}[p.passes]
        if c.kind == 'mfma':
            if p.wr & c.ab: n = max(n, big)
            if p.wr & c.srcc:
                if not (p.wr == c.srcc and p.passes == c.passes): n = max(n, {8: 10, 4: 6, 2: 4}[p.passes])
                elif p.passes == 2: n = max(n, 2)
            elif p.wr & c.wr: n = max(n, big)
        elif cv or c.kind in ('ds', 'vmem', 'vmem_lds'):
            if p.wr & (c.rd | c.wr): n = max(n, big)
        if cv and p.srcc & c.wr: n = max(n, {8: 7, 4: 3, 2: 1}[p.passes])
    if p.kind == 'salu' and ('s', 124) in p.wr and c.kind == 'vmem_lds': n = max(n, 1)
    if p.sdata and (cv or c.kind in ('ds', 'vmem')) and p.sdata & c.wr: n = max(n, 2)
    return n

class Asm:
    def __init__(self):
        self.ins = []
    def __call__(self, text):
        for line in text.split('\n'):
            line = line.strip()
            if line:
                self.ins.append(Ins(line))
    def extend(self, other):
        self.ins.extend(other.ins)
    def finalize(self):
        out = []
        for c in self.ins:
            if c.is_label:
                lab = c.text.split(':')[0].strip()
                for k in range(len(out) - 1, max(-1, len(out) - 200), -1):
                    if out[k].mn.startswith(('s_cbranch', 's_branch')) and out[k].text.split()[1] == lab:
                        for z in out[k + 1:]: z.skip = True
                        break
            if c.kind != 'nop0':
                dist = 0; req = 0; seen = 0
                for p in reversed(out):
                    if dist > 24 or seen > 300: break
                    seen += 1
                    if p.kind != 'nop0':
                        req = max(req, need(p, c) - dist)
                    if not p.skip: dist += p.states()
                while req > 0:
                    k = min(req, 16)
                    out.append(Ins('s_nop %d' % (k - 1)))
                    req -= k
            out.append(c)
        return '\n'.join(('' if (i.is_label or i.text.startswith('.')) else '  ') + i.text for i in out) + '\n'

def interleave(main, side, start=0, end=None):
    if end is None: end = len(main)
    n = end - start
    out = list(main[:start])
    k = 0
    for i in range(n):
        out.append(main[start + i])
        tgt = (len(side) * (i + 1)) // n
        while k < tgt:
            out.append(side[k]); k += 1
    out.extend(main[end:])
    return out

def kernel_desc(name, vgpr, sgpr, accum=None):
    if accum is None: accum = (vgpr + 3) // 4 * 4
    return f'''.section .rodata,"a"
.p2align 6
.amdhsa_kernel {name}
  .amdhsa_next_free_vgpr {vgpr}
  .amdhsa_next_free_sgpr {sgpr}
  .amdhsa_accum_offset {accum}
  .amdhsa_group_segment_fixed_size 0
  .amdhsa_kernarg_size 80
  .amdhsa_user_sgpr_count 2
  .amdhsa_user_sgpr_kernarg_segment_ptr 1
  .amdhsa_system_sgpr_workgroup_id_x 1
.end_amdhsa_kernel
'''
```

```python
from asmlib import *
from sched import *
import os, struct, copy

QF, KF, VF, HF, OF, FLG = 0, 2 << 20, 4 << 20, 6 << 20, 14 << 20, 20 << 20
WS_RANGE = 32 << 20
STAMP = int(os.environ.get('STAMP', '0'))
EXP = os.environ.get('EXP', '')
NSPREAD = int(os.environ.get('NSPREAD', '20'))
_st = [0]
def stamp():
    if not STAMP: return []
    k = _st[0]; _st[0] += 1
    return [I('s_memtime s[%d:%d]' % (64 + 2 * k, 65 + 2 * k))]
def stamp_out(base):
    if not STAMP: return []
    out = [I('s_waitcnt lgkmcnt(0)'), I('s_lshl_b32 s54, s2, 3'), I('s_add_u32 s54, s54, s20'), I('s_lshl_b32 s54, s54, 7'), I('s_add_u32 s54, s54, %d' % base), I('v_mov_b32 v1, 0')]
    for k in range(16):
        out += [I('v_mov_b32 v2, s%d' % (64 + 2 * k)), I('buffer_store_dword v2, v1, s[16:19], s54 offen offset:%d' % (4 * k))]
    return out

CSF, ST, XR0, P1G, P1U = 0, 5120, 6144, 71680, 108672
LDS_K1 = 145536
SLOT = 12288
XR, ACC, BR = 128, 48, 24
K0 = -2.0 * 0.7978845608028654 * 1.4426950408889634
K1C = K0 * 0.044715
def f2u(f): return struct.unpack('<I', struct.pack('<f', f))[0]
def vr(b, n=4): return 'v[%d:%d]' % (b, b + n - 1)
def acc(u): return vr(ACC + 16 * u, 16)
SEL1, RS, CSA1, CT1 = 96, 100, 104, 116
SQA, SQB = 15, 16
SEL2, CSA2, CT2 = 40, 128, 136
MF, C0, C1, IRS2, RSTD, CF = 4, 15, 16, 17, 18, 8
def t_base(d): return (P1G + SLOT, P1G + 2 * SLOT, P1G, XR0)[d]
def x_base(d): return (P1U + SLOT, P1U + 2 * SLOT, P1U, XR0 + 8192)[d]

def prologue(a):
    a('''
s_cmp_ge_u32 s2, 256
s_cbranch_scc1 K1_END
s_load_dwordx2 s[4:5], s[0:1], 0
s_load_dwordx2 s[28:29], s[0:1], 8
s_load_dwordx4 s[32:35], s[0:1], 32
s_load_dwordx2 s[16:17], s[0:1], 72
v_lshrrev_b32 v1, 6, v0
v_and_b32 v0, 63, v0
v_readfirstlane_b32 s20, v1
s_and_b32 s36, s2, 7
s_lshr_b32 s37, s2, 3
s_and_b32 s38, s36, 1
s_lshl_b32 s38, s38, 2
s_and_b32 s39, s37, 3
s_add_u32 s21, s38, s39
s_lshr_b32 s38, s36, 1
s_lshl_b32 s38, s38, 3
s_lshr_b32 s39, s37, 2
s_add_u32 s22, s38, s39
s_lshr_b32 s30, s22, 1
s_and_b32 s23, s22, 1
s_mul_i32 s31, s30, 112
s_mul_i32 s38, s23, 48
s_add_u32 s31, s31, s38
s_lshl_b32 s21, s21, 3
s_add_u32 s21, s21, s20
s_lshl_b32 s24, s21, 15
s_add_u32 s25, s24, 8192
s_add_u32 s26, s24, 16384
s_add_u32 s27, s24, 24576
s_lshl_b32 s47, s20, 13
s_add_u32 s47, s47, %d
''' % XR0)
    a('''
v_lshrrev_b32 v2, 3, v0
v_and_b32 v3, 7, v0
v_lshrrev_b32 v4, 4, v0
v_xor_b32 v3, v3, v4
v_lshlrev_b32 v3, 4, v3
v_lshl_add_u32 v2, v2, 10, v3
v_xor_b32 v3, 64, v2
v_and_b32 v4, 31, v0
v_lshrrev_b32 v5, 5, v0
v_lshrrev_b32 v6, 1, v4
v_and_b32 v6, 7, v6
v_xor_b32 v6, v6, v5
v_lshlrev_b32 v6, 4, v6
v_lshl_add_u32 v4, v4, 7, v6
v_add_u32 v4, s47, v4
v_xor_b32 v5, 32, v4
v_xor_b32 v6, 64, v4
v_xor_b32 v7, 0x60, v4
''')
    a('''
v_bfe_u32 v28, v0, 4, 1
v_lshrrev_b32 v29, 5, v0
v_lshlrev_b32 v29, 3, v29
v_bfe_u32 v30, v0, 2, 2
v_add_u32 v29, v29, v30
v_and_b32 v30, 3, v0
v_lshlrev_b32 v30, 3, v30
v_mul_u32_u24 v8, %d, v28
v_mul_u32_u24 v31, 96, v29
v_add3_u32 v8, v8, v31, v30
v_add_u32 v8, %d, v8
s_mul_i32 s36, s20, 1536
v_add_u32 v1, s36, v8
v_lshlrev_b32 v13, 6, v29
v_lshl_add_u32 v13, v28, 5, v13
v_add_u32 v13, v13, v30
v_lshlrev_b32 v22, 4, v0
''' % (P1U - P1G, P1G))
    for i in range(3):
        a('''
v_add_u32 v31, %d, v0
v_mul_u32_u24 v32, 43691, v31
v_lshrrev_b32 v32, 18, v32
v_mul_u32_u24 v33, 6, v32
v_sub_u32 v33, v31, v33
v_mul_u32_u24 v32, 3584, v32
v_lshl_add_u32 v%d, v33, 4, v32
''' % (64 * i, 9 + i))
    a('''
v_and_b32 v31, 15, v0
v_cmp_eq_u32 vcc, v31, v28
v_mov_b32 v96, 0x3f803f80
v_cndmask_b32 v96, 0, v96, vcc
v_mov_b32 v97, v96
v_mov_b32 v98, v96
v_mov_b32 v99, v96
v_mov_b32 v15, 0
v_mov_b32 v16, 0
s_waitcnt lgkmcnt(0)
s_mov_b32 s6, 0x200000
s_mov_b32 s7, 0x20000
s_mov_b32 s18, %d
s_mov_b32 s19, 0x20000
s_cmp_lt_u32 s20, 4
s_cselect_b32 s8, s32, s34
s_cselect_b32 s9, s33, s35
s_mov_b32 s10, 1835008
s_mov_b32 s11, 0x20000
s_mov_b32 s41, %d
s_cselect_b32 s41, s41, %d
s_and_b32 s36, s20, 3
s_mul_i32 s40, s36, 114688
s_lshl_b32 s37, s31, 1
s_add_u32 s40, s40, s37
s_mul_i32 s37, s36, 3072
s_add_u32 s41, s41, s37
''' % (WS_RANGE, P1G, P1U))

def prologue2(a):
    a('''
s_mov_b32 s15, 0x20000
s_cmp_ge_u32 s20, 4
s_cselect_b32 s46, 1, 0
s_cmp_lt_u32 s20, 4
s_cbranch_scc1 K1_P2_QKV
s_cmp_eq_u32 s23, 0
s_cbranch_scc1 K1_P2_QKV
s_cmp_lt_u32 s20, 6
s_cselect_b32 s12, s32, s34
s_cselect_b32 s13, s33, s35
s_cselect_b32 s37, 0, 4224
s_mov_b32 s14, 1835008
v_lshrrev_b32 v31, 1, v0
v_mul_u32_u24 v31, 3584, v31
v_and_b32 v12, 1, v0
v_lshl_add_u32 v12, v12, 4, v31
s_and_b32 s36, s20, 1
s_mul_i32 s42, s36, 229376
s_mul_i32 s38, s30, 224
s_add_u32 s42, s42, s38
s_add_u32 s42, s42, 192
s_mov_b32 s43, 458752
s_mov_b32 s44, 114688
s_lshl_b32 s36, s36, 11
s_add_u32 s45, s37, s36
s_branch K1_P2_DONE
K1_P2_QKV:
s_mov_b32 s12, s28
s_mov_b32 s13, s29
s_mov_b32 s14, 1572864
v_lshrrev_b32 v31, 2, v0
v_mul_u32_u24 v31, 3072, v31
v_and_b32 v12, 3, v0
v_lshl_add_u32 v12, v12, 4, v31
s_and_b32 s36, s20, 3
s_mul_i32 s42, s36, 98304
s_lshl_b32 s37, s22, 6
s_lshl_b32 s38, s30, 6
s_add_u32 s38, s38, 2048
s_lshl_b32 s45, s36, 11
s_cmp_lt_u32 s20, 4
s_cselect_b32 s37, s37, s38
s_add_u32 s42, s42, s37
s_mov_b32 s43, 393216
s_mov_b32 s44, 49152
K1_P2_DONE:
s_cmp_eq_u32 s23, 0
s_cbranch_scc1 K1_XA
v_mul_u32_u24 v14, 4224, v28
v_lshl_add_u32 v14, v29, 5, v14
v_add_u32 v14, v14, v30
s_branch K1_XB
K1_XA:
v_mov_b32 v14, v13
K1_XB:
v_add_u32 v23, %d, v14
v_add_u32 v14, %d, v14
v_add_u32 v21, %d, v13
v_add_u32 v13, %d, v13
''' % (XR0 + 8192, P1U, XR0, P1G))
    a('''
s_mul_i32 s48, s21, 112
s_lshr_b32 s36, s31, 4
s_add_u32 s48, s48, s36
s_lshl_b32 s48, s48, 10
s_add_u32 s48, s48, %d
s_and_b32 s36, s22, 15
s_lshl_b32 s36, s36, 7
s_add_u32 s36, s36, s21
s_lshl_b32 s36, s36, 10
s_cmp_lt_u32 s22, 16
s_cselect_b32 s37, %d, %d
s_cselect_b32 s51, 0x%08x, 0x3f800000
s_add_u32 s49, s36, s37
s_lshl_b32 s36, s30, 7
s_add_u32 s36, s36, s21
s_lshl_b32 s36, s36, 10
s_add_u32 s36, s36, %d
s_add_u32 s37, s48, 3072
s_cmp_eq_u32 s23, 0
s_cselect_b32 s50, s36, s37
''' % (HF, QF, KF, f2u(0.25 * 1.4426950408889634), VF))

def w1_dma(d):
    out = [I('s_add_u32 s55, s40, %d' % (d * 128 * 3584))]
    for i in range(3):
        out.append(I('s_add_u32 m0, s41, %d' % ((d % 3) * SLOT + i * 1024)))
        out.append(VM('buffer_load_dwordx4 v%d, s[8:11], s55 offen lds' % (9 + i), 'W1_%d' % d))
    return out

def p2_dma(d):
    out = [I('s_mul_i32 s52, s43, %d' % d), I('s_add_u32 s52, s52, s42'), I('s_add_u32 s53, s52, s44'),
           I('s_cmp_eq_u32 s46, 0'), I('s_mov_b32 s56, %d' % t_base(d)), I('s_cselect_b32 s56, s56, %d' % x_base(d)), I('s_add_u32 s56, s56, s45')]
    for i in range(2):
        out.append(I('s_add_u32 m0, s56, %d' % (i * 1024)))
        out.append(VM('buffer_load_dwordx4 v12, s[12:15], s%d offen lds' % (52 + i), 'P2_%d' % d))
    return out

def x_dma(c):
    out = []
    for j in range(4):
        out.append(I('s_add_u32 m0, s47, %d' % ((c & 1) * 4096 + j * 1024 - c * 128)))
        out.append(VM('buffer_load_dwordx4 v%d, s[4:7], s%d offen offset:%d lds' % (2 + (j & 1), 24 + j, c * 128), 'X%d' % c))
    return out

def stage(c):
    out = [W(vm='X%d' % c)]
    for s in range(4):
        out.append(DS('ds_read_b128 %s, v%d offset:%d' % (vr(XR + 16 * c + 4 * s), 4 + s, (c & 1) * 4096), 'XF%d' % c))
    return out

B1 = (24, 36)
def tr1(ks, units=(0, 1, 2)):
    out = []
    d, k = ks >> 3, ks & 7
    for u in units:
        b = B1[ks & 1] + 4 * u
        for sec in range(2):
            out.append(DS('ds_read_b64_tr_b16 %s, v8 offset:%d' % (vr(b + 2 * sec, 2), (d % 3) * SLOT + k * 1536 + u * 32 + sec * 384), 'T1_%d_%d' % (ks, u)))
    return out

def cs1_read(d):
    return [DS('ds_read_b64_tr_b16 %s, v1 offset:%d' % (vr(CT1 + 4 * u + 2 * sec, 2), (d % 3) * SLOT + u * 32 + sec * 384), 'C1_%d' % d) for u in range(3) for sec in range(2)]
def cs1_mma(d):
    return [W(ds='C1_%d' % d)] + [I('v_mfma_f32_16x16x32_bf16 %s, %s, %s, %s' % (vr(CSA1 + 4 * u), vr(SEL1), vr(CT1 + 4 * u), '0' if d == 0 else vr(CSA1 + 4 * u))) for u in range(3)]

def tr2_addr(d, k, var, unit, sec):
    if unit == 0:
        reg, base = (13, t_base(d) - P1G) if d < 3 else (21, 0)
        return reg, base + k * 1024 + sec * 256
    reg, base = (14, x_base(d) - P1U) if d < 3 else (23, 0)
    return reg, base + (k * 1024 + sec * 256 if var == 0 else k * 512 + sec * 128)
def tr2(ks, var, unit):
    d, k = ks >> 3, ks & 7
    b = BR + 8 * (ks & 1) + 4 * unit
    out = []
    for sec in range(2):
        reg, off = tr2_addr(d, k, var, unit, sec)
        out.append(DS('ds_read_b64_tr_b16 %s, v%d offset:%d' % (vr(b + 2 * sec, 2), reg, off), 'T2_%d_%d' % (ks, unit)))
    return out
def cs2(d, var):
    out = []
    for unit in range(2):
        for sec in range(2):
            reg, off = tr2_addr(d, 0, var, unit, sec)
            if sec == 0: out.append(I('v_add_u32 v%d, s%d, v%d' % (19 + unit, 57 + (unit if var else 0), reg)))
            out.append(DS('ds_read_b64_tr_b16 %s, v%d offset:%d' % (vr(CT2 + 4 * unit + 2 * sec, 2), 19 + unit, off), 'C2_%d' % d))
    mm = [W(ds='C2_%d' % d)] + [I('v_mfma_f32_16x16x32_bf16 %s, %s, %s, %s' % (vr(CSA2 + 4 * u), vr(SEL2), vr(CT2 + 4 * u), '0' if d == 0 else vr(CSA2 + 4 * u))) for u in range(2)]
    return out, mm

def cs_publish(units, csa):
    out = [I('s_lshr_b32 s54, s20, 2'), I('s_lshl_b32 s54, s54, 9'), I('s_and_b32 s56, s20, 3'), I('s_lshl_b32 s56, s56, 2'), I('s_add_u32 s54, s54, s56'),
           I('v_add_u32 v1, s54, v22'), I('s_mov_b64 exec, 0xffff')]
    for n, u in enumerate(units):
        for k in range(2):
            c = csa + 4 * n + k
            out += [I('v_cvt_pk_bf16_f32 v2, v%d, v%d' % (c, c)), I('v_lshlrev_b32 v2, 16, v2'), I('v_sub_f32 v3, v%d, v2' % c),
                    I('v_cvt_pk_bf16_f32 v%d, v%d, v3' % (c, c)),
                    DS('ds_write_b32 v1, v%d offset:%d' % (c, CSF + u * 1024 + 256 * k), 'CSA')]
    out += [I('s_mov_b64 exec, -1')]
    return out

def mean_fix(u, tag, swap=False):
    A = [DS('ds_read_b128 %s, v22 offset:%d' % (vr(CF), CSF + u * 1024), tag), W(ds=tag)]
    if swap: A.append(I('v_mfma_f32_32x32x16_bf16 %s, %s, %s, %s' % (acc(u), vr(MF), vr(CF), acc(u))))
    else: A.append(I('v_mfma_f32_32x32x16_bf16 %s, %s, %s, %s' % (acc(u), vr(CF), vr(MF), acc(u))))
    return A

def g_epilogue(u, soff_expr, tmp=(1, 2, 3, 12)):
    A = ACC + 16 * u
    out = []
    for q in range(2):
        g = [A + 4 * q + i for i in range(4)]
        uu = [A + 8 + 4 * q + i for i in range(4)]
        for i in range(4): out.append(I('v_mul_f32 v%d, v%d, v%d' % (tmp[i], g[i], g[i])))
        for i in range(4): out.append(I('v_fma_f32 v%d, v%d, v%d, v%d' % (tmp[i], tmp[i], C1, C0)))
        for i in range(4): out.append(I('v_mul_f32 v%d, v%d, v%d' % (tmp[i], tmp[i], g[i])))
        for i in range(4): out.append(I('v_exp_f32 v%d, v%d' % (tmp[i], tmp[i])))
        for i in range(4): out.append(I('v_mul_f32 v%d, v%d, v%d' % (g[i], g[i], uu[i])))
        for i in range(4): out.append(I('v_fma_f32 v%d, v%d, v%d, v%d' % (tmp[i], tmp[i], IRS2, IRS2)))
        for i in range(4): out.append(I('v_rcp_f32 v%d, v%d' % (tmp[i], tmp[i])))
        for i in range(4): out.append(I('v_mul_f32 v%d, v%d, v%d' % (g[i], g[i], tmp[i])))
        out.append(I('v_cvt_pk_bf16_f32 v%d, v%d, v%d' % (A + 8 + 2 * q, g[0], g[1])))
        out.append(I('v_cvt_pk_bf16_f32 v%d, v%d, v%d' % (A + 8 + 2 * q + 1, g[2], g[3])))
    sreg, add = soff_expr
    out.append(I('s_add_u32 s54, s%d, %d' % (sreg, add)))
    out.append(VM('buffer_store_dwordx4 %s, v22, s[16:19], s54 offen' % vr(A + 8), 'ST'))
    return out

def t_epilogue():
    A = ACC + 48
    o = XR + 32
    out = [I('v_mul_f32 v1, s51, v%d' % RSTD)]
    for r in range(16): out.append(I('v_mul_f32 v%d, v%d, v1' % (A + r, A + r)))
    for p in range(8): out.append(I('v_cvt_pk_bf16_f32 v%d, v%d, v%d' % (o + p, A + 2 * p, A + 2 * p + 1)))
    out.append(I('s_add_u32 s54, s49, 65536'))
    out.append(VM('buffer_store_dwordx4 %s, v22, s[16:19], s49 offen' % vr(o), 'ST'))
    out.append(VM('buffer_store_dwordx4 %s, v22, s[16:19], s54 offen' % vr(o + 4), 'ST'))
    return out

def v_pre():
    rs = XR + 48
    out = [I('v_lshrrev_b32 v2, 5, v0'), I('v_lshlrev_b32 v3, 4, v2'), I('s_lshl_b32 s54, s20, 7'), I('v_add_u32 v3, s54, v3')]
    for q in range(4):
        out.append(DS('ds_read_b128 %s, v3 offset:%d' % (vr(rs + 4 * q), ST + q * 32), 'VE'))
    out += [I('v_bfe_u32 v12, v0, 4, 1'), I('v_lshlrev_b32 v12, 16, v12'), I('v_lshl_add_u32 v12, v2, 8, v12'), I('v_and_b32 v2, 15, v0'), I('v_lshl_add_u32 v12, v2, 4, v12')]
    return out
def v_epilogue():
    A = ACC + 64
    rs, o = XR + 48, XR + 64
    out = [W(ds='VE')]
    for r in range(16): out.append(I('v_mul_f32 v%d, v%d, v%d' % (A + r, A + r, rs + r)))
    for p in range(8): out.append(I('v_cvt_pk_bf16_f32 v%d, v%d, v%d' % (o + p, A + 2 * p, A + 2 * p + 1)))
    out.append(VM('buffer_store_dwordx4 %s, v12, s[16:19], s50 offen' % vr(o), 'ST'))
    out.append(VM('buffer_store_dwordx4 %s, v12, s[16:19], s50 offen offset:512' % vr(o + 4), 'ST'))
    return out

def rne_bf16(dst, src):
    return [I('v_cvt_pk_bf16_f32 v%d, v%d, v%d' % (dst, src, src)), I('v_lshlrev_b32 v%d, 16, v%d' % (dst, dst))]

def stats_final():
    out = [I('v_and_b32 v1, 15, v0'), I('v_lshlrev_b32 v1, 2, v1'),
           DS('ds_bpermute_b32 v2, v1, v%d' % RS, 'BP'), DS('ds_bpermute_b32 v3, v1, v%d' % (RS + 1), 'BP'),
           I('v_add_f32 v16, v15, v16'), I('v_mov_b32 v17, v16'), I('v_permlane32_swap_b32 v16, v17'), I('v_add_f32 v16, v16, v17'),
           I('v_and_b32 v1, 16, v0'), I('v_cmp_ne_u32 vcc, 0, v1'), W(ds='BP'), I('v_cndmask_b32 v15, v2, v3, vcc'),
           I('v_mul_f32 v15, 0x3b000000, v15'), I('v_mul_f32 v16, 0x3b000000, v16'),
           I('v_fma_f32 v16, -v15, v15, v16'), I('v_max_f32 v16, 0, v16')]
    out += rne_bf16(16, 16)
    out += [I('v_add_f32 v16, 0x%08x, v16' % f2u(1e-5))]
    out += rne_bf16(16, 16)
    out += [I('v_sqrt_f32 v16, v16')]
    out += rne_bf16(16, 16)
    out += [I('v_sub_f32 v15, 0, v15'), I('v_cvt_pk_bf16_f32 v%d, v15, v15' % MF),
            I('v_mov_b32 v%d, v%d' % (MF + 1, MF)), I('v_mov_b32 v%d, v%d' % (MF + 2, MF)), I('v_mov_b32 v%d, v%d' % (MF + 3, MF)),
            I('v_rcp_f32 v%d, v16' % RSTD), I('v_mul_f32 v%d, v16, v16' % IRS2),
            I('v_mul_f32 v%d, 0x%08x, v%d' % (C0, f2u(K0), RSTD)), I('v_mul_f32 v1, v%d, v%d' % (RSTD, RSTD)),
            I('v_mul_f32 v1, v1, v%d' % RSTD), I('v_mul_f32 v%d, 0x%08x, v1' % (C1, f2u(K1C)))]
    out += [I('v_and_b32 v1, 31, v0'), I('v_lshlrev_b32 v1, 2, v1'), I('s_lshl_b32 s54, s20, 7'), I('v_add_u32 v1, s54, v1'),
            DS('ds_write_b32 v1, v%d offset:%d' % (RSTD, ST), 'STW')]
    return out

def groups(items):
    g, cur = [], []
    for x in items:
        cur.append(x)
        if x.q == 'vm': g.append(cur); cur = []
    assert not cur
    return g

def build_k1():
    a = Asm()
    prologue(a)
    R = Resolver(a)
    pre = stamp() + w1_dma(0) + x_dma(0) + x_dma(1) + w1_dma(1)
    R.run(pre)
    prologue2(a)
    pre = [I('s_or_b32 s52, s2, s20'), I('s_cmp_lg_u32 s52, 0'), I('s_cbranch_scc1 K1_NOZ'),
           I('v_mov_b32 v32, 0'), I('v_mov_b32 v33, 0'), I('v_mov_b32 v34, 0'), I('v_mov_b32 v35, 0'), I('s_mov_b32 s52, %d' % FLG)]
    pre += [I('buffer_store_dwordx4 v[32:35], v22, s[16:19], s52 offen offset:%d' % (1024 * i)) for i in range(4)]
    pre += [I('s_waitcnt vmcnt(0)'), I('K1_NOZ:')]
    pre += stamp() + [W(vm='W1_0'), I('s_barrier')] + stamp()
    pre += stage(0) + tr1(0)
    R.run(pre)
    for ks in range(32):
        c, d = ks >> 2, ks >> 3
        it = []
        b = B1[ks & 1]; x = XR + 4 * ks
        vmg = []
        if (ks & 7) == 7 and ks < 31:
            it += cs1_mma(d)
            it += stamp() + [W(vm='W1_%d' % (d + 1), ds=['T1_%d_%d' % (ks, u) for u in range(3)]), I('s_barrier')]
            vmg += groups(w1_dma(3)) if d == 0 else groups(p2_dma(d - 1))
        if (ks & 3) == 3 and c + 3 <= 7:
            g = groups(x_dma(c + 3)); g[0] = [W(ds='XF%d' % (c + 1))] + g[0]; vmg += g
        if ks == 1: vmg += groups(x_dma(2))
        if ks == 4: vmg += groups(w1_dma(2))
        sq = []
        for j in range(4):
            t = 17 + 2 * (j & 1)
            sq.append([I('v_lshlrev_b32 v%d, 16, v%d' % (t, x + j)), I('v_and_b32 v%d, 0xffff0000, v%d' % (t + 1, x + j)),
                       I('v_fmac_f32 v%d, v%d, v%d' % (SQA, t, t)), I('v_fmac_f32 v%d, v%d, v%d' % (SQB, t + 1, t + 1))])
        side = [sq[0] + [I('v_mfma_f32_16x16x32_bf16 %s, %s, %s, %s' % (vr(RS), vr(SEL1), vr(x), '0' if ks == 0 else vr(RS)))], sq[1] + sq[2], sq[3]]
        for u in range(3):
            it += [W(ds=('T1_%d_%d' % (ks, u), 'XF%d' % c))]
            it.append(I('v_mfma_f32_32x32x16_bf16 %s, %s, %s, %s' % (acc(u), vr(b + 4 * u), vr(x), '0' if ks == 0 else acc(u))))
            if ks < 31: it += tr1(ks + 1, (u,))
            it += side[u]
            if u < len(vmg): it += vmg[u]
        for g in vmg[3:]: it += g
        if (ks & 7) == 5: it += cs1_read(d)
        if (ks & 3) == 1 and c < 7: it += stage(c + 1)
        R.run(it)
    mid = stamp() + cs1_mma(3) + stats_final() + cs_publish((0, 1, 2), CSA1) + [I('v_mov_b32 v%d, v%d' % (SEL2 + r, SEL1)) for r in range(4)]
    mid += [I('s_lshl_b32 s57, s20, 10'), I('s_lshl_b32 s58, s20, 9')]
    mid += [W(vm=('P2_0', 'P2_1'), ds='ALL'), I('s_barrier')] + stamp() + p2_dma(2) + p2_dma(3)
    R.run(mid)
    st_save = _st[0]
    a('s_cmp_eq_u32 s23, 0\ns_cbranch_scc0 K1_VARB')
    for var in range(2):
        if var == 1: a('K1_VARB:')
        RR = copy.deepcopy(R); RR.a = a; _st[0] = st_save
        main = tr2(0, var, 0) + tr2(0, var, 1)
        body = []
        for ks in range(32):
            b = BR + 8 * (ks & 1); x = XR + 4 * ks
            if ks == 15: body.append([W(vm=('P2_2', 'P2_3')), I('s_barrier')])
            body.append([W(ds='T2_%d_0' % ks), I('v_mfma_f32_32x32x16_bf16 %s, %s, %s, %s' % (acc(3), vr(b), vr(x), '0' if ks == 0 else acc(3)))])
            if ks < 31: body.append(tr2(ks + 1, var, 0))
            if var == 0: mf = I('v_mfma_f32_32x32x16_bf16 %s, %s, %s, %s' % (acc(4), vr(x), vr(b + 4), '0' if ks == 0 else acc(4)))
            else: mf = I('v_mfma_f32_32x32x16_bf16 %s, %s, %s, %s' % (acc(4), vr(b + 4), vr(x), '0' if ks == 0 else acc(4)))
            body.append([W(ds='T2_%d_1' % ks), mf])
            if ks < 31: body.append(tr2(ks + 1, var, 1))
            if (ks & 7) == 5: body.append(cs2(ks >> 3, var)[0])
            if (ks & 7) == 7: body.append(cs2(ks >> 3, var)[1])
        side = []
        for u in range(3): side += mean_fix(u, 'MF%d' % u)
        for u in range(3): side += g_epilogue(u, (48, u * 1024))
        merged = merge(body, side)
        flat = []
        for x in merged:
            if isinstance(x, list): flat += x
            else: flat.append(x)
        RR.run(main + flat)
        fin = stamp() + cs_publish((3, 4), CSA2) + [W(ds='ALL'), I('s_barrier')] + stamp()
        fin += mean_fix(3, 'MF3')
        if var == 0: fin += v_pre()
        fin += mean_fix(4, 'MF4', swap=(var == 0))
        fin += t_epilogue()
        if var == 0: fin += v_epilogue()
        else: fin += g_epilogue(4, (50, 0))
        fin += stamp() + ([I('s_waitcnt vmcnt(0)')] if STAMP else []) + stamp() + stamp_out(16 << 20)
        RR.run(fin)
        a('s_endpgm' if var == 0 else 'K1_END:\ns_endpgm')
    return a.finalize()

if __name__ == '__main__':
    print(len(build_k1().splitlines()))
```

```python
from asmlib import *
from sched import *
from k1 import QF, KF, VF, HF, OF, FLG, WS_RANGE, vr, f2u
import copy, os
STAMP = int(os.environ.get('STAMP', '0'))
FLAGPOS = int(os.environ.get('FLAGPOS', '21'))
_st = [0]
SB0 = 96
def stamp():
    if not STAMP: return []
    k = _st[0]; _st[0] += 1
    return [I('s_memtime s[96:97]'), I('s_waitcnt lgkmcnt(0)'), I('v_mov_b32 v%d, s96' % (240 + k))]
def stamp_out(base):
    if not STAMP: return []
    out = [I('s_lshl_b32 s54, s2, 3'), I('s_add_u32 s54, s54, s20'), I('s_lshl_b32 s54, s54, 7'), I('s_add_u32 s54, s54, %d' % base), I('v_mov_b32 v1, 0')]
    for k in range(16):
        out += [I('buffer_store_dword v%d, v1, s[16:19], s54 offen offset:%d' % (240 + k, 4 * k))]
    return out

RSZ = 17408
FLAG = 4 * RSZ
LDS_K2 = FLAG + 256
NEG_BIG = 0xf149f2ca
GA, GB, GACC = 16, 80, 96
AQ, AK, AV, SA, SB, CN, CT, AP, AO = 16, 24, 64, 144, 160, 176, 192, 208, 216
XRES = 232

def prologue(a):
    a('''
s_cmp_ge_u32 s2, 256
s_cbranch_scc1 K2_END
s_load_dwordx2 s[4:5], s[0:1], 0
s_load_dwordx2 s[8:9], s[0:1], 16
s_load_dwordx2 s[12:13], s[0:1], 48
s_load_dwordx4 s[24:27], s[0:1], 56
s_load_dwordx2 s[16:17], s[0:1], 72
v_mov_b32 v15, v0
v_lshrrev_b32 v1, 6, v0
v_and_b32 v0, 63, v0
v_readfirstlane_b32 s20, v1
s_and_b32 s36, s2, 7
s_lshr_b32 s37, s2, 3
s_lshl_b32 s21, s36, 2
s_lshr_b32 s38, s37, 3
s_add_u32 s21, s21, s38
s_and_b32 s22, s37, 7
v_lshlrev_b32 v14, 4, v0
v_lshrrev_b32 v1, 3, v15
v_and_b32 v2, 7, v15
v_lshlrev_b32 v13, 10, v1
v_lshl_add_u32 v13, v2, 4, v13
v_mul_u32_u24 v12, 272, v1
v_lshl_add_u32 v12, v2, 5, v12
s_lshl_b32 s23, s21, 16
s_lshl_b32 s36, s22, 7
s_add_u32 s23, s23, s36
v_mov_b32 v1, 0
v_mov_b32 v2, %d
ds_write_b32 v2, v1
s_waitcnt lgkmcnt(0)
s_mov_b32 s6, 0x200000
s_mov_b32 s7, 0x20000
s_mov_b32 s10, 0x80000
s_mov_b32 s11, 0x20000
s_mov_b32 s14, 1835008
s_mov_b32 s15, 0x20000
s_mov_b32 s18, %d
s_mov_b32 s19, 0x20000
s_mov_b32 s28, s24
s_mov_b32 s29, s25
s_mov_b32 s30, 0x200000
s_mov_b32 s31, 0x20000
s_barrier
''' % (FLAG, WS_RANGE))

def final_reduce(tagp):
    out = stamp() + [I('s_barrier')] + stamp()
    T = 96
    for g in range(4):
        for hlf in range(2):
            out.append(DS('ds_read_b128 %s, v12 offset:%d' % (vr(T + 8 * g + 4 * hlf), g * RSZ + 16 * hlf), tagp + 'R'))
    out.append(W(vm='XRES'))
    for i in range(4):
        out.append(I('v_lshlrev_b32 v%d, 16, v%d' % (64 + 2 * i, XRES + i)))
        out.append(I('v_and_b32 v%d, 0xffff0000, v%d' % (65 + 2 * i, XRES + i)))
    out.append(W(ds=tagp + 'R'))
    for i in range(8): out.append(I('v_add_f32 v%d, v%d, v%d' % (T + i, T + i, T + 8 + i)))
    for i in range(8): out.append(I('v_add_f32 v%d, v%d, v%d' % (T + 16 + i, T + 16 + i, T + 24 + i)))
    for i in range(8): out.append(I('v_add_f32 v%d, v%d, v%d' % (T + i, T + i, T + 16 + i)))
    for i in range(8): out.append(I('v_add_f32 v%d, v%d, v%d' % (T + i, T + i, 64 + i)))
    for i in range(4): out.append(I('v_cvt_pk_bf16_f32 v%d, v%d, v%d' % (72 + i, T + 2 * i, T + 2 * i + 1)))
    out.append(VM('buffer_store_dwordx4 v[72:75], v13, s[28:31], s23 offen', 'OUT'))
    out += stamp() + stamp_out(17 << 20)
    out.append(I('s_endpgm'))
    return out

def gemm(a):
    R = Resolver(a)
    txt = ('''
v_lshrrev_b32 v1, 3, v0
v_and_b32 v2, 7, v0
v_bfe_u32 v3, v0, 4, 1
v_lshlrev_b32 v3, 2, v3
v_xor_b32 v2, v2, v3
v_lshlrev_b32 v1, 10, v1
v_lshl_add_u32 v1, v2, 4, v1
v_lshrrev_b32 v2, 5, v0
v_bfe_u32 v3, v0, 2, 2
v_lshl_add_u32 v2, v2, 2, v3
v_lshlrev_b32 v2, 7, v2
v_lshrrev_b32 v3, 1, v3
v_lshl_add_u32 v2, v3, 6, v2
v_bfe_u32 v3, v0, 4, 1
v_lshl_add_u32 v2, v3, 5, v2
v_and_b32 v3, 3, v0
v_lshl_add_u32 v2, v3, 3, v2
s_mul_i32 s40, s20, %d
v_add_u32 v2, s40, v2
v_xor_b32 v3, 64, v2
s_mul_i32 s41, s21, 224
s_mul_i32 s36, s20, 28
s_add_u32 s41, s41, s36
s_lshl_b32 s41, s41, 10
s_add_u32 s41, s41, %d
s_add_u32 s42, s41, 114688
s_mul_i32 s43, s20, 458752
s_lshl_b32 s36, s22, 7
s_add_u32 s43, s43, s36
s_lshl_b32 s44, s21, 6
s_lshl_b32 s37, s20, 3
s_add_u32 s44, s44, s37
s_lshl_b32 s44, s44, 10
s_add_u32 s44, s44, %d
s_add_u32 s45, s44, 32768
s_lshl_b32 s46, s20, 17
s_add_u32 s46, s46, s36
v_mov_b32 v4, %d
''' % (RSZ, HF, OF, FLAG))
    a(txt)
    def LA(s):
        out = []
        for t in range(2):
            dst = vr(GA + 8 * (s & 7) + 4 * t)
            if s < 28:
                out.append(I('s_add_u32 s50, s%d, %d' % (41 + t, s * 1024)))
                out.append(VM('buffer_load_dwordx4 %s, v14, s[16:19], s50 offen' % dst, 'A%d' % s))
            else:
                out.append(I('s_add_u32 s50, s%d, %d' % (44 + t, (s - 28) * 1024)))
                out.append(VM('buffer_load_dwordx4 %s, v14, s[16:19], s50 offen sc1' % dst, 'A%d' % s))
        return out
    def LW(s):
        out = []
        for i in range(2):
            if s < 28:
                out.append(I('s_add_u32 s51, s43, %d' % ((16 * s + 8 * i) * 1024))); srd = 's[12:15]'
            else:
                out.append(I('s_add_u32 s51, s46, %d' % ((16 * (s - 28) + 8 * i) * 1024))); srd = 's[8:11]'
            out.append(I('s_add_u32 m0, s40, %d' % ((s & 7) * 2048 + i * 1024)))
            out.append(VM('buffer_load_dwordx4 v1, %s, s51 offen lds' % srd, 'W%d' % s))
        return out
    def TR(s):
        out = [W(vm='W%d' % s)]
        for cti in range(2):
            for sec in range(2):
                out.append(DS('ds_read_b64_tr_b16 %s, v%d offset:%d' % (vr(GB + 8 * (s & 1) + 4 * cti + 2 * sec, 2), 2 + cti, (s & 7) * 2048 + sec * 1024), 'T%d' % s))
        return out
    _st[0] = 0
    it = stamp()
    for s in range(8): it += LW(s) + LA(s)
    it.append(VM('buffer_load_dwordx4 %s, v13, s[4:7], s23 offen' % vr(XRES), 'XRES'))
    it += stamp() + TR(0)
    pend = []
    for s in range(36):
        if s in (4, 12, 20, 28): it += stamp()
        it.append(W(vm='A%d' % s, ds='T%d' % s))
        mm = []
        for t in range(2):
            for cti in range(2):
                ac = vr(GACC + 16 * (2 * t + cti), 16)
                mm.append(I('v_mfma_f32_32x32x16_bf16 %s, %s, %s, %s' % (ac, vr(GB + 8 * (s & 1) + 4 * cti), vr(GA + 8 * (s & 7) + 4 * t), '0' if s == 0 else ac)))
        it += mm[:2]
        if s < 35: it += TR(s + 1)
        it += mm[2:]
        n = s + 8
        if n < 36: it += LW(n)
        n = s + 7
        if 8 <= n < 36:
            if n < 28: it += LA(n)
            elif s < FLAGPOS: pend.append(n)
            else:
                if s == FLAGPOS:
                    it += [I('K2_FW:'), DS('ds_read_b32 v5, v4', 'FL'), W(ds='ALL'), I('v_readfirstlane_b32 s52, v5'),
                           I('s_cmp_lg_u32 s52, 0'), I('s_cbranch_scc1 K2_FOK'), I('s_sleep 1'), I('s_branch K2_FW'), I('K2_FOK:')]
                    it += stamp()
                    for p in pend: it += LA(p)
                it += LA(n)
    it += [I('v_and_b32 v5, 31, v0'), I('v_mul_u32_u24 v5, 272, v5'), I('v_lshrrev_b32 v6, 5, v0'), I('v_lshl_add_u32 v5, v6, 4, v5'), I('v_add_u32 v5, s40, v5')]
    for t in range(2):
        for cti in range(2):
            for q in range(4):
                it.append(DS('ds_write_b128 v5, %s offset:%d' % (vr(GACC + 16 * (2 * t + cti) + 4 * q), t * 32 * 272 + cti * 128 + q * 32), 'RW'))
    it.append(W(ds='ALL'))
    it += final_reduce('G')
    R.run(it)

_l = [0]
def lab(p):
    _l[0] += 1
    return 'K2_%s%d' % (p, _l[0])

def attn(a):
    R = Resolver(a)
    a('''
s_setprio 3
s_sub_u32 s36, s20, 4
s_lshl_b32 s40, s22, 2
s_add_u32 s40, s40, s36
s_lshl_b32 s41, s21, 1
s_sub_u32 s41, s41, 8
s_lshl_b32 s42, s40, 16
v_and_b32 v1, 15, v0
v_lshrrev_b32 v2, 5, v0
v_lshlrev_b32 v1, 4, v1
v_lshl_add_u32 v1, v2, 8, v1
v_and_b32 v3, 31, v0
v_lshlrev_b32 v2, 2, v2
v_sub_u32 v3, v3, v2
v_mov_b32 v4, 0x%08x
''' % NEG_BIG)
    _st[0] = 0
    it = stamp()
    it += [I('s_lshl_b32 s36, s21, 11'), I('s_add_u32 s36, s36, s42')]
    it.append(VM('buffer_load_dwordx4 %s, v14, s[16:19], s36 offen' % vr(AQ), 'Q'))
    it.append(VM('buffer_load_dwordx4 %s, v14, s[16:19], s36 offen offset:1024' % vr(AQ + 4), 'Q'))
    for jj in range(10):
        it += [I('s_add_i32 s36, s41, %d' % jj), I('s_max_i32 s36, s36, 0'), I('s_lshl_b32 s36, s36, 10'), I('s_add_u32 s%d, s36, s42' % (44 + jj)),
               I('s_add_u32 s36, s%d, %d' % (44 + jj, KF))]
        it.append(VM('buffer_load_dwordx4 %s, v14, s[16:19], s36 offen' % vr(AK + 4 * jj), 'K%d' % jj))
    for r in range(80): it.append(I('v_mov_b32 v%d, 0x3f803f80' % (AV + r)))
    it += [I('s_mov_b32 s56, 0xffff'), I('s_mov_b32 s57, 0xffff'), I('s_mov_b64 exec, s[56:57]')]
    for jj in range(10):
        it.append(I('s_add_u32 s36, s%d, %d' % (44 + jj, VF)))
        for hf in range(2):
            it.append(VM('buffer_load_dwordx4 %s, v1, s[16:19], s36 offen offset:%d' % (vr(AV + 8 * jj + 4 * hf), hf * 512), 'V%d' % jj))
    it.append(I('s_mov_b64 exec, -1'))
    it.append(VM('buffer_load_dwordx4 %s, v13, s[4:7], s23 offen' % vr(XRES), 'XRES'))
    for r in range(16):
        it.append(I('v_cmp_ge_i32 s[%d:%d], v3, %d' % (64 + 2 * r, 65 + 2 * r, 8 * (r >> 2) + (r & 3))))
    def smfma(qi, jp, buf, cmode):
        jj = qi + jp
        out = [W(vm=('Q', 'K%d' % jj))]
        pre = []
        if jp == 8 or jp == 0:
            val = '0' if cmode == 'A' else 'v%d' % CN
            for r in range(16):
                m = 's[%d:%d]' % (64 + 2 * r, 65 + 2 * r)
                if jp == 8: pre.append(I('v_cndmask_b32 v%d, v4, %s, %s' % (CT + r, val, m)))
                else: pre.append(I('v_cndmask_b32 v%d, %s, v4, %s' % (CT + r, val, m)))
            c = vr(CT, 16)
        else:
            c = '0' if cmode == 'A' else vr(CN, 16)
        mf = I('v_mfma_f32_32x32x16_bf16 %s, %s, %s, %s' % (vr(buf, 16), vr(AK + 4 * jj), vr(AQ + 4 * qi), c))
        out += pre
        if jp == 8:
            out.append(mf)
        else:
            L1, L2 = lab('I'), lab('J')
            out += [I('s_add_i32 s36, s41, %d' % jj), I('s_cmp_lt_i32 s36, 0'), I('s_cbranch_scc1 %s' % L1), mf, I('s_branch %s' % L2), I(L1 + ':')]
            out += [I('s_nop 15')]
            out += [I('v_mov_b32 v%d, v4' % (buf + r)) for r in range(16)]
            out += [I(L2 + ':')]
        return out
    for qi in range(2):
        bufs = (SA, SB)
        it += stamp() + smfma(qi, 0, SA, 'A')
        it.append(I('v_mov_b32 v5, v4'))
        for jp in range(9):
            if jp < 8: it += smfma(qi, jp + 1, bufs[(jp + 1) & 1], 'A')
            b = bufs[jp & 1]
            for i in range(8): it.append(I('v_max3_f32 v5, v%d, v%d, v5' % (b + 2 * i, b + 2 * i + 1)))
        it += [I('v_mov_b32 v6, v5'), I('v_permlane32_swap_b32 v5, v6'), I('v_max_f32 v5, v5, v6'), I('v_sub_f32 v%d, 0, v5' % CN)]
        for r in range(1, 16): it.append(I('v_mov_b32 v%d, v%d' % (CN + r, CN)))
        it += stamp() + smfma(qi, 0, SA, 'B')
        for jp in range(9):
            if jp < 8: it += smfma(qi, jp + 1, bufs[(jp + 1) & 1], 'B')
            b = bufs[jp & 1]; jj = qi + jp
            for r in range(16): it.append(I('v_exp_f32 v%d, v%d' % (b + r, b + r)))
            for p in range(8): it.append(I('v_cvt_pk_bf16_f32 v%d, v%d, v%d' % (AP + p, b + 2 * p, b + 2 * p + 1)))
            it.append(W(vm='V%d' % jj))
            for hf in range(2):
                it.append(I('v_mfma_f32_32x32x16_bf16 %s, %s, %s, %s' % (vr(AO, 16), vr(AV + 8 * jj + 4 * hf), vr(AP + 4 * hf), '0' if (jp == 0 and hf == 0) else vr(AO, 16))))
        it.append(I('v_rcp_f32 v6, v%d' % (AO + 8)))
        for r in range(8): it.append(I('v_mul_f32 v%d, v%d, v6' % (AO + r, AO + r)))
        for p in range(4): it.append(I('v_cvt_pk_bf16_f32 v%d, v%d, v%d' % (8 + p, AO + 2 * p, AO + 2 * p + 1)))
        it += [I('s_lshl_b32 s36, s21, 6'), I('s_add_u32 s36, s36, s40'), I('s_lshl_b32 s36, s36, 10'), I('s_add_u32 s36, s36, %d' % (OF + qi * 32768))]
        it.append(VM('buffer_store_dwordx4 v[8:11], v14, s[16:19], s36 offen sc1', 'OST'))
    it += stamp() + [W(vm='ALL')] + stamp()
    it += [I('s_lshl_b32 s37, s21, 7'), I('s_add_u32 s37, s37, %d' % FLG), I('s_lshl_b32 s36, s40, 2'), I('s_and_b32 s36, s36, 127'), I('v_mov_b32 v5, s36'), I('v_mov_b32 v6, 1'),
           I('s_mov_b64 exec, 1'), VM('buffer_store_dword v6, v5, s[16:19], s37 offen sc1', 'AT'), I('s_mov_b64 exec, -1'),
           I('s_cmp_lg_u32 s20, 4'), I('s_cbranch_scc1 K2_AFIN'),
           I('v_and_b32 v5, 31, v0'), I('v_lshlrev_b32 v5, 2, v5'),
           I('K2_POLL:'), VM('buffer_load_dword v7, v5, s[16:19], s37 offen sc1', 'PL'), W(vm='ALL'), I('v_cmp_ne_u32 vcc, 0, v7'),
           I('s_cmp_eq_u64 vcc, -1'), I('s_cbranch_scc1 K2_PDONE'), I('s_sleep 1'), I('s_branch K2_POLL'), I('K2_PDONE:'),
           I('v_mov_b32 v5, %d' % FLAG), DS('ds_write_b32 v5, v6', 'FW'), W(ds='ALL'), I('K2_AFIN:')]
    it += final_reduce('A')
    R.run(it)

def build_k2():
    a = Asm()
    prologue(a)
    a('s_cmp_ge_u32 s20, 4\ns_cbranch_scc1 K2_ATT')
    gemm(a)
    a('K2_ATT:')
    attn(a)
    a('K2_END:\ns_endpgm')
    return a.finalize()

if __name__ == '__main__':
    print(len(build_k2().splitlines()))
```

```python
from asmlib import *
from sched import *
import os, struct, copy

QF, KF, VF, HF, OF, FLG = 0, 2 << 20, 4 << 20, 6 << 20, 14 << 20, 20 << 20
WS_RANGE = 32 << 20
STAMP = int(os.environ.get('STAMP', '0'))
EXP = os.environ.get('EXP', '')
NSPREAD = int(os.environ.get('NSPREAD', '20'))
_st = [0]
def stamp():
    if not STAMP: return []
    k = _st[0]; _st[0] += 1
    return [I('s_memtime s[%d:%d]' % (64 + 2 * k, 65 + 2 * k))]
def stamp_out(base):
    if not STAMP: return []
    out = [I('s_waitcnt lgkmcnt(0)'), I('s_lshl_b32 s54, s2, 3'), I('s_add_u32 s54, s54, s20'), I('s_lshl_b32 s54, s54, 7'), I('s_add_u32 s54, s54, %d' % base), I('v_mov_b32 v1, 0')]
    for k in range(16):
        out += [I('v_mov_b32 v2, s%d' % (64 + 2 * k)), I('buffer_store_dword v2, v1, s[16:19], s54 offen offset:%d' % (4 * k))]
    return out

CSF, ST, XR0, P1G, P1U = 0, 5120, 6144, 71680, 108672
LDS_K1 = 145536
SLOT = 12288
XR, ACC, BR = 128, 48, 24
K0 = -2.0 * 0.7978845608028654 * 1.4426950408889634
K1C = K0 * 0.044715
def f2u(f): return struct.unpack('<I', struct.pack('<f', f))[0]
def vr(b, n=4): return 'v[%d:%d]' % (b, b + n - 1)
def acc(u): return vr(ACC + 16 * u, 16)
SEL1, RS, CSA1, CT1 = 96, 100, 104, 116
SQA, SQB = 15, 16
SEL2, CSA2, CT2 = 40, 128, 136
MF, C0, C1, IRS2, RSTD, CF = 4, 15, 16, 17, 18, 8
def t_base(d): return (P1G + SLOT, P1G + 2 * SLOT, P1G, XR0)[d]
def x_base(d): return (P1U + SLOT, P1U + 2 * SLOT, P1U, XR0 + 8192)[d]

def prologue(a):
    a('''
s_cmp_ge_u32 s2, 256
s_cbranch_scc1 K1_END
s_load_dwordx2 s[4:5], s[0:1], 0
s_load_dwordx2 s[28:29], s[0:1], 8
s_load_dwordx4 s[32:35], s[0:1], 32
s_load_dwordx2 s[16:17], s[0:1], 72
s_load_dwordx2 s[60:61], s[0:1], 48
s_load_dwordx2 s[96:97], s[0:1], 16
v_lshrrev_b32 v1, 6, v0
v_and_b32 v0, 63, v0
v_readfirstlane_b32 s20, v1
s_and_b32 s36, s2, 7
s_lshr_b32 s37, s2, 3
s_and_b32 s38, s36, 1
s_lshl_b32 s38, s38, 2
s_and_b32 s39, s37, 3
s_add_u32 s21, s38, s39
s_lshr_b32 s38, s36, 1
s_lshl_b32 s38, s38, 3
s_lshr_b32 s39, s37, 2
s_add_u32 s22, s38, s39
s_lshr_b32 s30, s22, 1
s_and_b32 s23, s22, 1
s_mul_i32 s31, s30, 112
s_mul_i32 s38, s23, 48
s_add_u32 s31, s31, s38
s_lshl_b32 s21, s21, 3
s_add_u32 s21, s21, s20
s_lshl_b32 s24, s21, 15
s_add_u32 s25, s24, 8192
s_add_u32 s26, s24, 16384
s_add_u32 s27, s24, 24576
s_lshl_b32 s47, s20, 13
s_add_u32 s47, s47, %d
''' % XR0)
    a('''
v_lshrrev_b32 v2, 3, v0
v_and_b32 v3, 7, v0
v_lshrrev_b32 v4, 4, v0
v_xor_b32 v3, v3, v4
v_lshlrev_b32 v3, 4, v3
v_lshl_add_u32 v2, v2, 10, v3
v_xor_b32 v3, 64, v2
v_and_b32 v4, 31, v0
v_lshrrev_b32 v5, 5, v0
v_lshrrev_b32 v6, 1, v4
v_and_b32 v6, 7, v6
v_xor_b32 v6, v6, v5
v_lshlrev_b32 v6, 4, v6
v_lshl_add_u32 v4, v4, 7, v6
v_add_u32 v4, s47, v4
v_xor_b32 v5, 32, v4
v_xor_b32 v6, 64, v4
v_xor_b32 v7, 0x60, v4
''')
    a('''
v_bfe_u32 v28, v0, 4, 1
v_lshrrev_b32 v29, 5, v0
v_lshlrev_b32 v29, 3, v29
v_bfe_u32 v30, v0, 2, 2
v_add_u32 v29, v29, v30
v_and_b32 v30, 3, v0
v_lshlrev_b32 v30, 3, v30
v_mul_u32_u24 v8, %d, v28
v_mul_u32_u24 v31, 96, v29
v_add3_u32 v8, v8, v31, v30
v_add_u32 v8, %d, v8
s_mul_i32 s36, s20, 1536
v_add_u32 v1, s36, v8
v_lshlrev_b32 v13, 6, v29
v_lshl_add_u32 v13, v28, 5, v13
v_add_u32 v13, v13, v30
v_lshlrev_b32 v22, 4, v0
''' % (P1U - P1G, P1G))
    for i in range(3):
        a('''
v_add_u32 v31, %d, v0
v_mul_u32_u24 v32, 43691, v31
v_lshrrev_b32 v32, 18, v32
v_mul_u32_u24 v33, 6, v32
v_sub_u32 v33, v31, v33
v_mul_u32_u24 v32, 3584, v32
v_lshl_add_u32 v%d, v33, 4, v32
''' % (64 * i, 9 + i))
    a('''
v_and_b32 v31, 15, v0
v_cmp_eq_u32 vcc, v31, v28
v_mov_b32 v96, 0x3f803f80
v_cndmask_b32 v96, 0, v96, vcc
v_mov_b32 v97, v96
v_mov_b32 v98, v96
v_mov_b32 v99, v96
v_mov_b32 v15, 0
v_mov_b32 v16, 0
s_waitcnt lgkmcnt(0)
s_mov_b32 s6, 0x200000
s_mov_b32 s7, 0x20000
s_mov_b32 s18, %d
s_mov_b32 s19, 0x20000
s_cmp_lt_u32 s20, 4
s_cselect_b32 s8, s32, s34
s_cselect_b32 s9, s33, s35
s_mov_b32 s10, 1835008
s_mov_b32 s11, 0x20000
s_mov_b32 s41, %d
s_cselect_b32 s41, s41, %d
s_and_b32 s36, s20, 3
s_mul_i32 s40, s36, 114688
s_lshl_b32 s37, s31, 1
s_add_u32 s40, s40, s37
s_mul_i32 s37, s36, 3072
s_add_u32 s41, s41, s37
''' % (WS_RANGE, P1G, P1U))

def prologue2(a):
    a('''
s_mov_b32 s15, 0x20000
s_cmp_ge_u32 s20, 4
s_cselect_b32 s46, 1, 0
s_cmp_lt_u32 s20, 4
s_cbranch_scc1 K1_P2_QKV
s_cmp_eq_u32 s23, 0
s_cbranch_scc1 K1_P2_QKV
s_cmp_lt_u32 s20, 6
s_cselect_b32 s12, s32, s34
s_cselect_b32 s13, s33, s35
s_cselect_b32 s37, 0, 4224
s_mov_b32 s14, 1835008
v_lshrrev_b32 v31, 1, v0
v_mul_u32_u24 v31, 3584, v31
v_and_b32 v12, 1, v0
v_lshl_add_u32 v12, v12, 4, v31
s_and_b32 s36, s20, 1
s_mul_i32 s42, s36, 229376
s_mul_i32 s38, s30, 224
s_add_u32 s42, s42, s38
s_add_u32 s42, s42, 192
s_mov_b32 s43, 458752
s_mov_b32 s44, 114688
s_lshl_b32 s36, s36, 11
s_add_u32 s45, s37, s36
s_branch K1_P2_DONE
K1_P2_QKV:
s_mov_b32 s12, s28
s_mov_b32 s13, s29
s_mov_b32 s14, 1572864
v_lshrrev_b32 v31, 2, v0
v_mul_u32_u24 v31, 3072, v31
v_and_b32 v12, 3, v0
v_lshl_add_u32 v12, v12, 4, v31
s_and_b32 s36, s20, 3
s_mul_i32 s42, s36, 98304
s_lshl_b32 s37, s22, 6
s_lshl_b32 s38, s30, 6
s_add_u32 s38, s38, 2048
s_lshl_b32 s45, s36, 11
s_cmp_lt_u32 s20, 4
s_cselect_b32 s37, s37, s38
s_add_u32 s42, s42, s37
s_mov_b32 s43, 393216
s_mov_b32 s44, 49152
K1_P2_DONE:
s_cmp_eq_u32 s23, 0
s_cbranch_scc1 K1_XA
v_mul_u32_u24 v14, 4224, v28
v_lshl_add_u32 v14, v29, 5, v14
v_add_u32 v14, v14, v30
s_branch K1_XB
K1_XA:
v_mov_b32 v14, v13
K1_XB:
v_add_u32 v23, %d, v14
v_add_u32 v14, %d, v14
v_add_u32 v21, %d, v13
v_add_u32 v13, %d, v13
''' % (XR0 + 8192, P1U, XR0, P1G))
    a('''
s_mul_i32 s48, s21, 112
s_lshr_b32 s36, s31, 4
s_add_u32 s48, s48, s36
s_lshl_b32 s48, s48, 10
s_add_u32 s48, s48, %d
s_and_b32 s36, s22, 15
s_lshl_b32 s36, s36, 7
s_add_u32 s36, s36, s21
s_lshl_b32 s36, s36, 10
s_cmp_lt_u32 s22, 16
s_cselect_b32 s37, %d, %d
s_cselect_b32 s51, 0x%08x, 0x3f800000
s_add_u32 s49, s36, s37
s_lshl_b32 s36, s30, 7
s_add_u32 s36, s36, s21
s_lshl_b32 s36, s36, 10
s_add_u32 s36, s36, %d
s_add_u32 s37, s48, 3072
s_cmp_eq_u32 s23, 0
s_cselect_b32 s50, s36, s37
''' % (HF, QF, KF, f2u(0.25 * 1.4426950408889634), VF))

def w1_dma(d):
    out = [I('s_add_u32 s55, s40, %d' % (d * 128 * 3584))]
    for i in range(3):
        out.append(I('s_add_u32 m0, s41, %d' % ((d % 3) * SLOT + i * 1024)))
        out.append(VM('buffer_load_dwordx4 v%d, s[8:11], s55 offen lds' % (9 + i), 'W1_%d' % d))
    return out

def p2_dma(d):
    out = [I('s_mul_i32 s52, s43, %d' % d), I('s_add_u32 s52, s52, s42'), I('s_add_u32 s53, s52, s44'),
           I('s_cmp_eq_u32 s46, 0'), I('s_mov_b32 s56, %d' % t_base(d)), I('s_cselect_b32 s56, s56, %d' % x_base(d)), I('s_add_u32 s56, s56, s45')]
    for i in range(2):
        out.append(I('s_add_u32 m0, s56, %d' % (i * 1024)))
        out.append(VM('buffer_load_dwordx4 v12, s[12:15], s%d offen lds' % (52 + i), 'P2_%d' % d))
    return out

def x_dma(c):
    out = []
    for j in range(4):
        out.append(I('s_add_u32 m0, s47, %d' % ((c & 1) * 4096 + j * 1024 - c * 128)))
        out.append(VM('buffer_load_dwordx4 v%d, s[4:7], s%d offen offset:%d lds' % (2 + (j & 1), 24 + j, c * 128), 'X%d' % c))
    return out

def stage(c):
    out = [W(vm='X%d' % c)]
    for s in range(4):
        out.append(DS('ds_read_b128 %s, v%d offset:%d' % (vr(XR + 16 * c + 4 * s), 4 + s, (c & 1) * 4096), 'XF%d' % c))
    return out

B1 = (24, 36)
def tr1(ks, units=(0, 1, 2)):
    out = []
    d, k = ks >> 3, ks & 7
    for u in units:
        b = B1[ks & 1] + 4 * u
        for sec in range(2):
            out.append(DS('ds_read_b64_tr_b16 %s, v8 offset:%d' % (vr(b + 2 * sec, 2), (d % 3) * SLOT + k * 1536 + u * 32 + sec * 384), 'T1_%d_%d' % (ks, u)))
    return out

def cs1_read(d):
    return [DS('ds_read_b64_tr_b16 %s, v1 offset:%d' % (vr(CT1 + 4 * u + 2 * sec, 2), (d % 3) * SLOT + u * 32 + sec * 384), 'C1_%d' % d) for u in range(3) for sec in range(2)]
def cs1_mma(d):
    return [W(ds='C1_%d' % d)] + [I('v_mfma_f32_16x16x32_bf16 %s, %s, %s, %s' % (vr(CSA1 + 4 * u), vr(SEL1), vr(CT1 + 4 * u), '0' if d == 0 else vr(CSA1 + 4 * u))) for u in range(3)]

def tr2_addr(d, k, var, unit, sec):
    if unit == 0:
        reg, base = (13, t_base(d) - P1G) if d < 3 else (21, 0)
        return reg, base + k * 1024 + sec * 256
    reg, base = (14, x_base(d) - P1U) if d < 3 else (23, 0)
    return reg, base + (k * 1024 + sec * 256 if var == 0 else k * 512 + sec * 128)
def tr2(ks, var, unit):
    d, k = ks >> 3, ks & 7
    b = BR + 8 * (ks & 1) + 4 * unit
    out = []
    for sec in range(2):
        reg, off = tr2_addr(d, k, var, unit, sec)
        out.append(DS('ds_read_b64_tr_b16 %s, v%d offset:%d' % (vr(b + 2 * sec, 2), reg, off), 'T2_%d_%d' % (ks, unit)))
    return out
def cs2(d, var):
    out = []
    for unit in range(2):
        for sec in range(2):
            reg, off = tr2_addr(d, 0, var, unit, sec)
            if sec == 0: out.append(I('v_add_u32 v%d, s%d, v%d' % (19 + unit, 57 + (unit if var else 0), reg)))
            out.append(DS('ds_read_b64_tr_b16 %s, v%d offset:%d' % (vr(CT2 + 4 * unit + 2 * sec, 2), 19 + unit, off), 'C2_%d' % d))
    mm = [W(ds='C2_%d' % d)] + [I('v_mfma_f32_16x16x32_bf16 %s, %s, %s, %s' % (vr(CSA2 + 4 * u), vr(SEL2), vr(CT2 + 4 * u), '0' if d == 0 else vr(CSA2 + 4 * u))) for u in range(2)]
    return out, mm

def cs_publish(units, csa, tmp=(1, 2, 3)):
    ta, t2, t3 = tmp
    out = [I('s_lshr_b32 s59, s20, 2'), I('s_lshl_b32 s59, s59, 9'), I('s_and_b32 s56, s20, 3'), I('s_lshl_b32 s56, s56, 2'), I('s_add_u32 s59, s59, s56'),
           I('v_add_u32 v%d, s59, v22' % ta), I('s_mov_b64 exec, 0xffff')]
    for n, u in enumerate(units):
        for k in range(2):
            c = csa + 4 * n + k
            out += [I('v_cvt_pk_bf16_f32 v%d, v%d, v%d' % (t2, c, c)), I('v_lshlrev_b32 v%d, 16, v%d' % (t2, t2)), I('v_sub_f32 v%d, v%d, v%d' % (t3, c, t2)),
                    I('v_cvt_pk_bf16_f32 v%d, v%d, v%d' % (c, c, t3)),
                    DS('ds_write_b32 v%d, v%d offset:%d' % (ta, c, CSF + u * 1024 + 256 * k), 'CSA')]
    out += [I('s_mov_b64 exec, -1')]
    return out

def mean_fix(u, tag, swap=False):
    A = [DS('ds_read_b128 %s, v22 offset:%d' % (vr(CF), CSF + u * 1024), tag), W(ds=tag)]
    if swap: A.append(I('v_mfma_f32_32x32x16_bf16 %s, %s, %s, %s' % (acc(u), vr(MF), vr(CF), acc(u))))
    else: A.append(I('v_mfma_f32_32x32x16_bf16 %s, %s, %s, %s' % (acc(u), vr(CF), vr(MF), acc(u))))
    return A

def g_epilogue(u, soff_expr, tmp=(1, 2, 3, 12)):
    A = ACC + 16 * u
    out = []
    for q in range(2):
        g = [A + 4 * q + i for i in range(4)]
        uu = [A + 8 + 4 * q + i for i in range(4)]
        for i in range(4): out.append(I('v_mul_f32 v%d, v%d, v%d' % (tmp[i], g[i], g[i])))
        for i in range(4): out.append(I('v_fma_f32 v%d, v%d, v%d, v%d' % (tmp[i], tmp[i], C1, C0)))
        for i in range(4): out.append(I('v_mul_f32 v%d, v%d, v%d' % (tmp[i], tmp[i], g[i])))
        for i in range(4): out.append(I('v_exp_f32 v%d, v%d' % (tmp[i], tmp[i])))
        for i in range(4): out.append(I('v_mul_f32 v%d, v%d, v%d' % (g[i], g[i], uu[i])))
        for i in range(4): out.append(I('v_fma_f32 v%d, v%d, v%d, v%d' % (tmp[i], tmp[i], IRS2, IRS2)))
        for i in range(4): out.append(I('v_rcp_f32 v%d, v%d' % (tmp[i], tmp[i])))
        for i in range(4): out.append(I('v_mul_f32 v%d, v%d, v%d' % (g[i], g[i], tmp[i])))
        out.append(I('v_cvt_pk_bf16_f32 v%d, v%d, v%d' % (A + 8 + 2 * q, g[0], g[1])))
        out.append(I('v_cvt_pk_bf16_f32 v%d, v%d, v%d' % (A + 8 + 2 * q + 1, g[2], g[3])))
    sreg, add = soff_expr
    out.append(I('s_add_u32 s54, s%d, %d' % (sreg, add)))
    out.append(VM('buffer_store_dwordx4 %s, v22, s[16:19], s54 offen' % vr(A + 8), 'ST'))
    return out

def t_epilogue():
    A = ACC + 48
    o = XR + 32
    out = [I('v_mul_f32 v1, s51, v%d' % RSTD)]
    for r in range(16): out.append(I('v_mul_f32 v%d, v%d, v1' % (A + r, A + r)))
    for p in range(8): out.append(I('v_cvt_pk_bf16_f32 v%d, v%d, v%d' % (o + p, A + 2 * p, A + 2 * p + 1)))
    out.append(I('s_add_u32 s54, s49, 65536'))
    out.append(VM('buffer_store_dwordx4 %s, v22, s[16:19], s49 offen' % vr(o), 'ST'))
    out.append(VM('buffer_store_dwordx4 %s, v22, s[16:19], s54 offen' % vr(o + 4), 'ST'))
    return out

def v_pre():
    rs = XR + 48
    out = [I('v_lshrrev_b32 v19, 5, v0'), I('v_lshlrev_b32 v20, 4, v19'), I('s_lshl_b32 s59, s20, 7'), I('v_add_u32 v20, s59, v20')]
    for q in range(4):
        out.append(DS('ds_read_b128 %s, v20 offset:%d' % (vr(rs + 4 * q), ST + q * 32), 'VE'))
    out += [I('v_bfe_u32 v152, v0, 4, 1'), I('v_lshlrev_b32 v152, 16, v152'), I('v_lshl_add_u32 v152, v19, 8, v152'), I('v_and_b32 v19, 15, v0'), I('v_lshl_add_u32 v152, v19, 4, v152')]
    return out
def v_epilogue():
    A = ACC + 64
    rs, o = XR + 48, XR + 64
    out = [W(ds='VE')]
    for r in range(16): out.append(I('v_mul_f32 v%d, v%d, v%d' % (A + r, A + r, rs + r)))
    for p in range(8): out.append(I('v_cvt_pk_bf16_f32 v%d, v%d, v%d' % (o + p, A + 2 * p, A + 2 * p + 1)))
    out.append(VM('buffer_store_dwordx4 %s, v152, s[16:19], s50 offen' % vr(o), 'ST'))
    out.append(VM('buffer_store_dwordx4 %s, v152, s[16:19], s50 offen offset:512' % vr(o + 4), 'ST'))
    return out

def rne_bf16(dst, src):
    return [I('v_cvt_pk_bf16_f32 v%d, v%d, v%d' % (dst, src, src)), I('v_lshlrev_b32 v%d, 16, v%d' % (dst, dst))]

def stats_final():
    out = [I('v_and_b32 v19, 15, v0'), I('v_lshlrev_b32 v19, 2, v19'),
           DS('ds_bpermute_b32 v2, v19, v%d' % RS, 'BP'), DS('ds_bpermute_b32 v3, v19, v%d' % (RS + 1), 'BP'),
           I('v_add_f32 v16, v15, v16'), I('v_mov_b32 v17, v16'), I('v_permlane32_swap_b32 v16, v17'), I('v_add_f32 v16, v16, v17'),
           I('v_and_b32 v19, 16, v0'), I('v_cmp_ne_u32 vcc, 0, v19'), W(ds='BP'), I('v_cndmask_b32 v15, v2, v3, vcc'),
           I('v_mul_f32 v15, 0x3b000000, v15'), I('v_mul_f32 v16, 0x3b000000, v16'),
           I('v_fma_f32 v16, -v15, v15, v16'), I('v_max_f32 v16, 0, v16')]
    out += rne_bf16(16, 16)
    out += [I('v_add_f32 v16, 0x%08x, v16' % f2u(1e-5))]
    out += rne_bf16(16, 16)
    out += [I('v_sqrt_f32 v16, v16')]
    out += rne_bf16(16, 16)
    out += [I('v_sub_f32 v15, 0, v15'), I('v_cvt_pk_bf16_f32 v%d, v15, v15' % MF),
            I('v_mov_b32 v%d, v%d' % (MF + 1, MF)), I('v_mov_b32 v%d, v%d' % (MF + 2, MF)), I('v_mov_b32 v%d, v%d' % (MF + 3, MF)),
            I('v_rcp_f32 v%d, v16' % RSTD), I('v_mul_f32 v%d, v16, v16' % IRS2),
            I('v_mul_f32 v%d, 0x%08x, v%d' % (C0, f2u(K0), RSTD)), I('v_mul_f32 v19, v%d, v%d' % (RSTD, RSTD)),
            I('v_mul_f32 v19, v19, v%d' % RSTD), I('v_mul_f32 v%d, 0x%08x, v19' % (C1, f2u(K1C)))]
    out += [I('v_and_b32 v19, 31, v0'), I('v_lshlrev_b32 v19, 2, v19'), I('s_lshl_b32 s54, s20, 7'), I('v_add_u32 v19, s54, v19'),
            DS('ds_write_b32 v19, v%d offset:%d' % (RSTD, ST), 'STW')]
    return out

def groups(items):
    g, cur = [], []
    for x in items:
        cur.append(x)
        if x.q == 'vm': g.append(cur); cur = []
    assert not cur
    return g

def build_k1():
    a = Asm()
    prologue(a)
    R = Resolver(a)
    pre = ([I('s_memrealtime s[92:93]')] if STAMP else []) + stamp() + w1_dma(0) + x_dma(0) + x_dma(1)
    R.run(pre)
    prologue2(a)
    pre = [I('s_or_b32 s52, s2, s20'), I('s_cmp_lg_u32 s52, 0'), I('s_cbranch_scc1 K1_NOZ'),
           I('v_mov_b32 v32, 0'), I('v_mov_b32 v33, 0'), I('v_mov_b32 v34, 0'), I('v_mov_b32 v35, 0'), I('s_mov_b32 s52, %d' % FLG)]
    pre += [I('buffer_store_dwordx4 v[32:35], v22, s[16:19], s52 offen offset:%d' % (1024 * i)) for i in range(4)]
    pre += [I('s_waitcnt vmcnt(0)'), I('K1_NOZ:')]
    pre += stamp() + [W(vm='W1_0'), I('s_barrier')] + stamp()
    pre += stage(0) + tr1(0)
    R.run(pre)
    stats_final_items = stats_final()
    for ks in range(32):
        c, d = ks >> 2, ks >> 3
        it = []
        b = B1[ks & 1]; x = XR + 4 * ks
        vmg = []
        if (ks & 7) == 7 and ks < 31:
            it += cs1_mma(d)
            it += stamp() + [W(vm='W1_%d' % (d + 1), ds=['T1_%d_%d' % (ks, u) for u in range(3)]), I('s_barrier')]
            vmg += groups(w1_dma(3)) if d == 0 else groups(p2_dma(d - 1))
        if (ks & 3) == 3 and c + 3 <= 7:
            g = groups(x_dma(c + 3)); g[0] = [W(ds='XF%d' % (c + 1))] + g[0]; vmg += g
        if ks == 0: vmg += groups(w1_dma(1))
        if ks == 1: vmg += groups(x_dma(2))
        if ks == 5: vmg += groups(w1_dma(2))
        def stat(k2):
            x2 = XR + 4 * k2
            sq = []
            for j in range(4):
                t = 17 + 2 * (j & 1)
                sq.append([I('v_lshlrev_b32 v%d, 16, v%d' % (t, x2 + j)), I('v_and_b32 v%d, 0xffff0000, v%d' % (t + 1, x2 + j)),
                           I('v_fmac_f32 v%d, v%d, v%d' % (SQA, t, t)), I('v_fmac_f32 v%d, v%d, v%d' % (SQB, t + 1, t + 1))])
            return [[W(ds='XF%d' % (k2 >> 2))] + sq[0] + [I('v_mfma_f32_16x16x32_bf16 %s, %s, %s, %s' % (vr(RS), vr(SEL1), vr(x2), '0' if k2 == 0 else vr(RS)))], sq[1] + sq[2], sq[3]]
        if ks < 26: side = stat(ks)
        elif ks < 29:
            a1, a2 = stat(26 + 2 * (ks - 26)), stat(27 + 2 * (ks - 26))
            side = [a1[0] + a1[1], a1[2] + a2[0], a2[1] + a2[2]]
        else:
            sf = stats_final_items
            n = len(sf); k3 = ks - 29
            part = sf[n * k3 // 3: n * (k3 + 1) // 3]
            side = [part[:len(part) // 3], part[len(part) // 3: 2 * len(part) // 3], part[2 * len(part) // 3:]]
        for u in range(3):
            it += [W(ds=('T1_%d_%d' % (ks, u), 'XF%d' % c))]
            it.append(I('v_mfma_f32_32x32x16_bf16 %s, %s, %s, %s' % (acc(u), vr(b + 4 * u), vr(x), '0' if ks == 0 else acc(u))))
            if ks < 31: it += tr1(ks + 1, (u,))
            it += side[u]
            if u < len(vmg): it += vmg[u]
        for g in vmg[3:]: it += g
        if (ks & 7) == 5: it += cs1_read(d)
        if (ks & 3) == 1 and c < 6: it += stage(c + 1)
        if ks == 24: it += stage(7)
        R.run(it)
    mid = stamp() + cs1_mma(3) + cs_publish((0, 1, 2), CSA1) + [I('v_mov_b32 v%d, v%d' % (SEL2 + r, SEL1)) for r in range(4)]
    mid += [I('s_lshl_b32 s57, s20, 10'), I('s_lshl_b32 s58, s20, 9')]
    mid += [W(vm=('P2_0', 'P2_1'), ds='ALL'), I('s_barrier')] + stamp() + p2_dma(2) + p2_dma(3)
    if 'nopf' not in EXP:
        mid += [I('s_mov_b32 s62, 1835008'), I('s_mov_b32 s63, 0x20000'), I('s_mov_b32 s98, 0x80000'), I('s_mov_b32 s99, 0x20000'),
                I('s_lshl_b32 s54, s2, 3'), I('s_add_u32 s54, s54, s20'), I('s_lshl_b32 s54, s54, 10'),
                VM('buffer_load_dwordx4 v[44:47], v22, s[60:63], s54 offen', 'PF'), VM('buffer_load_dwordx4 v[44:47], v22, s[96:99], s54 offen', 'PF')]
    R.run(mid)
    st_save = _st[0]
    a('s_cmp_eq_u32 s23, 0\ns_cbranch_scc0 K1_VARB')
    for var in range(2):
        if var == 1: a('K1_VARB:')
        RR = copy.deepcopy(R); RR.a = a; _st[0] = st_save
        main = tr2(0, var, 0) + tr2(0, var, 1)
        body = []
        for ks in range(32):
            b = BR + 8 * (ks & 1); x = XR + 4 * ks
            if ks == 15: body.append([W(vm=('P2_2', 'P2_3')), I('s_barrier')])
            body.append([W(ds='T2_%d_0' % ks), I('v_mfma_f32_32x32x16_bf16 %s, %s, %s, %s' % (acc(3), vr(b), vr(x), '0' if ks == 0 else acc(3)))])
            if ks < 31: body.append(tr2(ks + 1, var, 0))
            if var == 0: mf = I('v_mfma_f32_32x32x16_bf16 %s, %s, %s, %s' % (acc(4), vr(x), vr(b + 4), '0' if ks == 0 else acc(4)))
            else: mf = I('v_mfma_f32_32x32x16_bf16 %s, %s, %s, %s' % (acc(4), vr(b + 4), vr(x), '0' if ks == 0 else acc(4)))
            body.append([W(ds='T2_%d_1' % ks), mf])
            if ks < 31: body.append(tr2(ks + 1, var, 1))
            for dd, kk in enumerate((5, 8, 16, 18)):
                if ks == kk: body.append(cs2(dd, var)[0])
                if ks == kk + 1: body.append(cs2(dd, var)[1])
            if ks == 20: body.append(cs_publish((3, 4), CSA2, tmp=(19, 20, 144)))
            if ks == 23: body.append([W(ds='CSA'), I('s_barrier')])
            if ks == 25: body.append([DS('ds_read_b128 %s, v22 offset:%d' % (vr(144 + 4 * n), CSF + (3 + n) * 1024), 'CFF') for n in range(2)] + (v_pre() if var == 0 else []))
        side = []
        for u in range(3): side += mean_fix(u, 'MF%d' % u)
        for u in range(3): side += g_epilogue(u, (48, u * 1024))
        merged = merge(body, side)
        flat = []
        for x in merged:
            if isinstance(x, list): flat += x
            else: flat.append(x)
        RR.run(main + flat)
        fin = stamp() + stamp() + [W(ds='CFF'), I('v_mfma_f32_32x32x16_bf16 %s, %s, %s, %s' % (acc(3), vr(144), vr(MF), acc(3)))]
        if var == 0: fin.append(I('v_mfma_f32_32x32x16_bf16 %s, %s, %s, %s' % (acc(4), vr(MF), vr(148), acc(4))))
        else: fin.append(I('v_mfma_f32_32x32x16_bf16 %s, %s, %s, %s' % (acc(4), vr(148), vr(MF), acc(4))))
        fin += t_epilogue()
        if var == 0: fin += v_epilogue()
        else: fin += g_epilogue(4, (50, 0))
        fin += stamp() + ([I('s_waitcnt vmcnt(0)')] if STAMP else []) + stamp() + ([I('s_memrealtime s[94:95]')] if STAMP else []) + stamp_out(16 << 20)
        RR.run(fin)
        a('s_endpgm' if var == 0 else 'K1_END:\ns_endpgm')
    return a.finalize()

if __name__ == '__main__':
    print(len(build_k1().splitlines()))
```

```python
from asmlib import *
from sched import *
from k1 import QF, KF, VF, HF, OF, FLG, WS_RANGE, vr, f2u
import copy, os
STAMP = int(os.environ.get('STAMP', '0'))
EARLYBAR = int(os.environ.get('EARLYBAR', '0'))
FLAGPOS = int(os.environ.get('FLAGPOS', '27'))
_st = [0]
SB0 = 96
def stamp():
    if not STAMP: return []
    k = _st[0]; _st[0] += 1
    return [I('s_memrealtime s[96:97]' if STAMP == 2 else 's_memtime s[96:97]'), I('s_waitcnt lgkmcnt(0)'), I('v_mov_b32 v%d, s96' % (240 + k))]
def stamp_out(base):
    if not STAMP: return []
    out = [I('s_lshl_b32 s54, s2, 3'), I('s_add_u32 s54, s54, s20'), I('s_lshl_b32 s54, s54, 7'), I('s_add_u32 s54, s54, %d' % base), I('v_mov_b32 v1, 0')]
    for k in range(16):
        out += [I('buffer_store_dword v%d, v1, s[16:19], s54 offen offset:%d' % (240 + k, 4 * k))]
    return out

RSZ = 17408
FLAG = 4 * RSZ
LDS_K2 = FLAG + 256
NEG_BIG = 0xf149f2ca
GA, GB, GACC = 16, 80, 96
AQ, AK, AV, SA, SB, CN, CT, AP, AO = 16, 24, 64, 144, 160, 176, 192, 208, 216
XRES = 232

def prologue(a):
    a('''
s_cmp_ge_u32 s2, 256
s_cbranch_scc1 K2_END
s_load_dwordx2 s[4:5], s[0:1], 0
s_load_dwordx2 s[8:9], s[0:1], 16
s_load_dwordx2 s[12:13], s[0:1], 48
s_load_dwordx4 s[24:27], s[0:1], 56
s_load_dwordx2 s[16:17], s[0:1], 72
v_mov_b32 v15, v0
v_lshrrev_b32 v1, 6, v0
v_and_b32 v0, 63, v0
v_readfirstlane_b32 s20, v1
s_and_b32 s36, s2, 7
s_lshr_b32 s37, s2, 3
s_lshl_b32 s21, s36, 2
s_lshr_b32 s38, s37, 3
s_add_u32 s21, s21, s38
s_and_b32 s22, s37, 7
v_lshlrev_b32 v14, 4, v0
v_lshrrev_b32 v1, 3, v15
v_and_b32 v2, 7, v15
v_lshlrev_b32 v13, 10, v1
v_lshl_add_u32 v13, v2, 4, v13
v_mul_u32_u24 v12, 272, v1
v_lshl_add_u32 v12, v2, 5, v12
s_lshl_b32 s23, s21, 16
s_lshl_b32 s36, s22, 7
s_add_u32 s23, s23, s36
v_mov_b32 v1, 0
v_mov_b32 v2, %d
ds_write_b32 v2, v1
s_waitcnt lgkmcnt(0)
s_mov_b32 s6, 0x200000
s_mov_b32 s7, 0x20000
s_mov_b32 s10, 0x80000
s_mov_b32 s11, 0x20000
s_mov_b32 s14, 1835008
s_mov_b32 s15, 0x20000
s_mov_b32 s18, %d
s_mov_b32 s19, 0x20000
s_mov_b32 s28, s24
s_mov_b32 s29, s25
s_mov_b32 s30, 0x200000
s_mov_b32 s31, 0x20000
s_barrier
''' % (FLAG, WS_RANGE))

def final_reduce(tagp):
    out = stamp() + [I('s_barrier')] + stamp()
    T = 96
    for g in range(4):
        for hlf in range(2):
            out.append(DS('ds_read_b128 %s, v12 offset:%d' % (vr(T + 8 * g + 4 * hlf), g * RSZ + 16 * hlf), tagp + 'R'))
    out.append(W(vm='XRES'))
    for i in range(4):
        out.append(I('v_lshlrev_b32 v%d, 16, v%d' % (64 + 2 * i, XRES + i)))
        out.append(I('v_and_b32 v%d, 0xffff0000, v%d' % (65 + 2 * i, XRES + i)))
    out.append(W(ds=tagp + 'R'))
    for i in range(8): out.append(I('v_add_f32 v%d, v%d, v%d' % (T + i, T + i, T + 8 + i)))
    for i in range(8): out.append(I('v_add_f32 v%d, v%d, v%d' % (T + 16 + i, T + 16 + i, T + 24 + i)))
    for i in range(8): out.append(I('v_add_f32 v%d, v%d, v%d' % (T + i, T + i, T + 16 + i)))
    for i in range(8): out.append(I('v_add_f32 v%d, v%d, v%d' % (T + i, T + i, 64 + i)))
    for i in range(4): out.append(I('v_cvt_pk_bf16_f32 v%d, v%d, v%d' % (72 + i, T + 2 * i, T + 2 * i + 1)))
    out.append(VM('buffer_store_dwordx4 v[72:75], v13, s[28:31], s23 offen', 'OUT'))
    out += stamp() + stamp_out(17 << 20)
    out.append(I('s_endpgm'))
    return out

def gemm(a):
    R = Resolver(a)
    txt = ('''
v_lshrrev_b32 v1, 3, v0
v_and_b32 v2, 7, v0
v_bfe_u32 v3, v0, 4, 1
v_lshlrev_b32 v3, 2, v3
v_xor_b32 v2, v2, v3
v_lshlrev_b32 v1, 10, v1
v_lshl_add_u32 v1, v2, 4, v1
v_lshrrev_b32 v2, 5, v0
v_bfe_u32 v3, v0, 2, 2
v_lshl_add_u32 v2, v2, 2, v3
v_lshlrev_b32 v2, 7, v2
v_lshrrev_b32 v3, 1, v3
v_lshl_add_u32 v2, v3, 6, v2
v_bfe_u32 v3, v0, 4, 1
v_lshl_add_u32 v2, v3, 5, v2
v_and_b32 v3, 3, v0
v_lshl_add_u32 v2, v3, 3, v2
s_mul_i32 s40, s20, %d
v_add_u32 v2, s40, v2
v_xor_b32 v3, 64, v2
s_mul_i32 s41, s21, 224
s_mul_i32 s36, s20, 28
s_add_u32 s41, s41, s36
s_lshl_b32 s41, s41, 10
s_add_u32 s41, s41, %d
s_add_u32 s42, s41, 114688
s_mul_i32 s43, s20, 458752
s_lshl_b32 s36, s22, 7
s_add_u32 s43, s43, s36
s_lshl_b32 s44, s21, 6
s_lshl_b32 s37, s20, 3
s_add_u32 s44, s44, s37
s_lshl_b32 s44, s44, 10
s_add_u32 s44, s44, %d
s_add_u32 s45, s44, 32768
s_lshl_b32 s46, s20, 17
s_add_u32 s46, s46, s36
v_mov_b32 v4, %d
''' % (RSZ, HF, OF, FLAG))
    a(txt)
    def LA(s):
        out = []
        for t in range(2):
            dst = vr(GA + 8 * (s & 7) + 4 * t)
            if s < 28:
                out.append(I('s_add_u32 s50, s%d, %d' % (41 + t, s * 1024)))
                out.append(VM('buffer_load_dwordx4 %s, v14, s[16:19], s50 offen' % dst, 'A%d' % s))
            else:
                out.append(I('s_add_u32 s50, s%d, %d' % (44 + t, (s - 28) * 1024)))
                out.append(VM('buffer_load_dwordx4 %s, v14, s[16:19], s50 offen sc1' % dst, 'A%d' % s))
        return out
    def LW(s):
        out = []
        for i in range(2):
            if s < 28:
                out.append(I('s_add_u32 s51, s43, %d' % ((16 * s + 8 * i) * 1024))); srd = 's[12:15]'
            else:
                out.append(I('s_add_u32 s51, s46, %d' % ((16 * (s - 28) + 8 * i) * 1024))); srd = 's[8:11]'
            out.append(I('s_add_u32 m0, s40, %d' % ((s & 7) * 2048 + i * 1024)))
            out.append(VM('buffer_load_dwordx4 v1, %s, s51 offen lds' % srd, 'W%d' % s))
        return out
    def TR(s):
        out = [W(vm='W%d' % s)]
        for cti in range(2):
            for sec in range(2):
                out.append(DS('ds_read_b64_tr_b16 %s, v%d offset:%d' % (vr(GB + 8 * (s & 1) + 4 * cti + 2 * sec, 2), 2 + cti, (s & 7) * 2048 + sec * 1024), 'T%d' % s))
        return out
    _st[0] = 0
    it = stamp() + ([I('s_barrier')] if EARLYBAR else [])
    for s in range(8): it += LW(s) + LA(s)
    it.append(VM('buffer_load_dwordx4 %s, v13, s[4:7], s23 offen' % vr(XRES), 'XRES'))
    it += stamp() + TR(0)
    pend = []
    for s in range(36):
        if s in (4, 12, 20, 28): it += stamp()
        it.append(W(vm='A%d' % s, ds='T%d' % s))
        mm = []
        for t in range(2):
            for cti in range(2):
                ac = vr(GACC + 16 * (2 * t + cti), 16)
                mm.append(I('v_mfma_f32_32x32x16_bf16 %s, %s, %s, %s' % (ac, vr(GB + 8 * (s & 1) + 4 * cti), vr(GA + 8 * (s & 7) + 4 * t), '0' if s == 0 else ac)))
        it += mm[:2]
        if s < 35: it += TR(s + 1)
        it += mm[2:]
        n = s + 8
        if n < 36: it += LW(n)
        n = s + 7
        if 8 <= n < 36:
            if n < 28: it += LA(n)
            elif s < FLAGPOS: pend.append(n)
            else:
                if s == FLAGPOS:
                    it += [I('K2_FW:'), DS('ds_read_b32 v5, v4', 'FL'), W(ds='ALL'), I('v_readfirstlane_b32 s52, v5'),
                           I('s_cmp_lg_u32 s52, 0'), I('s_cbranch_scc1 K2_FOK'), I('s_sleep 1'), I('s_branch K2_FW'), I('K2_FOK:')]
                    it += stamp()
                    for p in pend: it += LA(p)
                it += LA(n)
    it += [I('v_and_b32 v5, 31, v0'), I('v_mul_u32_u24 v5, 272, v5'), I('v_lshrrev_b32 v6, 5, v0'), I('v_lshl_add_u32 v5, v6, 4, v5'), I('v_add_u32 v5, s40, v5')]
    for t in range(2):
        for cti in range(2):
            for q in range(4):
                it.append(DS('ds_write_b128 v5, %s offset:%d' % (vr(GACC + 16 * (2 * t + cti) + 4 * q), t * 32 * 272 + cti * 128 + q * 32), 'RW'))
    it.append(W(ds='ALL'))
    it += final_reduce('G')
    R.run(it)

_l = [0]
def lab(p):
    _l[0] += 1
    return 'K2_%s%d' % (p, _l[0])

def attn(a):
    R = Resolver(a)
    a('''
s_setprio 3
s_sub_u32 s36, s20, 4
s_lshl_b32 s40, s22, 2
s_add_u32 s40, s40, s36
s_lshl_b32 s41, s21, 1
s_sub_u32 s41, s41, 8
s_lshl_b32 s42, s40, 16
v_and_b32 v1, 15, v0
v_lshrrev_b32 v2, 5, v0
v_lshlrev_b32 v1, 4, v1
v_lshl_add_u32 v1, v2, 8, v1
v_bfe_u32 v3, v0, 4, 1
v_lshl_add_u32 v1, v3, 9, v1
v_and_b32 v3, 31, v0
v_lshlrev_b32 v2, 2, v2
v_sub_u32 v3, v3, v2
v_mov_b32 v4, 0x%08x
''' % NEG_BIG)
    _st[0] = 0
    it = stamp()
    it += [I('s_lshl_b32 s37, s21, 11'), I('s_add_u32 s37, s37, s42')]
    it.append(VM('buffer_load_dwordx4 %s, v14, s[16:19], s37 offen' % vr(AQ), 'Q0'))
    def kload(jj):
        return [I('s_add_i32 s36, s41, %d' % jj), I('s_max_i32 s36, s36, 0'), I('s_lshl_b32 s36, s36, 10'), I('s_add_u32 s%d, s36, s42' % (44 + jj)),
                I('s_add_u32 s36, s%d, %d' % (44 + jj, KF)),
                VM('buffer_load_dwordx4 %s, v14, s[16:19], s36 offen' % vr(AK + 4 * jj), 'K%d' % jj)]
    def vload(jj):
        return [I('s_add_u32 s36, s%d, %d' % (44 + jj, VF)), VM('buffer_load_dwordx4 %s, v1, s[16:19], s36 offen' % vr(AV + 8 * jj), 'V%d' % jj)]
    for jj in range(8, -1, -1): it += kload(jj)
    it.append(VM('buffer_load_dwordx4 %s, v14, s[16:19], s37 offen offset:1024' % vr(AQ + 4), 'Q1'))
    it += kload(9)
    if EARLYBAR: it.append(I('s_barrier'))
    for r in range(16):
        it.append(I('v_cmp_ge_i32 s[%d:%d], v3, %d' % (64 + 2 * r, 65 + 2 * r, 8 * (r >> 2) + (r & 3))))
    for jj in range(10):
        for r in range(4): it.append(I('v_mov_b32 v%d, 0x3f803f80' % (AV + 8 * jj + 4 + r)))
    vl = [vload(jj) for jj in list(range(8, -1, -1)) + [9]] + [[VM('buffer_load_dwordx4 %s, v13, s[4:7], s23 offen' % vr(XRES), 'XRES')]]
    def smfma(qi, jp, buf, cmode):
        jj = qi + jp
        out = [W(vm=('Q%d' % qi, 'K%d' % jj))]
        if jp == 8 or jp == 0:
            val = '0' if cmode == 'A' else 'v%d' % CN
            for r in range(16):
                m = 's[%d:%d]' % (64 + 2 * r, 65 + 2 * r)
                if jp == 8: out.append(I('v_cndmask_b32 v%d, v4, %s, %s' % (CT + r, val, m)))
                else: out.append(I('v_cndmask_b32 v%d, %s, v4, %s' % (CT + r, val, m)))
            c = vr(CT, 16)
        else:
            c = '0' if cmode == 'A' else vr(CN, 16)
        out.append(I('v_mfma_f32_32x32x16_bf16 %s, %s, %s, %s' % (vr(buf, 16), vr(AK + 4 * jj), vr(AQ + 4 * qi), c)))
        return out
    def one_pass(qi, cmode, fast, proc):
        bufs = (SA, SB)
        out = smfma(qi, 8, bufs[0], cmode)
        Ld = lab('D')
        for n, jp in enumerate(range(8, -1, -1)):
            if jp > 0:
                Ls = lab('S')
                if not fast: out += [I('s_add_i32 s36, s41, %d' % (qi + jp - 1)), I('s_cmp_lt_i32 s36, 0'), I('s_cbranch_scc1 %s' % Ls)]
                out += smfma(qi, jp - 1, bufs[(n + 1) & 1], cmode)
                if not fast: out += [I(Ls + ':')]
            out += proc(jp, bufs[n & 1])
            if jp > 0 and not fast: out += [I('s_add_i32 s36, s41, %d' % (qi + jp - 1)), I('s_cmp_lt_i32 s36, 0'), I('s_cbranch_scc1 %s' % Ld)]
        if not fast: out += [I(Ld + ':'), I('s_nop 15')]
        return out
    def body(fast):
        it = []
        swapped = set()
        if not fast:
            for g in vl: it += g
            it.append(W(vm='ALL'))
            for jj in range(10):
                for r in range(4): it.append(I('v_permlane16_swap_b32 v%d, v%d' % (AV + 8 * jj + r, AV + 8 * jj + 4 + r)))
                swapped.add(jj)
        for qi in range(2):
            pend = list(vl) if (fast and qi == 0) else []
            def procA(jp, b):
                o = [I('v_max3_f32 v5, v%d, v%d, v5' % (b + 2 * i, b + 2 * i + 1)) for i in range(8)]
                if pend: o += pend.pop(0)
                if pend and jp < 3: o += pend.pop(0)
                return o
            it += (stamp() if fast else []) + [I('v_mov_b32 v5, v4')] + one_pass(qi, 'A', fast, procA)
            for g in pend: it += g
            it += [I('v_mov_b32 v6, v5'), I('v_permlane32_swap_b32 v5, v6'), I('v_max_f32 v5, v5, v6'), I('v_sub_f32 v%d, 0, v5' % CN)]
            for r in range(1, 16): it.append(I('v_mov_b32 v%d, v%d' % (CN + r, CN)))
            def procB(jp, b):
                jj = qi + jp
                o = []
                if jj not in swapped:
                    swapped.add(jj)
                    o.append(W(vm='V%d' % jj))
                    o += [I('v_permlane16_swap_b32 v%d, v%d' % (AV + 8 * jj + r, AV + 8 * jj + 4 + r)) for r in range(4)]
                o += [I('v_exp_f32 v%d, v%d' % (b + r, b + r)) for r in range(16)]
                o += [I('v_cvt_pk_bf16_f32 v%d, v%d, v%d' % (AP + p, b + 2 * p, b + 2 * p + 1)) for p in range(8)]
                for hf in range(2):
                    o.append(I('v_mfma_f32_32x32x16_bf16 %s, %s, %s, %s' % (vr(AO, 16), vr(AV + 8 * jj + 4 * hf), vr(AP + 4 * hf), '0' if (jp == 8 and hf == 0) else vr(AO, 16))))
                return o
            it += (stamp() if fast else []) + one_pass(qi, 'B', fast, procB)
            it.append(I('v_rcp_f32 v6, v%d' % (AO + 8)))
            for r in range(8): it.append(I('v_mul_f32 v%d, v%d, v6' % (AO + r, AO + r)))
            for p in range(4): it.append(I('v_cvt_pk_bf16_f32 v%d, v%d, v%d' % (8 + p, AO + 2 * p, AO + 2 * p + 1)))
            it += [I('s_lshl_b32 s36, s21, 6'), I('s_add_u32 s36, s36, s40'), I('s_lshl_b32 s36, s36, 10'), I('s_add_u32 s36, s36, %d' % (OF + qi * 32768))]
            it.append(VM('buffer_store_dwordx4 v[8:11], v14, s[16:19], s36 offen sc1', 'OST'))
        return it
    it += [I('s_cmp_ge_u32 s21, 4'), I('s_cbranch_scc1 K2_AFAST')]
    R.run(it)
    R2 = copy.deepcopy(R); R2.a = a
    R2.run(body(False) + [I('s_branch K2_AJOIN'), I('K2_AFAST:')])
    it = body(True) + [I('K2_AJOIN:')]
    it += stamp() + [W(vm='ALL')] + stamp()
    it += [I('s_lshl_b32 s37, s21, 7'), I('s_add_u32 s37, s37, %d' % FLG), I('s_lshl_b32 s36, s40, 2'), I('s_and_b32 s36, s36, 127'), I('v_mov_b32 v5, s36'), I('v_mov_b32 v6, 1'),
           I('s_mov_b64 exec, 1'), VM('buffer_store_dword v6, v5, s[16:19], s37 offen sc1', 'AT'), I('s_mov_b64 exec, -1'),
           I('s_cmp_lg_u32 s20, 4'), I('s_cbranch_scc1 K2_AFIN'),
           I('v_and_b32 v5, 31, v0'), I('v_lshlrev_b32 v5, 2, v5'),
           I('K2_POLL:'), VM('buffer_load_dword v7, v5, s[16:19], s37 offen sc1', 'PL'), W(vm='ALL'), I('v_cmp_ne_u32 vcc, 0, v7'),
           I('s_cmp_eq_u64 vcc, -1'), I('s_cbranch_scc1 K2_PDONE'), I('s_sleep 1'), I('s_branch K2_POLL'), I('K2_PDONE:'),
           I('v_mov_b32 v5, %d' % FLAG), DS('ds_write_b32 v5, v6', 'FW'), W(ds='ALL'), I('K2_AFIN:')]
    it += final_reduce('A')
    R.run(it)

def build_k2():
    a = Asm()
    prologue(a)
    a('s_cmp_ge_u32 s20, 4\ns_cbranch_scc1 K2_ATT')
    gemm(a)
    a('K2_ATT:')
    attn(a)
    a('K2_END:\ns_endpgm')
    return a.finalize()

if __name__ == '__main__':
    print(len(build_k2().splitlines()))
```

```python
from asmlib import *
from sched import *
import os, struct, copy

QF, KF, VF, HF, OF, FLG = 0, 2 << 20, 4 << 20, 6 << 20, 14 << 20, 20 << 20
WS_RANGE = 32 << 20
STAMP = int(os.environ.get('STAMP', '0'))
EXP = os.environ.get('EXP', '')
NSPREAD = int(os.environ.get('NSPREAD', '20'))
STF = os.environ.get('STF', '')
_st = [0]
def stamp():
    if not STAMP: return []
    k = _st[0]; _st[0] += 1
    return [I('s_memtime s[%d:%d]' % (64 + 2 * k, 65 + 2 * k))]
def stamp_out(base):
    if not STAMP: return []
    out = [I('s_waitcnt lgkmcnt(0)'), I('s_lshl_b32 s54, s2, 3'), I('s_add_u32 s54, s54, s20'), I('s_lshl_b32 s54, s54, 7'), I('s_add_u32 s54, s54, %d' % base), I('v_mov_b32 v1, 0')]
    for k in range(16):
        out += [I('v_mov_b32 v2, s%d' % (64 + 2 * k)), I('buffer_store_dword v2, v1, s[16:19], s54 offen offset:%d' % (4 * k))]
    return out

CSF, ST, XR0, P1G, P1U = 0, 5120, 6144, 71680, 108672
LDS_K1 = 145536
SLOT = 12288
XR, ACC, BR = 128, 48, 24
K0 = -2.0 * 0.7978845608028654 * 1.4426950408889634
K1C = K0 * 0.044715
def f2u(f): return struct.unpack('<I', struct.pack('<f', f))[0]
def vr(b, n=4): return 'v[%d:%d]' % (b, b + n - 1)
def acc(u): return vr(ACC + 16 * u, 16)
SEL1, RS, CSA1, CT1 = 96, 100, 104, 116
SQA, SQB = 15, 16
SEL2, CSA2, CT2 = 40, 128, 136
MF, C0, C1, IRS2, RSTD, CF = 4, 15, 16, 17, 18, 8
def t_base(d): return (P1G + SLOT, P1G + 2 * SLOT, P1G, XR0)[d]
def x_base(d): return (P1U + SLOT, P1U + 2 * SLOT, P1U, XR0 + 8192)[d]

def prologue(a):
    a('''
s_cmp_ge_u32 s2, 256
s_cbranch_scc1 K1_END
s_load_dwordx2 s[4:5], s[0:1], 0
s_load_dwordx2 s[28:29], s[0:1], 8
s_load_dwordx4 s[32:35], s[0:1], 32
s_load_dwordx2 s[16:17], s[0:1], 72
s_load_dwordx2 s[96:97], s[0:1], 16
v_lshrrev_b32 v1, 6, v0
v_and_b32 v0, 63, v0
v_readfirstlane_b32 s20, v1
s_and_b32 s36, s2, 7
s_lshr_b32 s37, s2, 3
s_and_b32 s38, s36, 1
s_lshl_b32 s38, s38, 2
s_and_b32 s39, s37, 3
s_add_u32 s21, s38, s39
s_lshr_b32 s38, s36, 1
s_lshl_b32 s38, s38, 3
s_lshr_b32 s39, s37, 2
s_add_u32 s22, s38, s39
s_lshr_b32 s30, s22, 1
s_and_b32 s23, s22, 1
s_mul_i32 s31, s30, 112
s_mul_i32 s38, s23, 48
s_add_u32 s31, s31, s38
s_lshl_b32 s21, s21, 3
s_add_u32 s21, s21, s20
s_lshl_b32 s24, s21, 15
s_add_u32 s25, s24, 8192
s_add_u32 s26, s24, 16384
s_add_u32 s27, s24, 24576
s_lshl_b32 s47, s20, 13
s_add_u32 s47, s47, %d
''' % XR0)
    a('''
v_lshrrev_b32 v2, 3, v0
v_and_b32 v3, 7, v0
v_lshrrev_b32 v4, 4, v0
v_xor_b32 v3, v3, v4
v_lshlrev_b32 v3, 4, v3
v_lshl_add_u32 v2, v2, 10, v3
v_xor_b32 v3, 64, v2
v_and_b32 v4, 31, v0
v_lshrrev_b32 v5, 5, v0
v_lshrrev_b32 v6, 1, v4
v_and_b32 v6, 7, v6
v_xor_b32 v6, v6, v5
v_lshlrev_b32 v6, 4, v6
v_lshl_add_u32 v4, v4, 7, v6
v_add_u32 v4, s47, v4
v_xor_b32 v5, 32, v4
v_xor_b32 v6, 64, v4
v_xor_b32 v7, 0x60, v4
''')
    a('''
v_bfe_u32 v28, v0, 4, 1
v_lshrrev_b32 v29, 5, v0
v_lshlrev_b32 v29, 3, v29
v_bfe_u32 v30, v0, 2, 2
v_add_u32 v29, v29, v30
v_and_b32 v30, 3, v0
v_lshlrev_b32 v30, 3, v30
v_mul_u32_u24 v8, %d, v28
v_mul_u32_u24 v31, 96, v29
v_add3_u32 v8, v8, v31, v30
v_add_u32 v8, %d, v8
s_mul_i32 s36, s20, 1536
v_add_u32 v1, s36, v8
v_lshlrev_b32 v13, 6, v29
v_lshl_add_u32 v13, v28, 5, v13
v_add_u32 v13, v13, v30
v_lshlrev_b32 v22, 4, v0
''' % (P1U - P1G, P1G))
    for i in range(3):
        a('''
v_add_u32 v31, %d, v0
v_mul_u32_u24 v32, 43691, v31
v_lshrrev_b32 v32, 18, v32
v_mul_u32_u24 v33, 6, v32
v_sub_u32 v33, v31, v33
v_mul_u32_u24 v32, 3584, v32
v_lshl_add_u32 v%d, v33, 4, v32
''' % (64 * i, 9 + i))
    a('''
v_and_b32 v31, 15, v0
v_cmp_eq_u32 vcc, v31, v28
v_mov_b32 v96, 0x3f803f80
v_cndmask_b32 v96, 0, v96, vcc
v_mov_b32 v97, v96
v_mov_b32 v98, v96
v_mov_b32 v99, v96
v_mov_b32 v15, 0
v_mov_b32 v16, 0
s_waitcnt lgkmcnt(0)
s_mov_b32 s6, 0x200000
s_mov_b32 s7, 0x20000
s_mov_b32 s18, %d
s_mov_b32 s19, 0x20000
s_cmp_lt_u32 s20, 4
s_cselect_b32 s8, s32, s34
s_cselect_b32 s9, s33, s35
s_mov_b32 s10, 1835008
s_mov_b32 s11, 0x20000
s_mov_b32 s41, %d
s_cselect_b32 s41, s41, %d
s_and_b32 s36, s20, 3
s_mul_i32 s40, s36, 114688
s_lshl_b32 s37, s31, 1
s_add_u32 s40, s40, s37
s_mul_i32 s37, s36, 3072
s_add_u32 s41, s41, s37
''' % (WS_RANGE, P1G, P1U))

def prologue2(a):
    a('''
s_mov_b32 s15, 0x20000
s_cmp_ge_u32 s20, 4
s_cselect_b32 s46, 1, 0
s_cmp_lt_u32 s20, 4
s_cbranch_scc1 K1_P2_QKV
s_cmp_eq_u32 s23, 0
s_cbranch_scc1 K1_P2_QKV
s_cmp_lt_u32 s20, 6
s_cselect_b32 s12, s32, s34
s_cselect_b32 s13, s33, s35
s_cselect_b32 s37, 0, 4224
s_mov_b32 s14, 1835008
v_lshrrev_b32 v31, 1, v0
v_mul_u32_u24 v31, 3584, v31
v_and_b32 v12, 1, v0
v_lshl_add_u32 v12, v12, 4, v31
s_and_b32 s36, s20, 1
s_mul_i32 s42, s36, 229376
s_mul_i32 s38, s30, 224
s_add_u32 s42, s42, s38
s_add_u32 s42, s42, 192
s_mov_b32 s43, 458752
s_mov_b32 s44, 114688
s_lshl_b32 s36, s36, 11
s_add_u32 s45, s37, s36
s_branch K1_P2_DONE
K1_P2_QKV:
s_mov_b32 s12, s28
s_mov_b32 s13, s29
s_mov_b32 s14, 1572864
v_lshrrev_b32 v31, 2, v0
v_mul_u32_u24 v31, 3072, v31
v_and_b32 v12, 3, v0
v_lshl_add_u32 v12, v12, 4, v31
s_and_b32 s36, s20, 3
s_mul_i32 s42, s36, 98304
s_lshl_b32 s37, s22, 6
s_lshl_b32 s38, s30, 6
s_add_u32 s38, s38, 2048
s_lshl_b32 s45, s36, 11
s_cmp_lt_u32 s20, 4
s_cselect_b32 s37, s37, s38
s_add_u32 s42, s42, s37
s_mov_b32 s43, 393216
s_mov_b32 s44, 49152
K1_P2_DONE:
s_cmp_eq_u32 s23, 0
s_cbranch_scc1 K1_XA
v_mul_u32_u24 v14, 4224, v28
v_lshl_add_u32 v14, v29, 5, v14
v_add_u32 v14, v14, v30
s_branch K1_XB
K1_XA:
v_mov_b32 v14, v13
K1_XB:
v_add_u32 v23, %d, v14
v_add_u32 v14, %d, v14
v_add_u32 v21, %d, v13
v_add_u32 v13, %d, v13
''' % (XR0 + 8192, P1U, XR0, P1G))
    a('''
s_mul_i32 s48, s21, 112
s_lshr_b32 s36, s31, 4
s_add_u32 s48, s48, s36
s_lshl_b32 s48, s48, 10
s_add_u32 s48, s48, %d
s_and_b32 s36, s22, 15
s_lshl_b32 s36, s36, 7
s_add_u32 s36, s36, s21
s_lshl_b32 s36, s36, 10
s_cmp_lt_u32 s22, 16
s_cselect_b32 s37, %d, %d
s_cselect_b32 s51, 0x%08x, 0x3f800000
s_add_u32 s49, s36, s37
s_lshl_b32 s36, s30, 7
s_add_u32 s36, s36, s21
s_lshl_b32 s36, s36, 10
s_add_u32 s36, s36, %d
s_add_u32 s37, s48, 3072
s_cmp_eq_u32 s23, 0
s_cselect_b32 s50, s36, s37
''' % (HF, QF, KF, f2u(0.25 * 1.4426950408889634), VF))

def w1_dma(d):
    out = [I('s_add_u32 s55, s40, %d' % (d * 128 * 3584))]
    for i in range(3):
        out.append(I('s_add_u32 m0, s41, %d' % ((d % 3) * SLOT + i * 1024)))
        out.append(VM('buffer_load_dwordx4 v%d, s[8:11], s55 offen lds' % (9 + i), 'W1_%d' % d))
    return out

def p2_dma(d):
    out = [I('s_mul_i32 s52, s43, %d' % d), I('s_add_u32 s52, s52, s42'), I('s_add_u32 s53, s52, s44'),
           I('s_cmp_eq_u32 s46, 0'), I('s_mov_b32 s56, %d' % t_base(d)), I('s_cselect_b32 s56, s56, %d' % x_base(d)), I('s_add_u32 s56, s56, s45')]
    for i in range(2):
        out.append(I('s_add_u32 m0, s56, %d' % (i * 1024)))
        out.append(VM('buffer_load_dwordx4 v12, s[12:15], s%d offen lds' % (52 + i), 'P2_%d' % d))
    return out

def x_dma(c):
    out = []
    for j in range(4):
        out.append(I('s_add_u32 m0, s47, %d' % ((c & 1) * 4096 + j * 1024 - c * 128)))
        out.append(VM('buffer_load_dwordx4 v%d, s[4:7], s%d offen offset:%d lds' % (2 + (j & 1), 24 + j, c * 128), 'X%d' % c))
    return out

def stage(c):
    out = [W(vm='X%d' % c)]
    for s in range(4):
        out.append(DS('ds_read_b128 %s, v%d offset:%d' % (vr(XR + 16 * c + 4 * s), 4 + s, (c & 1) * 4096), 'XF%d' % c))
    return out

B1 = (24, 36)
def tr1(ks, units=(0, 1, 2)):
    out = []
    d, k = ks >> 3, ks & 7
    for u in units:
        b = B1[ks & 1] + 4 * u
        for sec in range(2):
            out.append(DS('ds_read_b64_tr_b16 %s, v8 offset:%d' % (vr(b + 2 * sec, 2), (d % 3) * SLOT + k * 1536 + u * 32 + sec * 384), 'T1_%d_%d' % (ks, u)))
    return out

def cs1_read(d):
    return [DS('ds_read_b64_tr_b16 %s, v1 offset:%d' % (vr(CT1 + 4 * u + 2 * sec, 2), (d % 3) * SLOT + u * 32 + sec * 384), 'C1_%d' % d) for u in range(3) for sec in range(2)]
def cs1_mma(d):
    return [W(ds='C1_%d' % d)] + [I('v_mfma_f32_16x16x32_bf16 %s, %s, %s, %s' % (vr(CSA1 + 4 * u), vr(SEL1), vr(CT1 + 4 * u), '0' if d == 0 else vr(CSA1 + 4 * u))) for u in range(3)]

def tr2_addr(d, k, var, unit, sec):
    if unit == 0:
        reg, base = (13, t_base(d) - P1G) if d < 3 else (21, 0)
        return reg, base + k * 1024 + sec * 256
    reg, base = (14, x_base(d) - P1U) if d < 3 else (23, 0)
    return reg, base + (k * 1024 + sec * 256 if var == 0 else k * 512 + sec * 128)
def tr2(ks, var, unit):
    d, k = ks >> 3, ks & 7
    b = BR + 8 * (ks & 1) + 4 * unit
    out = []
    for sec in range(2):
        reg, off = tr2_addr(d, k, var, unit, sec)
        out.append(DS('ds_read_b64_tr_b16 %s, v%d offset:%d' % (vr(b + 2 * sec, 2), reg, off), 'T2_%d_%d' % (ks, unit)))
    return out
def cs2(d, var):
    out = []
    for unit in range(2):
        for sec in range(2):
            reg, off = tr2_addr(d, 0, var, unit, sec)
            if sec == 0: out.append(I('v_add_u32 v%d, s%d, v%d' % (19 + unit, 57 + (unit if var else 0), reg)))
            out.append(DS('ds_read_b64_tr_b16 %s, v%d offset:%d' % (vr(CT2 + 4 * unit + 2 * sec, 2), 19 + unit, off), 'C2_%d' % d))
    mm = [W(ds='C2_%d' % d)] + [I('v_mfma_f32_16x16x32_bf16 %s, %s, %s, %s' % (vr(CSA2 + 4 * u), vr(SEL2), vr(CT2 + 4 * u), '0' if d == 0 else vr(CSA2 + 4 * u))) for u in range(2)]
    return out, mm

def cs_publish(units, csa, tmp=(1, 2, 3)):
    ta, t2, t3 = tmp
    out = [I('s_lshr_b32 s59, s20, 2'), I('s_lshl_b32 s59, s59, 9'), I('s_and_b32 s56, s20, 3'), I('s_lshl_b32 s56, s56, 2'), I('s_add_u32 s59, s59, s56'),
           I('v_add_u32 v%d, s59, v22' % ta), I('s_mov_b64 exec, 0xffff')]
    for n, u in enumerate(units):
        for k in range(2):
            c = csa + 4 * n + k
            out += [I('v_cvt_pk_bf16_f32 v%d, v%d, v%d' % (t2, c, c)), I('v_lshlrev_b32 v%d, 16, v%d' % (t2, t2)), I('v_sub_f32 v%d, v%d, v%d' % (t3, c, t2)),
                    I('v_cvt_pk_bf16_f32 v%d, v%d, v%d' % (c, c, t3)),
                    DS('ds_write_b32 v%d, v%d offset:%d' % (ta, c, CSF + u * 1024 + 256 * k), 'CSA')]
    out += [I('s_mov_b64 exec, -1')]
    return out

def mean_fix(u, tag, swap=False):
    A = [DS('ds_read_b128 %s, v22 offset:%d' % (vr(CF), CSF + u * 1024), tag), W(ds=tag)]
    if swap: A.append(I('v_mfma_f32_32x32x16_bf16 %s, %s, %s, %s' % (acc(u), vr(MF), vr(CF), acc(u))))
    else: A.append(I('v_mfma_f32_32x32x16_bf16 %s, %s, %s, %s' % (acc(u), vr(CF), vr(MF), acc(u))))
    return A

def g_epilogue(u, soff_expr, tmp=(1, 2, 3, 12)):
    A = ACC + 16 * u
    out = []
    for q in range(2):
        g = [A + 4 * q + i for i in range(4)]
        uu = [A + 8 + 4 * q + i for i in range(4)]
        for i in range(4): out.append(I('v_mul_f32 v%d, v%d, v%d' % (tmp[i], g[i], g[i])))
        for i in range(4): out.append(I('v_fma_f32 v%d, v%d, v%d, v%d' % (tmp[i], tmp[i], C1, C0)))
        for i in range(4): out.append(I('v_mul_f32 v%d, v%d, v%d' % (tmp[i], tmp[i], g[i])))
        for i in range(4): out.append(I('v_exp_f32 v%d, v%d' % (tmp[i], tmp[i])))
        for i in range(4): out.append(I('v_mul_f32 v%d, v%d, v%d' % (g[i], g[i], uu[i])))
        for i in range(4): out.append(I('v_fma_f32 v%d, v%d, v%d, v%d' % (tmp[i], tmp[i], IRS2, IRS2)))
        for i in range(4): out.append(I('v_rcp_f32 v%d, v%d' % (tmp[i], tmp[i])))
        for i in range(4): out.append(I('v_mul_f32 v%d, v%d, v%d' % (g[i], g[i], tmp[i])))
        out.append(I('v_cvt_pk_bf16_f32 v%d, v%d, v%d' % (A + 8 + 2 * q, g[0], g[1])))
        out.append(I('v_cvt_pk_bf16_f32 v%d, v%d, v%d' % (A + 8 + 2 * q + 1, g[2], g[3])))
    sreg, add = soff_expr
    out.append(I('s_add_u32 s54, s%d, %d' % (sreg, add)))
    out.append(VM('buffer_store_dwordx4 %s, v22, s[16:19], s54 offen%s' % (vr(A + 8), STF), 'ST'))
    return out

def t_epilogue():
    A = ACC + 48
    o = XR + 32
    out = [I('v_mul_f32 v1, s51, v%d' % RSTD)]
    for r in range(16): out.append(I('v_mul_f32 v%d, v%d, v1' % (A + r, A + r)))
    for p in range(8): out.append(I('v_cvt_pk_bf16_f32 v%d, v%d, v%d' % (o + p, A + 2 * p, A + 2 * p + 1)))
    out.append(I('s_add_u32 s54, s49, 65536'))
    out.append(VM('buffer_store_dwordx4 %s, v22, s[16:19], s49 offen%s' % (vr(o), STF), 'ST'))
    out.append(VM('buffer_store_dwordx4 %s, v22, s[16:19], s54 offen%s' % (vr(o + 4), STF), 'ST'))
    return out

def v_pre():
    rs = XR + 48
    out = [I('v_lshrrev_b32 v19, 5, v0'), I('v_lshlrev_b32 v20, 4, v19'), I('s_lshl_b32 s59, s20, 7'), I('v_add_u32 v20, s59, v20')]
    for q in range(4):
        out.append(DS('ds_read_b128 %s, v20 offset:%d' % (vr(rs + 4 * q), ST + q * 32), 'VE'))
    out += [I('v_bfe_u32 v152, v0, 4, 1'), I('v_lshlrev_b32 v152, 16, v152'), I('v_lshl_add_u32 v152, v19, 8, v152'), I('v_and_b32 v19, 15, v0'), I('v_lshl_add_u32 v152, v19, 4, v152')]
    return out
def v_epilogue():
    A = ACC + 64
    rs, o = XR + 48, XR + 64
    out = [W(ds='VE')]
    for r in range(16): out.append(I('v_mul_f32 v%d, v%d, v%d' % (A + r, A + r, rs + r)))
    for p in range(8): out.append(I('v_cvt_pk_bf16_f32 v%d, v%d, v%d' % (o + p, A + 2 * p, A + 2 * p + 1)))
    out.append(VM('buffer_store_dwordx4 %s, v152, s[16:19], s50 offen%s' % (vr(o), STF), 'ST'))
    out.append(VM('buffer_store_dwordx4 %s, v152, s[16:19], s50 offen offset:512%s' % (vr(o + 4), STF), 'ST'))
    return out

def rne_bf16(dst, src):
    return [I('v_cvt_pk_bf16_f32 v%d, v%d, v%d' % (dst, src, src)), I('v_lshlrev_b32 v%d, 16, v%d' % (dst, dst))]

def stats_final():
    out = [I('v_and_b32 v19, 15, v0'), I('v_lshlrev_b32 v19, 2, v19'),
           DS('ds_bpermute_b32 v2, v19, v%d' % RS, 'BP'), DS('ds_bpermute_b32 v3, v19, v%d' % (RS + 1), 'BP'),
           I('v_add_f32 v16, v15, v16'), I('v_mov_b32 v17, v16'), I('v_permlane32_swap_b32 v16, v17'), I('v_add_f32 v16, v16, v17'),
           I('v_and_b32 v19, 16, v0'), I('v_cmp_ne_u32 vcc, 0, v19'), W(ds='BP'), I('v_cndmask_b32 v15, v2, v3, vcc'),
           I('v_mul_f32 v15, 0x3b000000, v15'), I('v_mul_f32 v16, 0x3b000000, v16'),
           I('v_fma_f32 v16, -v15, v15, v16'), I('v_max_f32 v16, 0, v16')]
    out += rne_bf16(16, 16)
    out += [I('v_add_f32 v16, 0x%08x, v16' % f2u(1e-5))]
    out += rne_bf16(16, 16)
    out += [I('v_sqrt_f32 v16, v16')]
    out += rne_bf16(16, 16)
    out += [I('v_sub_f32 v15, 0, v15'), I('v_cvt_pk_bf16_f32 v%d, v15, v15' % MF),
            I('v_mov_b32 v%d, v%d' % (MF + 1, MF)), I('v_mov_b32 v%d, v%d' % (MF + 2, MF)), I('v_mov_b32 v%d, v%d' % (MF + 3, MF)),
            I('v_rcp_f32 v%d, v16' % RSTD), I('v_mul_f32 v%d, v16, v16' % IRS2),
            I('v_mul_f32 v%d, 0x%08x, v%d' % (C0, f2u(K0), RSTD)), I('v_mul_f32 v19, v%d, v%d' % (RSTD, RSTD)),
            I('v_mul_f32 v19, v19, v%d' % RSTD), I('v_mul_f32 v%d, 0x%08x, v19' % (C1, f2u(K1C)))]
    out += [I('v_and_b32 v19, 31, v0'), I('v_lshlrev_b32 v19, 2, v19'), I('s_lshl_b32 s54, s20, 7'), I('v_add_u32 v19, s54, v19'),
            DS('ds_write_b32 v19, v%d offset:%d' % (RSTD, ST), 'STW')]
    return out

def groups(items):
    g, cur = [], []
    for x in items:
        cur.append(x)
        if x.q == 'vm': g.append(cur); cur = []
    assert not cur
    return g

def touch():
    if 'touch' not in EXP: return []
    out = []
    out += [I('s_lshr_b32 s52, s2, 5'), I('s_and_b32 s52, s52, 3'), I('s_lshl_b32 s52, s52, 3'), I('s_add_u32 s52, s52, s20'), I('s_lshl_b32 s52, s52, 13'),
            I('s_lshr_b32 s53, s21, 3'), I('s_lshl_b32 s53, s53, 18'), I('s_add_u32 s52, s52, s53'), I('v_lshlrev_b32 v31, 7, v0'),
            VM('buffer_load_dword v252, v31, s[4:7], s52 offen', 'PF')]
    out += [I('s_lshr_b32 s52, s2, 3'), I('s_and_b32 s52, s52, 3'), I('s_lshl_b32 s52, s52, 7'), I('s_and_b32 s53, s20, 1'), I('s_lshl_b32 s53, s53, 6'), I('s_add_u32 s52, s52, s53'),
            I('v_add_u32 v31, s52, v0'), I('v_mul_u32_u24 v32, 3584, v31'), I('s_lshl_b32 s53, s31, 1'), I('s_and_b32 s52, s20, 2'), I('s_lshl_b32 s52, s52, 6'), I('s_add_u32 s53, s53, s52'),
            VM('buffer_load_dword v253, v32, s[8:11], s53 offen', 'PF')]
    out += [I('v_mul_u32_u24 v32, 3072, v31'), I('s_lshl_b32 s53, s22, 6'), I('s_lshl_b32 s52, s30, 6'), I('s_add_u32 s52, s52, 2048'), I('s_and_b32 s56, s20, 2'), I('s_cmp_eq_u32 s56, 0'), I('s_cselect_b32 s53, s53, s52'),
            I('s_mov_b32 s60, s28'), I('s_mov_b32 s61, s29'), I('s_mov_b32 s62, 1572864'), I('s_mov_b32 s63, 0x20000'),
            VM('buffer_load_dword v254, v32, s[60:63], s53 offen', 'PF')]
    return out
def touch_code(tag, first_kb, nwaves):
    if 'notouch' in EXP or 'nocode' in EXP: return []
    L = 'K1_TC%s' % tag
    return [I('s_cmp_ge_u32 s20, %d' % nwaves), I('s_cbranch_scc1 %s' % L),
            I('s_getpc_b64 s[52:53]'), I(L + 'P:'), I('s_sub_u32 s52, s52, %sP-k1_kernel' % L), I('s_subb_u32 s53, s53, 0'),
            I('s_lshl_b32 s56, s20, 13'), I('s_add_u32 s56, s56, %d' % (first_kb * 1024)), I('v_lshl_add_u32 v31, v0, 7, s56'),
            I('v_min_u32 v31, CODE_END-k1_kernel-4, v31'), I('global_load_dword v%d, v31, s[52:53]' % (255 if tag == 'A' else 47)), I(L + ':')]

def build_k1():
    a = Asm()
    prologue(a)
    R = Resolver(a)
    pre = ([I('s_memrealtime s[92:93]')] if STAMP else []) + stamp() + w1_dma(0) + x_dma(0) + x_dma(1)
    R.run(pre)
    prologue2(a)
    R.run(touch_code('A', 0, 3) + touch())
    pre = [I('s_or_b32 s52, s2, s20'), I('s_cmp_lg_u32 s52, 0'), I('s_cbranch_scc1 K1_NOZ'),
           I('v_mov_b32 v32, 0'), I('v_mov_b32 v33, 0'), I('v_mov_b32 v34, 0'), I('v_mov_b32 v35, 0'), I('s_mov_b32 s52, %d' % FLG)]
    pre += [I('buffer_store_dwordx4 v[32:35], v22, s[16:19], s52 offen offset:%d' % (1024 * i)) for i in range(4)]
    pre += [I('s_waitcnt vmcnt(0)'), I('K1_NOZ:')]
    pre += stamp() + [W(vm='W1_0'), I('s_barrier')] + stamp()
    pre += stage(0) + tr1(0)
    R.run(pre)
    stats_final_items = stats_final()
    for ks in range(32):
        c, d = ks >> 2, ks >> 3
        it = []
        b = B1[ks & 1]; x = XR + 4 * ks
        vmg = []
        if (ks & 7) == 7 and ks < 31:
            it += cs1_mma(d)
            it += stamp() + [W(vm='W1_%d' % (d + 1), ds=['T1_%d_%d' % (ks, u) for u in range(3)]), I('s_barrier')]
            vmg += groups(w1_dma(3)) if d == 0 else groups(p2_dma(d - 1))
        if (ks & 3) == 3 and c + 3 <= 7:
            g = groups(x_dma(c + 3)); g[0] = [W(ds='XF%d' % (c + 1))] + g[0]; vmg += g
        if ks == 0: vmg += groups(w1_dma(1))
        if ks == 1: vmg += groups(x_dma(2))
        if ks == 5: vmg += groups(w1_dma(2))
        def stat(k2):
            x2 = XR + 4 * k2
            sq = []
            for j in range(4):
                t = 17 + 2 * (j & 1)
                sq.append([I('v_lshlrev_b32 v%d, 16, v%d' % (t, x2 + j)), I('v_and_b32 v%d, 0xffff0000, v%d' % (t + 1, x2 + j)),
                           I('v_fmac_f32 v%d, v%d, v%d' % (SQA, t, t)), I('v_fmac_f32 v%d, v%d, v%d' % (SQB, t + 1, t + 1))])
            return [[W(ds='XF%d' % (k2 >> 2))] + sq[0] + [I('v_mfma_f32_16x16x32_bf16 %s, %s, %s, %s' % (vr(RS), vr(SEL1), vr(x2), '0' if k2 == 0 else vr(RS)))], sq[1] + sq[2], sq[3]]
        if ks < 26: side = stat(ks)
        elif ks < 29:
            a1, a2 = stat(26 + 2 * (ks - 26)), stat(27 + 2 * (ks - 26))
            side = [a1[0] + a1[1], a1[2] + a2[0], a2[1] + a2[2]]
        else:
            sf = stats_final_items
            n = len(sf); k3 = ks - 29
            part = sf[n * k3 // 3: n * (k3 + 1) // 3]
            side = [part[:len(part) // 3], part[len(part) // 3: 2 * len(part) // 3], part[2 * len(part) // 3:]]
        for u in range(3):
            it += [W(ds=('T1_%d_%d' % (ks, u), 'XF%d' % c))]
            it.append(I('v_mfma_f32_32x32x16_bf16 %s, %s, %s, %s' % (acc(u), vr(b + 4 * u), vr(x), '0' if ks == 0 else acc(u))))
            if ks < 31: it += tr1(ks + 1, (u,))
            it += side[u]
            if u < len(vmg): it += vmg[u]
        for g in vmg[3:]: it += g
        if (ks & 7) == 5: it += cs1_read(d)
        if (ks & 3) == 1 and c < 6: it += stage(c + 1)
        if ks == 24: it += stage(7)
        R.run(it)
    mid = stamp() + cs1_mma(3) + cs_publish((0, 1, 2), CSA1) + [I('v_mov_b32 v%d, v%d' % (SEL2 + r, SEL1)) for r in range(4)]
    mid += [I('s_lshl_b32 s57, s20, 10'), I('s_lshl_b32 s58, s20, 9')]
    mid += [W(vm=('P2_0', 'P2_1'), ds='ALL'), I('s_barrier')] + stamp() + p2_dma(2) + p2_dma(3)
    mid += touch_code('B', 16, 4)
    if 'nopf' not in EXP:
        mid += [I('s_load_dwordx2 s[60:61], s[0:1], 48'), I('s_waitcnt lgkmcnt(0)'), I('s_mov_b32 s62, 1835008'), I('s_mov_b32 s63, 0x20000'), I('s_mov_b32 s98, 0x80000'), I('s_mov_b32 s99, 0x20000'),
                I('s_lshl_b32 s54, s2, 3'), I('s_add_u32 s54, s54, s20'), I('s_lshl_b32 s54, s54, 10'),
                VM('buffer_load_dwordx4 v[44:47], v22, s[60:63], s54 offen', 'PF'), VM('buffer_load_dwordx4 v[44:47], v22, s[96:99], s54 offen', 'PF')]
    R.run(mid)
    st_save = _st[0]
    a('s_cmp_eq_u32 s23, 0\ns_cbranch_scc0 K1_VARB')
    for var in range(2):
        if var == 1: a('K1_VARB:')
        RR = copy.deepcopy(R); RR.a = a; _st[0] = st_save
        main = tr2(0, var, 0) + tr2(0, var, 1)
        body = []
        for ks in range(32):
            b = BR + 8 * (ks & 1); x = XR + 4 * ks
            if ks == 15: body.append([W(vm=('P2_2', 'P2_3')), I('s_barrier')])
            body.append([W(ds='T2_%d_0' % ks), I('v_mfma_f32_32x32x16_bf16 %s, %s, %s, %s' % (acc(3), vr(b), vr(x), '0' if ks == 0 else acc(3)))])
            if ks < 31: body.append(tr2(ks + 1, var, 0))
            if var == 0: mf = I('v_mfma_f32_32x32x16_bf16 %s, %s, %s, %s' % (acc(4), vr(x), vr(b + 4), '0' if ks == 0 else acc(4)))
            else: mf = I('v_mfma_f32_32x32x16_bf16 %s, %s, %s, %s' % (acc(4), vr(b + 4), vr(x), '0' if ks == 0 else acc(4)))
            body.append([W(ds='T2_%d_1' % ks), mf])
            if ks < 31: body.append(tr2(ks + 1, var, 1))
            for dd, kk in enumerate((5, 8, 16, 18)):
                if ks == kk: body.append(cs2(dd, var)[0])
                if ks == kk + 1: body.append(cs2(dd, var)[1])
            if ks == 20: body.append(cs_publish((3, 4), CSA2, tmp=(19, 20, 144)))
            if ks == 23: body.append([W(ds='CSA'), I('s_barrier')])
            if ks == 25: body.append([DS('ds_read_b128 %s, v22 offset:%d' % (vr(144 + 4 * n), CSF + (3 + n) * 1024), 'CFF') for n in range(2)] + (v_pre() if var == 0 else []))
        side = []
        for u in range(3): side += mean_fix(u, 'MF%d' % u)
        for u in range(3): side += g_epilogue(u, (48, u * 1024))
        merged = merge(body, side)
        flat = []
        for x in merged:
            if isinstance(x, list): flat += x
            else: flat.append(x)
        RR.run(main + flat)
        fin = stamp() + stamp() + [W(ds='CFF'), I('v_mfma_f32_32x32x16_bf16 %s, %s, %s, %s' % (acc(3), vr(144), vr(MF), acc(3)))]
        if var == 0: fin.append(I('v_mfma_f32_32x32x16_bf16 %s, %s, %s, %s' % (acc(4), vr(MF), vr(148), acc(4))))
        else: fin.append(I('v_mfma_f32_32x32x16_bf16 %s, %s, %s, %s' % (acc(4), vr(148), vr(MF), acc(4))))
        fin += t_epilogue()
        if var == 0: fin += v_epilogue()
        else: fin += g_epilogue(4, (50, 0))
        fin += stamp() + ([I('s_waitcnt vmcnt(0)')] if STAMP else []) + stamp() + ([I('s_memrealtime s[94:95]')] if STAMP else []) + stamp_out(16 << 20)
        RR.run(fin)
        a('s_endpgm' if var == 0 else 'K1_END:\ns_endpgm')
    return a.finalize()

if __name__ == '__main__':
    print(len(build_k1().splitlines()))
```

```python
from asmlib import *
from sched import *
import os, struct, copy

QF, KF, VF, HF, OF, FLG = 0, 2 << 20, 4 << 20, 6 << 20, 14 << 20, 20 << 20
WS_RANGE = 32 << 20
STAMP = int(os.environ.get('STAMP', '0'))
EXP = os.environ.get('EXP', '')
NSPREAD = int(os.environ.get('NSPREAD', '20'))
STF = os.environ.get('STF', ' sc1')
FUSED = [False]
_st = [0]
def stamp():
    if not STAMP: return []
    k = _st[0]; _st[0] += 1
    return [I('s_memtime s[%d:%d]' % (64 + 2 * k, 65 + 2 * k))]
def stamp_out(base):
    if not STAMP: return []
    out = [I('s_waitcnt lgkmcnt(0)'), I('s_lshl_b32 s54, s2, 3'), I('s_add_u32 s54, s54, s20'), I('s_lshl_b32 s54, s54, 7'), I('s_add_u32 s54, s54, %d' % base), I('v_mov_b32 v1, 0')]
    for k in range(16):
        out += [I('v_mov_b32 v2, s%d' % (64 + 2 * k)), I('buffer_store_dword v2, v1, s[16:19], s54 offen offset:%d' % (4 * k))]
    return out

CSF, ST, XR0, P1G, P1U = 0, 5120, 6144, 71680, 108672
LDS_K1 = 145536
SLOT = 12288
XR, ACC, BR = 128, 48, 24
K0 = -2.0 * 0.7978845608028654 * 1.4426950408889634
K1C = K0 * 0.044715
def f2u(f): return struct.unpack('<I', struct.pack('<f', f))[0]
def vr(b, n=4): return 'v[%d:%d]' % (b, b + n - 1)
def acc(u): return vr(ACC + 16 * u, 16)
SEL1, RS, CSA1, CT1 = 96, 100, 104, 116
SQA, SQB = 15, 16
SEL2, CSA2, CT2 = 40, 128, 136
MF, C0, C1, IRS2, RSTD, CF = 4, 15, 16, 17, 18, 8
def t_base(d): return (P1G + SLOT, P1G + 2 * SLOT, P1G, XR0)[d]
def x_base(d): return (P1U + SLOT, P1U + 2 * SLOT, P1U, XR0 + 8192)[d]

def prologue(a):
    a('''
s_cmp_ge_u32 s2, 256
s_cbranch_scc1 K1_END
s_load_dwordx2 s[4:5], s[0:1], 0
s_load_dwordx2 s[28:29], s[0:1], 8
s_load_dwordx4 s[32:35], s[0:1], 32
s_load_dwordx2 s[16:17], s[0:1], 72
s_load_dwordx2 s[96:97], s[0:1], 16
v_lshrrev_b32 v1, 6, v0
v_and_b32 v0, 63, v0
v_readfirstlane_b32 s20, v1
s_and_b32 s36, s2, 7
s_lshr_b32 s37, s2, 3
s_and_b32 s38, s36, 1
s_lshl_b32 s38, s38, 2
s_and_b32 s39, s37, 3
s_add_u32 s21, s38, s39
s_lshr_b32 s38, s36, 1
s_lshl_b32 s38, s38, 3
s_lshr_b32 s39, s37, 2
s_add_u32 s22, s38, s39
s_lshr_b32 s30, s22, 1
s_and_b32 s23, s22, 1
s_mul_i32 s31, s30, 112
s_mul_i32 s38, s23, 48
s_add_u32 s31, s31, s38
s_lshl_b32 s21, s21, 3
s_add_u32 s21, s21, s20
s_lshl_b32 s24, s21, 15
s_add_u32 s25, s24, 8192
s_add_u32 s26, s24, 16384
s_add_u32 s27, s24, 24576
s_lshl_b32 s47, s20, 13
s_add_u32 s47, s47, %d
''' % XR0)
    a('''
v_lshrrev_b32 v2, 3, v0
v_and_b32 v3, 7, v0
v_lshrrev_b32 v4, 4, v0
v_xor_b32 v3, v3, v4
v_lshlrev_b32 v3, 4, v3
v_lshl_add_u32 v2, v2, 10, v3
v_xor_b32 v3, 64, v2
v_and_b32 v4, 31, v0
v_lshrrev_b32 v5, 5, v0
v_lshrrev_b32 v6, 1, v4
v_and_b32 v6, 7, v6
v_xor_b32 v6, v6, v5
v_lshlrev_b32 v6, 4, v6
v_lshl_add_u32 v4, v4, 7, v6
v_add_u32 v4, s47, v4
v_xor_b32 v5, 32, v4
v_xor_b32 v6, 64, v4
v_xor_b32 v7, 0x60, v4
''')
    a('''
v_bfe_u32 v28, v0, 4, 1
v_lshrrev_b32 v29, 5, v0
v_lshlrev_b32 v29, 3, v29
v_bfe_u32 v30, v0, 2, 2
v_add_u32 v29, v29, v30
v_and_b32 v30, 3, v0
v_lshlrev_b32 v30, 3, v30
v_mul_u32_u24 v8, %d, v28
v_mul_u32_u24 v31, 96, v29
v_add3_u32 v8, v8, v31, v30
v_add_u32 v8, %d, v8
s_mul_i32 s36, s20, 1536
v_add_u32 v1, s36, v8
v_lshlrev_b32 v13, 6, v29
v_lshl_add_u32 v13, v28, 5, v13
v_add_u32 v13, v13, v30
v_lshlrev_b32 v22, 4, v0
''' % (P1U - P1G, P1G))
    for i in range(3):
        a('''
v_add_u32 v31, %d, v0
v_mul_u32_u24 v32, 43691, v31
v_lshrrev_b32 v32, 18, v32
v_mul_u32_u24 v33, 6, v32
v_sub_u32 v33, v31, v33
v_mul_u32_u24 v32, 3584, v32
v_lshl_add_u32 v%d, v33, 4, v32
''' % (64 * i, 9 + i))
    a('''
v_and_b32 v31, 15, v0
v_cmp_eq_u32 vcc, v31, v28
v_mov_b32 v96, 0x3f803f80
v_cndmask_b32 v96, 0, v96, vcc
v_mov_b32 v97, v96
v_mov_b32 v98, v96
v_mov_b32 v99, v96
v_mov_b32 v15, 0
v_mov_b32 v16, 0
s_waitcnt lgkmcnt(0)
s_mov_b32 s6, 0x200000
s_mov_b32 s7, 0x20000
s_mov_b32 s18, %d
s_mov_b32 s19, 0x20000
s_cmp_lt_u32 s20, 4
s_cselect_b32 s8, s32, s34
s_cselect_b32 s9, s33, s35
s_mov_b32 s10, 1835008
s_mov_b32 s11, 0x20000
s_mov_b32 s41, %d
s_cselect_b32 s41, s41, %d
s_and_b32 s36, s20, 3
s_mul_i32 s40, s36, 114688
s_lshl_b32 s37, s31, 1
s_add_u32 s40, s40, s37
s_mul_i32 s37, s36, 3072
s_add_u32 s41, s41, s37
''' % (WS_RANGE, P1G, P1U))

def prologue2(a):
    a('''
s_mov_b32 s15, 0x20000
s_cmp_ge_u32 s20, 4
s_cselect_b32 s46, 1, 0
s_cmp_lt_u32 s20, 4
s_cbranch_scc1 K1_P2_QKV
s_cmp_eq_u32 s23, 0
s_cbranch_scc1 K1_P2_QKV
s_cmp_lt_u32 s20, 6
s_cselect_b32 s12, s32, s34
s_cselect_b32 s13, s33, s35
s_cselect_b32 s37, 0, 4224
s_mov_b32 s14, 1835008
v_lshrrev_b32 v31, 1, v0
v_mul_u32_u24 v31, 3584, v31
v_and_b32 v12, 1, v0
v_lshl_add_u32 v12, v12, 4, v31
s_and_b32 s36, s20, 1
s_mul_i32 s42, s36, 229376
s_mul_i32 s38, s30, 224
s_add_u32 s42, s42, s38
s_add_u32 s42, s42, 192
s_mov_b32 s43, 458752
s_mov_b32 s44, 114688
s_lshl_b32 s36, s36, 11
s_add_u32 s45, s37, s36
s_branch K1_P2_DONE
K1_P2_QKV:
s_mov_b32 s12, s28
s_mov_b32 s13, s29
s_mov_b32 s14, 1572864
v_lshrrev_b32 v31, 2, v0
v_mul_u32_u24 v31, 3072, v31
v_and_b32 v12, 3, v0
v_lshl_add_u32 v12, v12, 4, v31
s_and_b32 s36, s20, 3
s_mul_i32 s42, s36, 98304
s_lshl_b32 s37, s22, 6
s_lshl_b32 s38, s30, 6
s_add_u32 s38, s38, 2048
s_lshl_b32 s45, s36, 11
s_cmp_lt_u32 s20, 4
s_cselect_b32 s37, s37, s38
s_add_u32 s42, s42, s37
s_mov_b32 s43, 393216
s_mov_b32 s44, 49152
K1_P2_DONE:
s_cmp_eq_u32 s23, 0
s_cbranch_scc1 K1_XA
v_mul_u32_u24 v14, 4224, v28
v_lshl_add_u32 v14, v29, 5, v14
v_add_u32 v14, v14, v30
s_branch K1_XB
K1_XA:
v_mov_b32 v14, v13
K1_XB:
v_add_u32 v23, %d, v14
v_add_u32 v14, %d, v14
v_add_u32 v21, %d, v13
v_add_u32 v13, %d, v13
''' % (XR0 + 8192, P1U, XR0, P1G))
    a('''
s_mul_i32 s48, s21, 112
s_lshr_b32 s36, s31, 4
s_add_u32 s48, s48, s36
s_lshl_b32 s48, s48, 10
s_add_u32 s48, s48, %d
s_and_b32 s36, s22, 15
s_lshl_b32 s36, s36, 7
s_add_u32 s36, s36, s21
s_lshl_b32 s36, s36, 10
s_cmp_lt_u32 s22, 16
s_cselect_b32 s37, %d, %d
s_cselect_b32 s51, 0x%08x, 0x3f800000
s_add_u32 s49, s36, s37
s_lshl_b32 s36, s30, 7
s_add_u32 s36, s36, s21
s_lshl_b32 s36, s36, 10
s_add_u32 s36, s36, %d
s_add_u32 s37, s48, 3072
s_cmp_eq_u32 s23, 0
s_cselect_b32 s50, s36, s37
''' % (HF, QF, KF, f2u(0.25 * 1.4426950408889634), VF))

def w1_dma(d):
    out = [I('s_add_u32 s55, s40, %d' % (d * 128 * 3584))]
    for i in range(3):
        out.append(I('s_add_u32 m0, s41, %d' % ((d % 3) * SLOT + i * 1024)))
        out.append(VM('buffer_load_dwordx4 v%d, s[8:11], s55 offen lds' % (9 + i), 'W1_%d' % d))
    return out

def p2_dma(d):
    out = [I('s_mul_i32 s52, s43, %d' % d), I('s_add_u32 s52, s52, s42'), I('s_add_u32 s53, s52, s44'),
           I('s_cmp_eq_u32 s46, 0'), I('s_mov_b32 s56, %d' % t_base(d)), I('s_cselect_b32 s56, s56, %d' % x_base(d)), I('s_add_u32 s56, s56, s45')]
    for i in range(2):
        out.append(I('s_add_u32 m0, s56, %d' % (i * 1024)))
        out.append(VM('buffer_load_dwordx4 v12, s[12:15], s%d offen lds' % (52 + i), 'P2_%d' % d))
    return out

def x_dma(c):
    out = []
    for j in range(4):
        out.append(I('s_add_u32 m0, s47, %d' % ((c & 1) * 4096 + j * 1024 - c * 128)))
        out.append(VM('buffer_load_dwordx4 v%d, s[4:7], s%d offen offset:%d lds' % (2 + (j & 1), 24 + j, c * 128), 'X%d' % c))
    return out

def stage(c):
    out = [W(vm='X%d' % c)]
    for s in range(4):
        out.append(DS('ds_read_b128 %s, v%d offset:%d' % (vr(XR + 16 * c + 4 * s), 4 + s, (c & 1) * 4096), 'XF%d' % c))
    return out

B1 = (24, 36)
def tr1(ks, units=(0, 1, 2)):
    out = []
    d, k = ks >> 3, ks & 7
    for u in units:
        b = B1[ks & 1] + 4 * u
        for sec in range(2):
            out.append(DS('ds_read_b64_tr_b16 %s, v8 offset:%d' % (vr(b + 2 * sec, 2), (d % 3) * SLOT + k * 1536 + u * 32 + sec * 384), 'T1_%d_%d' % (ks, u)))
    return out

def cs1_read(d):
    return [DS('ds_read_b64_tr_b16 %s, v1 offset:%d' % (vr(CT1 + 4 * u + 2 * sec, 2), (d % 3) * SLOT + u * 32 + sec * 384), 'C1_%d' % d) for u in range(3) for sec in range(2)]
def cs1_mma(d):
    return [W(ds='C1_%d' % d)] + [I('v_mfma_f32_16x16x32_bf16 %s, %s, %s, %s' % (vr(CSA1 + 4 * u), vr(SEL1), vr(CT1 + 4 * u), '0' if d == 0 else vr(CSA1 + 4 * u))) for u in range(3)]

def tr2_addr(d, k, var, unit, sec):
    if unit == 0:
        reg, base = (13, t_base(d) - P1G) if d < 3 else (21, 0)
        return reg, base + k * 1024 + sec * 256
    reg, base = (14, x_base(d) - P1U) if d < 3 else (23, 0)
    return reg, base + (k * 1024 + sec * 256 if var == 0 else k * 512 + sec * 128)
def tr2(ks, var, unit):
    d, k = ks >> 3, ks & 7
    b = BR + 8 * (ks & 1) + 4 * unit
    out = []
    for sec in range(2):
        reg, off = tr2_addr(d, k, var, unit, sec)
        out.append(DS('ds_read_b64_tr_b16 %s, v%d offset:%d' % (vr(b + 2 * sec, 2), reg, off), 'T2_%d_%d' % (ks, unit)))
    return out
def cs2(d, var):
    out = []
    for unit in range(2):
        for sec in range(2):
            reg, off = tr2_addr(d, 0, var, unit, sec)
            if sec == 0: out.append(I('v_add_u32 v%d, s%d, v%d' % (19 + unit, 57 + (unit if var else 0), reg)))
            out.append(DS('ds_read_b64_tr_b16 %s, v%d offset:%d' % (vr(CT2 + 4 * unit + 2 * sec, 2), 19 + unit, off), 'C2_%d' % d))
    mm = [W(ds='C2_%d' % d)] + [I('v_mfma_f32_16x16x32_bf16 %s, %s, %s, %s' % (vr(CSA2 + 4 * u), vr(SEL2), vr(CT2 + 4 * u), '0' if d == 0 else vr(CSA2 + 4 * u))) for u in range(2)]
    return out, mm

def cs_publish(units, csa, tmp=(1, 2, 3)):
    ta, t2, t3 = tmp
    out = [I('s_lshr_b32 s59, s20, 2'), I('s_lshl_b32 s59, s59, 9'), I('s_and_b32 s56, s20, 3'), I('s_lshl_b32 s56, s56, 2'), I('s_add_u32 s59, s59, s56'),
           I('v_add_u32 v%d, s59, v22' % ta), I('s_mov_b64 exec, 0xffff')]
    for n, u in enumerate(units):
        for k in range(2):
            c = csa + 4 * n + k
            out += [I('v_cvt_pk_bf16_f32 v%d, v%d, v%d' % (t2, c, c)), I('v_lshlrev_b32 v%d, 16, v%d' % (t2, t2)), I('v_sub_f32 v%d, v%d, v%d' % (t3, c, t2)),
                    I('v_cvt_pk_bf16_f32 v%d, v%d, v%d' % (c, c, t3)),
                    DS('ds_write_b32 v%d, v%d offset:%d' % (ta, c, CSF + u * 1024 + 256 * k), 'CSA')]
    out += [I('s_mov_b64 exec, -1')]
    return out

def mean_fix(u, tag, swap=False):
    A = [DS('ds_read_b128 %s, v22 offset:%d' % (vr(CF), CSF + u * 1024), tag), W(ds=tag)]
    if swap: A.append(I('v_mfma_f32_32x32x16_bf16 %s, %s, %s, %s' % (acc(u), vr(MF), vr(CF), acc(u))))
    else: A.append(I('v_mfma_f32_32x32x16_bf16 %s, %s, %s, %s' % (acc(u), vr(CF), vr(MF), acc(u))))
    return A

def g_epilogue(u, soff_expr, tmp=(1, 2, 3, 12)):
    A = ACC + 16 * u
    out = []
    for q in range(2):
        g = [A + 4 * q + i for i in range(4)]
        uu = [A + 8 + 4 * q + i for i in range(4)]
        for i in range(4): out.append(I('v_mul_f32 v%d, v%d, v%d' % (tmp[i], g[i], g[i])))
        for i in range(4): out.append(I('v_fma_f32 v%d, v%d, v%d, v%d' % (tmp[i], tmp[i], C1, C0)))
        for i in range(4): out.append(I('v_mul_f32 v%d, v%d, v%d' % (tmp[i], tmp[i], g[i])))
        for i in range(4): out.append(I('v_exp_f32 v%d, v%d' % (tmp[i], tmp[i])))
        for i in range(4): out.append(I('v_mul_f32 v%d, v%d, v%d' % (g[i], g[i], uu[i])))
        for i in range(4): out.append(I('v_fma_f32 v%d, v%d, v%d, v%d' % (tmp[i], tmp[i], IRS2, IRS2)))
        for i in range(4): out.append(I('v_rcp_f32 v%d, v%d' % (tmp[i], tmp[i])))
        for i in range(4): out.append(I('v_mul_f32 v%d, v%d, v%d' % (g[i], g[i], tmp[i])))
        out.append(I('v_cvt_pk_bf16_f32 v%d, v%d, v%d' % (A + 8 + 2 * q, g[0], g[1])))
        out.append(I('v_cvt_pk_bf16_f32 v%d, v%d, v%d' % (A + 8 + 2 * q + 1, g[2], g[3])))
    sreg, add = soff_expr
    out.append(I('s_add_u32 s54, s%d, %d' % (sreg, add)))
    out.append(VM('buffer_store_dwordx4 %s, v22, s[16:19], s54 offen%s' % (vr(A + 8), STF), 'ST'))
    return out

def t_epilogue():
    A = ACC + 48
    o = XR + 32
    out = [I('v_mul_f32 v1, s51, v%d' % RSTD)]
    for r in range(16): out.append(I('v_mul_f32 v%d, v%d, v1' % (A + r, A + r)))
    for p in range(8): out.append(I('v_cvt_pk_bf16_f32 v%d, v%d, v%d' % (o + p, A + 2 * p, A + 2 * p + 1)))
    out.append(I('s_add_u32 s54, s49, 65536'))
    out.append(VM('buffer_store_dwordx4 %s, v22, s[16:19], s49 offen%s' % (vr(o), STF), 'ST'))
    out.append(VM('buffer_store_dwordx4 %s, v22, s[16:19], s54 offen%s' % (vr(o + 4), STF), 'ST'))
    return out

def v_pre():
    rs = XR + 48
    out = [I('v_lshrrev_b32 v19, 5, v0'), I('v_lshlrev_b32 v20, 4, v19'), I('s_lshl_b32 s59, s20, 7'), I('v_add_u32 v20, s59, v20')]
    for q in range(4):
        out.append(DS('ds_read_b128 %s, v20 offset:%d' % (vr(rs + 4 * q), ST + q * 32), 'VE'))
    out += [I('v_bfe_u32 v152, v0, 4, 1'), I('v_lshlrev_b32 v152, 16, v152'), I('v_lshl_add_u32 v152, v19, 8, v152'), I('v_and_b32 v19, 15, v0'), I('v_lshl_add_u32 v152, v19, 4, v152')]
    return out
def v_epilogue():
    A = ACC + 64
    rs, o = XR + 48, XR + 64
    out = [W(ds='VE')]
    for r in range(16): out.append(I('v_mul_f32 v%d, v%d, v%d' % (A + r, A + r, rs + r)))
    for p in range(8): out.append(I('v_cvt_pk_bf16_f32 v%d, v%d, v%d' % (o + p, A + 2 * p, A + 2 * p + 1)))
    out.append(VM('buffer_store_dwordx4 %s, v152, s[16:19], s50 offen%s' % (vr(o), STF), 'ST'))
    out.append(VM('buffer_store_dwordx4 %s, v152, s[16:19], s50 offen offset:512%s' % (vr(o + 4), STF), 'ST'))
    return out

def rne_bf16(dst, src):
    return [I('v_cvt_pk_bf16_f32 v%d, v%d, v%d' % (dst, src, src)), I('v_lshlrev_b32 v%d, 16, v%d' % (dst, dst))]

def stats_final():
    out = [I('v_and_b32 v19, 15, v0'), I('v_lshlrev_b32 v19, 2, v19'),
           DS('ds_bpermute_b32 v2, v19, v%d' % RS, 'BP'), DS('ds_bpermute_b32 v3, v19, v%d' % (RS + 1), 'BP'),
           I('v_add_f32 v16, v15, v16'), I('v_mov_b32 v17, v16'), I('v_permlane32_swap_b32 v16, v17'), I('v_add_f32 v16, v16, v17'),
           I('v_and_b32 v19, 16, v0'), I('v_cmp_ne_u32 vcc, 0, v19'), W(ds='BP'), I('v_cndmask_b32 v15, v2, v3, vcc'),
           I('v_mul_f32 v15, 0x3b000000, v15'), I('v_mul_f32 v16, 0x3b000000, v16'),
           I('v_fma_f32 v16, -v15, v15, v16'), I('v_max_f32 v16, 0, v16')]
    out += rne_bf16(16, 16)
    out += [I('v_add_f32 v16, 0x%08x, v16' % f2u(1e-5))]
    out += rne_bf16(16, 16)
    out += [I('v_sqrt_f32 v16, v16')]
    out += rne_bf16(16, 16)
    out += [I('v_sub_f32 v15, 0, v15'), I('v_cvt_pk_bf16_f32 v%d, v15, v15' % MF),
            I('v_mov_b32 v%d, v%d' % (MF + 1, MF)), I('v_mov_b32 v%d, v%d' % (MF + 2, MF)), I('v_mov_b32 v%d, v%d' % (MF + 3, MF)),
            I('v_rcp_f32 v%d, v16' % RSTD), I('v_mul_f32 v%d, v16, v16' % IRS2),
            I('v_mul_f32 v%d, 0x%08x, v%d' % (C0, f2u(K0), RSTD)), I('v_mul_f32 v19, v%d, v%d' % (RSTD, RSTD)),
            I('v_mul_f32 v19, v19, v%d' % RSTD), I('v_mul_f32 v%d, 0x%08x, v19' % (C1, f2u(K1C)))]
    out += [I('v_and_b32 v19, 31, v0'), I('v_lshlrev_b32 v19, 2, v19'), I('s_lshl_b32 s54, s20, 7'), I('v_add_u32 v19, s54, v19'),
            DS('ds_write_b32 v19, v%d offset:%d' % (RSTD, ST), 'STW')]
    return out

def groups(items):
    g, cur = [], []
    for x in items:
        cur.append(x)
        if x.q == 'vm': g.append(cur); cur = []
    assert not cur
    return g

def touch():
    if 'touch' not in EXP: return []
    out = []
    out += [I('s_lshr_b32 s52, s2, 5'), I('s_and_b32 s52, s52, 3'), I('s_lshl_b32 s52, s52, 3'), I('s_add_u32 s52, s52, s20'), I('s_lshl_b32 s52, s52, 13'),
            I('s_lshr_b32 s53, s21, 3'), I('s_lshl_b32 s53, s53, 18'), I('s_add_u32 s52, s52, s53'), I('v_lshlrev_b32 v31, 7, v0'),
            VM('buffer_load_dword v252, v31, s[4:7], s52 offen', 'PF')]
    out += [I('s_lshr_b32 s52, s2, 3'), I('s_and_b32 s52, s52, 3'), I('s_lshl_b32 s52, s52, 7'), I('s_and_b32 s53, s20, 1'), I('s_lshl_b32 s53, s53, 6'), I('s_add_u32 s52, s52, s53'),
            I('v_add_u32 v31, s52, v0'), I('v_mul_u32_u24 v32, 3584, v31'), I('s_lshl_b32 s53, s31, 1'), I('s_and_b32 s52, s20, 2'), I('s_lshl_b32 s52, s52, 6'), I('s_add_u32 s53, s53, s52'),
            VM('buffer_load_dword v253, v32, s[8:11], s53 offen', 'PF')]
    out += [I('v_mul_u32_u24 v32, 3072, v31'), I('s_lshl_b32 s53, s22, 6'), I('s_lshl_b32 s52, s30, 6'), I('s_add_u32 s52, s52, 2048'), I('s_and_b32 s56, s20, 2'), I('s_cmp_eq_u32 s56, 0'), I('s_cselect_b32 s53, s53, s52'),
            I('s_mov_b32 s60, s28'), I('s_mov_b32 s61, s29'), I('s_mov_b32 s62, 1572864'), I('s_mov_b32 s63, 0x20000'),
            VM('buffer_load_dword v254, v32, s[60:63], s53 offen', 'PF')]
    return out
def touch_code(tag, first_kb, nwaves):
    if 'notouch' in EXP or 'nocode' in EXP: return []
    L = 'K1_TC%s' % tag
    return [I('s_cmp_ge_u32 s20, %d' % nwaves), I('s_cbranch_scc1 %s' % L),
            I('s_getpc_b64 s[52:53]'), I(L + 'P:'), I('s_sub_u32 s52, s52, %sP-k1_kernel' % L), I('s_subb_u32 s53, s53, 0'),
            I('s_lshl_b32 s56, s20, 13'), I('s_add_u32 s56, s56, %d' % (first_kb * 1024)), I('v_lshl_add_u32 v31, v0, 7, s56'),
            I('v_min_u32 v31, CODE_END-k1_kernel-4, v31'), I('global_load_dword v%d, v31, s[52:53]' % (255 if tag == 'A' else 47)), I(L + ':')]

def build_k1():
    a = Asm()
    prologue(a)
    R = Resolver(a)
    pre = ([I('s_memrealtime s[92:93]')] if STAMP else []) + stamp() + w1_dma(0) + x_dma(0) + x_dma(1)
    R.run(pre)
    prologue2(a)
    R.run(touch_code('A', 0, 3) + touch())
    pre = [] if FUSED[0] else [I('s_or_b32 s52, s2, s20'), I('s_cmp_lg_u32 s52, 0'), I('s_cbranch_scc1 K1_NOZ'),
           I('v_mov_b32 v32, 0'), I('v_mov_b32 v33, 0'), I('v_mov_b32 v34, 0'), I('v_mov_b32 v35, 0'), I('s_mov_b32 s52, %d' % FLG)]
    if not FUSED[0]:
        pre += [I('buffer_store_dwordx4 v[32:35], v22, s[16:19], s52 offen offset:%d' % (1024 * i)) for i in range(4)]
        pre += [I('s_waitcnt vmcnt(0)'), I('K1_NOZ:')]
    pre += stamp() + [W(vm='W1_0'), I('s_barrier')] + stamp()
    pre += stage(0) + tr1(0)
    R.run(pre)
    stats_final_items = stats_final()
    for ks in range(32):
        c, d = ks >> 2, ks >> 3
        it = []
        b = B1[ks & 1]; x = XR + 4 * ks
        vmg = []
        if (ks & 7) == 7 and ks < 31:
            it += cs1_mma(d)
            it += stamp() + [W(vm='W1_%d' % (d + 1), ds=['T1_%d_%d' % (ks, u) for u in range(3)]), I('s_barrier')]
            vmg += groups(w1_dma(3)) if d == 0 else groups(p2_dma(d - 1))
        if (ks & 3) == 3 and c + 3 <= 7:
            g = groups(x_dma(c + 3)); g[0] = [W(ds='XF%d' % (c + 1))] + g[0]; vmg += g
        if ks == 0: vmg += groups(w1_dma(1))
        if ks == 1: vmg += groups(x_dma(2))
        if ks == 5: vmg += groups(w1_dma(2))
        def stat(k2):
            x2 = XR + 4 * k2
            sq = []
            for j in range(4):
                t = 17 + 2 * (j & 1)
                sq.append([I('v_lshlrev_b32 v%d, 16, v%d' % (t, x2 + j)), I('v_and_b32 v%d, 0xffff0000, v%d' % (t + 1, x2 + j)),
                           I('v_fmac_f32 v%d, v%d, v%d' % (SQA, t, t)), I('v_fmac_f32 v%d, v%d, v%d' % (SQB, t + 1, t + 1))])
            return [[W(ds='XF%d' % (k2 >> 2))] + sq[0] + [I('v_mfma_f32_16x16x32_bf16 %s, %s, %s, %s' % (vr(RS), vr(SEL1), vr(x2), '0' if k2 == 0 else vr(RS)))], sq[1] + sq[2], sq[3]]
        if ks < 26: side = stat(ks)
        elif ks < 29:
            a1, a2 = stat(26 + 2 * (ks - 26)), stat(27 + 2 * (ks - 26))
            side = [a1[0] + a1[1], a1[2] + a2[0], a2[1] + a2[2]]
        else:
            sf = stats_final_items
            n = len(sf); k3 = ks - 29
            part = sf[n * k3 // 3: n * (k3 + 1) // 3]
            side = [part[:len(part) // 3], part[len(part) // 3: 2 * len(part) // 3], part[2 * len(part) // 3:]]
        for u in range(3):
            it += [W(ds=('T1_%d_%d' % (ks, u), 'XF%d' % c))]
            it.append(I('v_mfma_f32_32x32x16_bf16 %s, %s, %s, %s' % (acc(u), vr(b + 4 * u), vr(x), '0' if ks == 0 else acc(u))))
            if ks < 31: it += tr1(ks + 1, (u,))
            it += side[u]
            if u < len(vmg): it += vmg[u]
        for g in vmg[3:]: it += g
        if (ks & 7) == 5: it += cs1_read(d)
        if (ks & 3) == 1 and c < 6: it += stage(c + 1)
        if ks == 24: it += stage(7)
        R.run(it)
    mid = stamp() + cs1_mma(3) + cs_publish((0, 1, 2), CSA1) + [I('v_mov_b32 v%d, v%d' % (SEL2 + r, SEL1)) for r in range(4)]
    mid += [I('s_lshl_b32 s57, s20, 10'), I('s_lshl_b32 s58, s20, 9')]
    mid += [W(vm=('P2_0', 'P2_1'), ds='ALL'), I('s_barrier')] + stamp() + p2_dma(2) + p2_dma(3)
    mid += touch_code('B', 16, 4)
    if 'nopf' not in EXP:
        mid += [I('s_load_dwordx2 s[60:61], s[0:1], 48'), I('s_waitcnt lgkmcnt(0)'), I('s_mov_b32 s62, 1835008'), I('s_mov_b32 s63, 0x20000'), I('s_mov_b32 s98, 0x80000'), I('s_mov_b32 s99, 0x20000'),
                I('s_lshl_b32 s54, s2, 3'), I('s_add_u32 s54, s54, s20'), I('s_lshl_b32 s54, s54, 10'),
                VM('buffer_load_dwordx4 v[44:47], v22, s[60:63], s54 offen', 'PF'), VM('buffer_load_dwordx4 v[44:47], v22, s[96:99], s54 offen', 'PF')]
    R.run(mid)
    st_save = _st[0]
    a('s_cmp_eq_u32 s23, 0\ns_cbranch_scc0 K1_VARB')
    for var in range(2):
        if var == 1: a('K1_VARB:')
        RR = copy.deepcopy(R); RR.a = a; _st[0] = st_save
        main = tr2(0, var, 0) + tr2(0, var, 1)
        body = []
        for ks in range(32):
            b = BR + 8 * (ks & 1); x = XR + 4 * ks
            if ks == 15: body.append([W(vm=('P2_2', 'P2_3')), I('s_barrier')])
            body.append([W(ds='T2_%d_0' % ks), I('v_mfma_f32_32x32x16_bf16 %s, %s, %s, %s' % (acc(3), vr(b), vr(x), '0' if ks == 0 else acc(3)))])
            if ks < 31: body.append(tr2(ks + 1, var, 0))
            if var == 0: mf = I('v_mfma_f32_32x32x16_bf16 %s, %s, %s, %s' % (acc(4), vr(x), vr(b + 4), '0' if ks == 0 else acc(4)))
            else: mf = I('v_mfma_f32_32x32x16_bf16 %s, %s, %s, %s' % (acc(4), vr(b + 4), vr(x), '0' if ks == 0 else acc(4)))
            body.append([W(ds='T2_%d_1' % ks), mf])
            if ks < 31: body.append(tr2(ks + 1, var, 1))
            for dd, kk in enumerate((5, 8, 16, 18)):
                if ks == kk: body.append(cs2(dd, var)[0])
                if ks == kk + 1: body.append(cs2(dd, var)[1])
            if ks == 20: body.append(cs_publish((3, 4), CSA2, tmp=(19, 20, 144)))
            if ks == 23: body.append([W(ds='CSA'), I('s_barrier')])
            if ks == 25: body.append([DS('ds_read_b128 %s, v22 offset:%d' % (vr(144 + 4 * n), CSF + (3 + n) * 1024), 'CFF') for n in range(2)] + (v_pre() if var == 0 else []))
        side = []
        for u in range(3): side += mean_fix(u, 'MF%d' % u)
        for u in range(3): side += g_epilogue(u, (48, u * 1024))
        merged = merge(body, side)
        flat = []
        for x in merged:
            if isinstance(x, list): flat += x
            else: flat.append(x)
        RR.run(main + flat)
        fin = stamp() + stamp() + [W(ds='CFF'), I('v_mfma_f32_32x32x16_bf16 %s, %s, %s, %s' % (acc(3), vr(144), vr(MF), acc(3)))]
        if var == 0: fin.append(I('v_mfma_f32_32x32x16_bf16 %s, %s, %s, %s' % (acc(4), vr(MF), vr(148), acc(4))))
        else: fin.append(I('v_mfma_f32_32x32x16_bf16 %s, %s, %s, %s' % (acc(4), vr(148), vr(MF), acc(4))))
        fin += t_epilogue()
        if var == 0: fin += v_epilogue()
        else: fin += g_epilogue(4, (50, 0))
        fin += stamp() + ([I('s_waitcnt vmcnt(0)')] if STAMP else []) + stamp() + ([I('s_memrealtime s[94:95]')] if STAMP else []) + stamp_out(16 << 20)
        RR.run(fin)
        if FUSED[0]: a('s_branch PHASE2' if var == 0 else 's_nop 0')
        else: a('s_endpgm' if var == 0 else 'K1_END:\ns_endpgm')
    if FUSED[0]: return a
    return a.finalize()

if __name__ == '__main__':
    print(len(build_k1().splitlines()))
```

```python
from asmlib import *
from sched import *
from k1 import QF, KF, VF, HF, OF, FLG, WS_RANGE, vr, f2u
import copy, os
import k1 as K1M
STAMP = int(os.environ.get('STAMP', '0'))
EARLYBAR = int(os.environ.get('EARLYBAR', '0'))
FLAGPOS = int(os.environ.get('FLAGPOS', '27'))
_st = [0]
SB0 = 96
def stamp():
    if not STAMP: return []
    k = _st[0]; _st[0] += 1
    return [I('s_memrealtime s[96:97]' if STAMP == 2 else 's_memtime s[96:97]'), I('s_waitcnt lgkmcnt(0)'), I('v_mov_b32 v%d, s96' % (240 + k))]
def stamp_out(base):
    if not STAMP: return []
    out = [I('s_lshl_b32 s54, s2, 3'), I('s_add_u32 s54, s54, s20'), I('s_lshl_b32 s54, s54, 7'), I('s_add_u32 s54, s54, %d' % base), I('v_mov_b32 v1, 0')]
    for k in range(16):
        out += [I('buffer_store_dword v%d, v1, s[16:19], s54 offen offset:%d' % (240 + k, 4 * k))]
    return out

DEPTH = int(os.environ.get('DEPTH', '8'))
GATE = int(os.environ.get('GATE', '-1'))
STS = eval(os.environ.get('STS', '(4, 12, 20, 28)'))
PSLEEP = int(os.environ.get('PSLEEP', '1'))
RSZ = max(17408, DEPTH * 2048 + 1024)
FLAG = 4 * RSZ
LDS_K2 = FLAG + 256
NEG_BIG = 0xf149f2ca
GA = 16; GB = GA + 8 * DEPTH; GACC = GB + 16
AQ, AK, AV, SA, SB, CN, CT, AP, AO = 16, 24, 64, 144, 160, 176, 192, 208, 216
XRES = 232

def prologue(a):
    if K1M.FUSED[0]:
        a('''
PHASE2:
s_waitcnt vmcnt(0) lgkmcnt(0)
v_lshl_add_u32 v0, s20, 6, v0
''')
    else:
        a('''
s_cmp_ge_u32 s2, 256
s_cbranch_scc1 K2_END
''')
    a('''
s_load_dwordx2 s[4:5], s[0:1], 0
s_load_dwordx2 s[8:9], s[0:1], 16
s_load_dwordx2 s[12:13], s[0:1], 48
s_load_dwordx4 s[24:27], s[0:1], 56
s_load_dwordx2 s[16:17], s[0:1], 72
v_mov_b32 v15, v0
v_lshrrev_b32 v1, 6, v0
v_and_b32 v0, 63, v0
v_readfirstlane_b32 s20, v1
s_and_b32 s36, s2, 7
s_lshr_b32 s37, s2, 3
s_lshl_b32 s21, s36, 2
s_lshr_b32 s38, s37, 3
s_add_u32 s21, s21, s38
s_and_b32 s22, s37, 7
v_lshlrev_b32 v14, 4, v0
v_lshrrev_b32 v1, 3, v15
v_and_b32 v2, 7, v15
v_lshlrev_b32 v13, 10, v1
v_lshl_add_u32 v13, v2, 4, v13
v_mul_u32_u24 v12, 272, v1
v_lshl_add_u32 v12, v2, 5, v12
s_lshl_b32 s23, s21, 16
s_lshl_b32 s36, s22, 7
s_add_u32 s23, s23, s36
v_mov_b32 v1, 0
v_mov_b32 v2, %d
v_and_b32 v3, 3, v0
v_lshl_add_u32 v2, v3, 2, v2
ds_write_b32 v2, v1
s_waitcnt lgkmcnt(0)
s_mov_b32 s6, 0x200000
s_mov_b32 s7, 0x20000
s_mov_b32 s10, 0x80000
s_mov_b32 s11, 0x20000
s_mov_b32 s14, 1835008
s_mov_b32 s15, 0x20000
s_mov_b32 s18, %d
s_mov_b32 s19, 0x20000
s_mov_b32 s28, s24
s_mov_b32 s29, s25
s_mov_b32 s30, 0x200000
s_mov_b32 s31, 0x20000
s_mov_b32 s32, s26
s_mov_b32 s33, s27
s_mov_b32 s34, 256
s_mov_b32 s35, 0x20000
s_barrier
''' % (FLAG, WS_RANGE))
    if K1M.FUSED[0]:
        a('''
s_cmp_lg_u32 s20, 4
s_cbranch_scc1 K2_NOF1
v_mov_b32 v1, 1
v_mov_b32 v2, s2
s_mov_b64 exec, 1
buffer_store_byte v1, v2, s[32:35], 0 offen sc1
s_mov_b64 exec, -1
K2_NOF1:
''')

def final_reduce(tagp):
    out = stamp() + [I('v_add_u32 v11, %d, v12' % (2 * RSZ)), I('s_barrier')] + stamp()
    T = 192
    for g in range(4):
        for hlf in range(2):
            out.append(DS('ds_read_b128 %s, v%d offset:%d' % (vr(T + 8 * g + 4 * hlf), 12 if g < 2 else 11, (g & 1) * RSZ + 16 * hlf), tagp + 'R'))
    out.append(W(vm='XRES'))
    for i in range(4):
        out.append(I('v_lshlrev_b32 v%d, 16, v%d' % (64 + 2 * i, XRES + i)))
        out.append(I('v_and_b32 v%d, 0xffff0000, v%d' % (65 + 2 * i, XRES + i)))
    out.append(W(ds=tagp + 'R'))
    for i in range(8): out.append(I('v_add_f32 v%d, v%d, v%d' % (T + i, T + i, T + 8 + i)))
    for i in range(8): out.append(I('v_add_f32 v%d, v%d, v%d' % (T + 16 + i, T + 16 + i, T + 24 + i)))
    for i in range(8): out.append(I('v_add_f32 v%d, v%d, v%d' % (T + i, T + i, T + 16 + i)))
    for i in range(8): out.append(I('v_add_f32 v%d, v%d, v%d' % (T + i, T + i, 64 + i)))
    for i in range(4): out.append(I('v_cvt_pk_bf16_f32 v%d, v%d, v%d' % (72 + i, T + 2 * i, T + 2 * i + 1)))
    out.append(VM('buffer_store_dwordx4 v[72:75], v13, s[28:31], s23 offen', 'OUT'))
    out += stamp() + stamp_out(17 << 20)
    out.append(I('s_endpgm'))
    return out

def lds_spin(name, off, areg=4, treg=5):
    return [I(name + ':'), DS('ds_read_b32 v%d, v%d offset:%d' % (treg, areg, off), 'FL' + name), W(ds='ALL'), I('v_readfirstlane_b32 s52, v%d' % treg),
            I('s_cmp_lg_u32 s52, 0'), I('s_cbranch_scc1 %s_OK' % name), I('s_sleep 1'), I('s_branch %s' % name), I(name + '_OK:')]

def gemm(a):
    R = Resolver(a)
    txt = ('''
v_lshrrev_b32 v1, 3, v0
v_and_b32 v2, 7, v0
v_bfe_u32 v3, v0, 4, 1
v_lshlrev_b32 v3, 2, v3
v_xor_b32 v2, v2, v3
v_lshlrev_b32 v1, 10, v1
v_lshl_add_u32 v1, v2, 4, v1
v_lshrrev_b32 v2, 5, v0
v_bfe_u32 v3, v0, 2, 2
v_lshl_add_u32 v2, v2, 2, v3
v_lshlrev_b32 v2, 7, v2
v_lshrrev_b32 v3, 1, v3
v_lshl_add_u32 v2, v3, 6, v2
v_bfe_u32 v3, v0, 4, 1
v_lshl_add_u32 v2, v3, 5, v2
v_and_b32 v3, 3, v0
v_lshl_add_u32 v2, v3, 3, v2
s_mul_i32 s40, s20, %d
v_add_u32 v2, s40, v2
v_xor_b32 v3, 64, v2
s_mul_i32 s41, s21, 224
s_mul_i32 s36, s20, 28
s_add_u32 s41, s41, s36
s_lshl_b32 s41, s41, 10
s_add_u32 s41, s41, %d
s_add_u32 s42, s41, 114688
s_mul_i32 s43, s20, 458752
s_lshl_b32 s36, s22, 7
s_add_u32 s43, s43, s36
s_lshl_b32 s44, s21, 6
s_lshl_b32 s37, s20, 3
s_add_u32 s44, s44, s37
s_lshl_b32 s44, s44, 10
s_add_u32 s44, s44, %d
s_add_u32 s45, s44, 32768
s_lshl_b32 s46, s20, 17
s_add_u32 s46, s46, s36
v_mov_b32 v4, %d
''' % (RSZ, HF, OF, FLAG))
    a(txt)
    def LA(s):
        out = []
        for t in range(2):
            dst = vr(GA + 8 * (s % DEPTH) + 4 * t)
            if s < 28:
                out.append(I('s_add_u32 s50, s%d, %d' % (41 + t, s * 1024)))
                out.append(VM('buffer_load_dwordx4 %s, v14, s[16:19], s50 offen%s' % (dst, ' sc1' if K1M.FUSED[0] else ''), 'A%d' % s))
            else:
                out.append(I('s_add_u32 s50, s%d, %d' % (44 + t, (s - 28) * 1024)))
                out.append(VM('buffer_load_dwordx4 %s, v14, s[16:19], s50 offen sc1' % dst, 'A%d' % s))
        return out
    def LW(s):
        out = []
        for i in range(2):
            if s < 28:
                out.append(I('s_add_u32 s51, s43, %d' % ((16 * s + 8 * i) * 1024))); srd = 's[12:15]'
            else:
                out.append(I('s_add_u32 s51, s46, %d' % ((16 * (s - 28) + 8 * i) * 1024))); srd = 's[8:11]'
            out.append(I('s_add_u32 m0, s40, %d' % ((s % DEPTH) * 2048 + i * 1024)))
            out.append(VM('buffer_load_dwordx4 v1, %s, s51 offen lds' % srd, 'W%d' % s))
        return out
    def TR(s):
        out = [W(vm='W%d' % s)]
        for cti in range(2):
            for sec in range(2):
                out.append(DS('ds_read_b64_tr_b16 %s, v%d offset:%d' % (vr(GB + 8 * (s & 1) + 4 * cti + 2 * sec, 2), 2 + cti, (s % DEPTH) * 2048 + sec * 1024), 'T%d' % s))
        return out
    _st[0] = 0
    it = stamp() + ([I('s_barrier')] if EARLYBAR else [])
    if K1M.FUSED[0]:
        it.append(VM('buffer_load_dwordx4 %s, v13, s[4:7], s23 offen' % vr(XRES), 'XRES'))
        for s in range(8): it += LW(s)
        it += lds_spin('K2_GW1', 4)
        for s in range(8): it += LA(s)
    else:
        for s in range(DEPTH): it += LW(s) + LA(s)
    if not K1M.FUSED[0]: it.append(VM('buffer_load_dwordx4 %s, v13, s[4:7], s23 offen' % vr(XRES), 'XRES'))
    it += stamp() + TR(0)
    pend = []
    for s in range(36):
        if s in STS: it += stamp()
        if s == GATE: it += [I('v_mov_b32 v5, 1'), DS('ds_write_b32 v4, v5 offset:12', 'GT')]
        it.append(W(vm='A%d' % s, ds='T%d' % s))
        mm = []
        for t in range(2):
            for cti in range(2):
                ac = vr(GACC + 16 * (2 * t + cti), 16)
                mm.append(I('v_mfma_f32_32x32x16_bf16 %s, %s, %s, %s' % (ac, vr(GB + 8 * (s & 1) + 4 * cti), vr(GA + 8 * (s % DEPTH) + 4 * t), '0' if s == 0 else ac)))
        it += mm[:2]
        if s < 35: it += TR(s + 1)
        it += mm[2:]
        n = s + DEPTH
        if n < 36: it += LW(n)
        n = s + DEPTH - 1
        if DEPTH <= n < 28: it += LA(n)
        if s == FLAGPOS:
            it += [I('K2_FW:'), DS('ds_read_b32 v5, v4', 'FL'), W(ds='ALL'), I('v_readfirstlane_b32 s52, v5'),
                   I('s_cmp_lg_u32 s52, 0'), I('s_cbranch_scc1 K2_FOK'), I('s_sleep 1'), I('s_branch K2_FW'), I('K2_FOK:')]
            it += stamp()
            for p in range(28, min(36, n + 1)): it += LA(p)
        elif s > FLAGPOS and 28 <= n < 36: it += LA(n)
    it += [I('v_and_b32 v5, 31, v0'), I('v_mul_u32_u24 v5, 272, v5'), I('v_lshrrev_b32 v6, 5, v0'), I('v_lshl_add_u32 v5, v6, 4, v5'), I('v_add_u32 v5, s40, v5')]
    for t in range(2):
        for cti in range(2):
            for q in range(4):
                it.append(DS('ds_write_b128 v5, %s offset:%d' % (vr(GACC + 16 * (2 * t + cti) + 4 * q), t * 32 * 272 + cti * 128 + q * 32), 'RW'))
    it.append(W(ds='ALL'))
    it += final_reduce('G')
    R.run(it)

_l = [0]
def lab(p):
    _l[0] += 1
    return 'K2_%s%d' % (p, _l[0])

def attn(a):
    R = Resolver(a)
    a('''
s_setprio 3
s_sub_u32 s36, s20, 4
s_lshl_b32 s40, s22, 2
s_add_u32 s40, s40, s36
s_lshl_b32 s41, s21, 1
s_sub_u32 s41, s41, 8
s_lshl_b32 s42, s40, 16
v_and_b32 v1, 15, v0
v_lshrrev_b32 v2, 5, v0
v_lshlrev_b32 v1, 4, v1
v_lshl_add_u32 v1, v2, 8, v1
v_bfe_u32 v3, v0, 4, 1
v_lshl_add_u32 v1, v3, 9, v1
v_and_b32 v3, 31, v0
v_lshlrev_b32 v2, 2, v2
v_sub_u32 v3, v3, v2
v_mov_b32 v4, 0x%08x
''' % NEG_BIG)
    _st[0] = 0
    it = stamp()
    SC = ' sc1' if K1M.FUSED[0] else ''
    if K1M.FUSED[0]:
        it += [I('v_mov_b32 v7, %d' % FLAG), I('s_cmp_lg_u32 s20, 4'), I('s_cbranch_scc1 K2_AW1'),
               I('s_lshr_b32 s36, s21, 2'), I('s_max_i32 s37, s41, 0'), I('s_lshr_b32 s37, s37, 3'),
               I('v_bfe_u32 v5, v0, 1, 2'), I('v_mov_b32 v6, 0')]
        for sr in (36, 37):
            it += [I('s_and_b32 s38, s%d, 3' % sr), I('s_cmp_ge_u32 s%d, 4' % sr), I('s_mov_b32 s39, 0x00010001'), I('s_cselect_b32 s39, 0x01000100, s39'),
                   I('v_cmp_eq_u32 vcc, s38, v5'), I('v_mov_b32 v8, s39'), I('v_cndmask_b32 v8, 0, v8, vcc'), I('v_or_b32 v6, v6, v8')]
        it += [I('v_lshlrev_b32 v5, 2, v0'),
               I('K2_P1:'), VM('buffer_load_dword v8, v5, s[32:35], 0 offen sc1', 'PL1'), W(vm='ALL'),
               I('v_lshrrev_b32 v9, 1, v8'), I('v_or_b32 v8, v8, v9'), I('v_and_b32 v8, v8, v6'), I('v_cmp_eq_u32 vcc, v8, v6'),
               I('s_cmp_eq_u64 vcc, -1'), I('s_cbranch_scc1 K2_P1D'), I('s_sleep 1'), I('s_branch K2_P1'), I('K2_P1D:'),
               I('v_mov_b32 v8, 1'), DS('ds_write_b32 v7, v8 offset:4', 'FW1'), W(ds='ALL')]
        it += lds_spin('K2_AW1', 4, 7, 8)
    it += [I('s_lshl_b32 s37, s21, 11'), I('s_add_u32 s37, s37, s42')]
    it.append(VM('buffer_load_dwordx4 %s, v14, s[16:19], s37 offen%s' % (vr(AQ), SC), 'Q0'))
    def kload(jj):
        return [I('s_add_i32 s36, s41, %d' % jj), I('s_max_i32 s36, s36, 0'), I('s_lshl_b32 s36, s36, 10'), I('s_add_u32 s%d, s36, s42' % (44 + jj)),
                I('s_add_u32 s36, s%d, %d' % (44 + jj, KF)),
                VM('buffer_load_dwordx4 %s, v14, s[16:19], s36 offen%s' % (vr(AK + 4 * jj), SC), 'K%d' % jj)]
    def vload(jj):
        return [I('s_add_u32 s36, s%d, %d' % (44 + jj, VF)), VM('buffer_load_dwordx4 %s, v1, s[16:19], s36 offen%s' % (vr(AV + 8 * jj), SC), 'V%d' % jj)]
    for jj in range(8, -1, -1): it += kload(jj)
    it.append(VM('buffer_load_dwordx4 %s, v14, s[16:19], s37 offen offset:1024%s' % (vr(AQ + 4), SC), 'Q1'))
    it += kload(9)
    if EARLYBAR: it.append(I('s_barrier'))
    for r in range(16):
        it.append(I('v_cmp_ge_i32 s[%d:%d], v3, %d' % (64 + 2 * r, 65 + 2 * r, 8 * (r >> 2) + (r & 3))))
    for jj in range(10):
        for r in range(4): it.append(I('v_mov_b32 v%d, 0x3f803f80' % (AV + 8 * jj + 4 + r)))
    vl = [vload(jj) for jj in list(range(8, -1, -1)) + [9]] + [[VM('buffer_load_dwordx4 %s, v13, s[4:7], s23 offen' % vr(XRES), 'XRES')]]
    def smfma(qi, jp, buf, cmode):
        jj = qi + jp
        out = [W(vm=('Q%d' % qi, 'K%d' % jj))]
        if jp == 8 or jp == 0:
            val = '0' if cmode == 'A' else 'v%d' % CN
            for r in range(16):
                m = 's[%d:%d]' % (64 + 2 * r, 65 + 2 * r)
                if jp == 8: out.append(I('v_cndmask_b32 v%d, v4, %s, %s' % (CT + r, val, m)))
                else: out.append(I('v_cndmask_b32 v%d, %s, v4, %s' % (CT + r, val, m)))
            c = vr(CT, 16)
        else:
            c = '0' if cmode == 'A' else vr(CN, 16)
        out.append(I('v_mfma_f32_32x32x16_bf16 %s, %s, %s, %s' % (vr(buf, 16), vr(AK + 4 * jj), vr(AQ + 4 * qi), c)))
        return out
    def one_pass(qi, cmode, fast, proc):
        bufs = (SA, SB)
        out = smfma(qi, 8, bufs[0], cmode)
        Ld = lab('D')
        for n, jp in enumerate(range(8, -1, -1)):
            if jp > 0:
                Ls = lab('S')
                if not fast: out += [I('s_add_i32 s36, s41, %d' % (qi + jp - 1)), I('s_cmp_lt_i32 s36, 0'), I('s_cbranch_scc1 %s' % Ls)]
                out += smfma(qi, jp - 1, bufs[(n + 1) & 1], cmode)
                if not fast: out += [I(Ls + ':')]
            out += proc(jp, bufs[n & 1])
            if jp > 0 and not fast: out += [I('s_add_i32 s36, s41, %d' % (qi + jp - 1)), I('s_cmp_lt_i32 s36, 0'), I('s_cbranch_scc1 %s' % Ld)]
        if not fast: out += [I(Ld + ':'), I('s_nop 15')]
        return out
    def body(fast):
        it = []
        swapped = set()
        if not fast:
            for g in vl: it += g
            it.append(W(vm='ALL'))
            for jj in range(10):
                for r in range(4): it.append(I('v_permlane16_swap_b32 v%d, v%d' % (AV + 8 * jj + r, AV + 8 * jj + 4 + r)))
                swapped.add(jj)
        for qi in range(2):
            pend = list(vl) if (fast and qi == 0) else []
            def procA(jp, b):
                o = [I('v_max3_f32 v5, v%d, v%d, v5' % (b + 2 * i, b + 2 * i + 1)) for i in range(8)]
                if pend: o += pend.pop(0)
                if pend and jp < 3: o += pend.pop(0)
                return o
            it += (stamp() if fast else []) + [I('v_mov_b32 v5, v4')] + one_pass(qi, 'A', fast, procA)
            for g in pend: it += g
            it += [I('v_mov_b32 v6, v5'), I('v_permlane32_swap_b32 v5, v6'), I('v_max_f32 v5, v5, v6'), I('v_sub_f32 v%d, 0, v5' % CN)]
            for r in range(1, 16): it.append(I('v_mov_b32 v%d, v%d' % (CN + r, CN)))
            def procB(jp, b):
                jj = qi + jp
                o = []
                if jj not in swapped:
                    swapped.add(jj)
                    o.append(W(vm='V%d' % jj))
                    o += [I('v_permlane16_swap_b32 v%d, v%d' % (AV + 8 * jj + r, AV + 8 * jj + 4 + r)) for r in range(4)]
                o += [I('v_exp_f32 v%d, v%d' % (b + r, b + r)) for r in range(16)]
                o += [I('v_cvt_pk_bf16_f32 v%d, v%d, v%d' % (AP + p, b + 2 * p, b + 2 * p + 1)) for p in range(8)]
                for hf in range(2):
                    o.append(I('v_mfma_f32_32x32x16_bf16 %s, %s, %s, %s' % (vr(AO, 16), vr(AV + 8 * jj + 4 * hf), vr(AP + 4 * hf), '0' if (jp == 8 and hf == 0) else vr(AO, 16))))
                return o
            it += (stamp() if fast else []) + one_pass(qi, 'B', fast, procB)
            it.append(I('v_rcp_f32 v6, v%d' % (AO + 8)))
            for r in range(8): it.append(I('v_mul_f32 v%d, v%d, v6' % (AO + r, AO + r)))
            for p in range(4): it.append(I('v_cvt_pk_bf16_f32 v%d, v%d, v%d' % (8 + p, AO + 2 * p, AO + 2 * p + 1)))
            it += [I('s_lshl_b32 s36, s21, 6'), I('s_add_u32 s36, s36, s40'), I('s_lshl_b32 s36, s36, 10'), I('s_add_u32 s36, s36, %d' % (OF + qi * 32768))]
            it.append(VM('buffer_store_dwordx4 v[8:11], v14, s[16:19], s36 offen sc1', 'OST'))
        return it
    it += [I('s_cmp_ge_u32 s21, 4'), I('s_cbranch_scc1 K2_AFAST')]
    R.run(it)
    R2 = copy.deepcopy(R); R2.a = a
    R2.run(body(False) + [I('s_branch K2_AJOIN'), I('K2_AFAST:')])
    it = body(True) + [I('K2_AJOIN:')]
    it += stamp() + [W(vm='ALL')] + stamp()
    if K1M.FUSED[0]:
        it += [I('v_mov_b32 v5, %d' % FLAG), I('v_mov_b32 v6, 1'), I('s_mov_b64 exec, 1'), DS('ds_add_rtn_u32 v7, v5, v6 offset:8', 'CNT'), W(ds='ALL'), I('s_mov_b64 exec, -1'),
               I('v_readfirstlane_b32 s36, v7'), I('s_cmp_lg_u32 s36, 3'), I('s_cbranch_scc1 K2_NSIG'),
               I('v_mov_b32 v7, 2'), I('v_mov_b32 v8, s2'), I('s_mov_b64 exec, 1'), I('buffer_store_byte v7, v8, s[32:35], 0 offen sc1'), I('s_mov_b64 exec, -1'), I('K2_NSIG:'),
               I('s_cmp_lg_u32 s20, 4'), I('s_cbranch_scc1 K2_AFIN'),
               I('s_and_b32 s36, s21, 3'), I('s_lshr_b32 s37, s21, 4'), I('s_lshr_b32 s38, s21, 2'), I('s_and_b32 s38, s38, 3'), I('s_lshl_b32 s38, s38, 3'), I('s_lshl_b32 s38, 2, s38'),
               I('v_lshrrev_b32 v7, 4, v0'), I('v_cmp_eq_u32 vcc, s36, v7'), I('v_mov_b32 v8, s38'), I('v_cndmask_b32 v8, 0, v8, vcc'),
               I('v_and_b32 v7, 1, v0'), I('v_cmp_eq_u32 vcc, s37, v7'), I('v_cndmask_b32 v8, 0, v8, vcc'), I('v_lshlrev_b32 v9, 2, v0'),
               I('K2_POLL:'), VM('buffer_load_dword v7, v9, s[32:35], 0 offen sc1', 'PL'), W(vm='ALL'), I('v_and_b32 v7, v7, v8'), I('v_cmp_eq_u32 vcc, v7, v8'),
               I('s_cmp_eq_u64 vcc, -1'), I('s_cbranch_scc1 K2_PDONE'), I('s_sleep 1'), I('s_branch K2_POLL'), I('K2_PDONE:'),
               DS('ds_write_b32 v5, v6', 'FW'), W(ds='ALL'), I('K2_AFIN:')]
    else:
        it += [I('s_lshl_b32 s37, s21, 7'), I('s_add_u32 s37, s37, %d' % FLG), I('s_lshl_b32 s36, s40, 2'), I('s_and_b32 s36, s36, 127'), I('v_mov_b32 v5, s36'), I('v_mov_b32 v6, 1'),
               I('s_mov_b64 exec, 1'), VM('buffer_store_dword v6, v5, s[16:19], s37 offen sc1', 'AT'), I('s_mov_b64 exec, -1'),
               I('s_cmp_lg_u32 s20, 4'), I('s_cbranch_scc1 K2_AFIN'),
               I('v_mov_b32 v8, %d' % FLAG)] + (lds_spin('K2_GATE', 12, 8, 9) if GATE >= 0 else []) + [I('v_and_b32 v5, 31, v0'), I('v_lshlrev_b32 v5, 2, v5'),
               I('K2_POLL:'), VM('buffer_load_dword v7, v5, s[16:19], s37 offen sc1', 'PL'), W(vm='ALL'), I('v_cmp_ne_u32 vcc, 0, v7'),
               I('s_cmp_eq_u64 vcc, -1'), I('s_cbranch_scc1 K2_PDONE'), I('s_sleep %d' % PSLEEP), I('s_branch K2_POLL'), I('K2_PDONE:'),
               I('v_mov_b32 v5, %d' % FLAG), DS('ds_write_b32 v5, v6', 'FW'), W(ds='ALL'), I('K2_AFIN:')]
    it += final_reduce('A')
    R.run(it)

def build_k2(a=None):
    if a is None: a = Asm()
    prologue(a)
    a('s_cmp_ge_u32 s20, 4\ns_cbranch_scc1 K2_ATT')
    gemm(a)
    a('K2_ATT:')
    attn(a)
    a('K2_END:\nK1_END:\ns_endpgm' if K1M.FUSED[0] else 'K2_END:\ns_endpgm')
    return a.finalize()

if __name__ == '__main__':
    print(len(build_k2().splitlines()))
```

```python
import sys
from asmlib import kernel_desc
import k1
HDR = open('parallel_sum__sliding_block__glu_gated_geglu__prompt.s.ref').read().split('; Override launch')[0]
DOC = "; Two launches (generated by the author's own Python emitter, hand-scheduled):\n;      (row statistics from small MFMAs, mean correction as one extra MFMA k-step, 1/std as a scale); GEGLU fused;\n"
def kern(name, body): return '.text\n.globl %s\n.p2align 8\n.type %s,@function\n%s:\n%s' % (name, name, name, body)
def build(path, kernels):
    s = HDR
    for (name, body, grid, block, lds, vg, sg) in kernels:
        s += '; @launch kernel=%s grid=(%d,1,1) block=(%d,1,1) lds=%d\n' % (name, grid, block, lds)
    s += DOC + '.amdgcn_target "amdgcn-amd-amdhsa--gfx950"\n'
    for (name, body, grid, block, lds, vg, sg) in kernels: s += kern(name, body)
    s += 'CODE_END:\n s_endpgm\n'
    for (name, body, grid, block, lds, vg, sg) in kernels: s += kernel_desc(name, vg, sg)
    open(path, 'w').write(s)
def build_fused(path):
    import k2
    k1.FUSED[0] = True
    a = k1.build_k1()
    body = k2.build_k2(a)
    name = 'parallel_sum__sliding_block__glu_gated_geglu__prompt_kernel'
    body = body.replace('k1_kernel', name)
    s = HDR + '; @launch grid=(256,1,1) block=(512,1,1) lds=%d\n' % k1.LDS_K1
    s += '.amdgcn_target "amdgcn-amd-amdhsa--gfx950"\n' + kern(name, body) + 'CODE_END:\n s_endpgm\n' + kernel_desc(name, 256, 102)
    open(path, 'w').write(s)
if __name__ == '__main__' and len(sys.argv) > 1 and sys.argv[1] == 'fused':
    build_fused(sys.argv[2] if len(sys.argv) > 2 else 'parallel_sum__sliding_block__glu_gated_geglu__prompt.s')
elif __name__ == '__main__':
    ks = [('k1_kernel', k1.build_k1(), 256, 512, k1.LDS_K1, 256, 102)]
    if len(sys.argv) > 1 and sys.argv[1] == 'all':
        import k2
        ks.append(('k2_kernel', k2.build_k2(), 256, 512, k2.LDS_K2, 256, 102))
        build(sys.argv[2] if len(sys.argv) > 2 else 'parallel_sum__sliding_block__glu_gated_geglu__prompt.s', ks)
    else:
        build('k1only.s', ks)
```

```python
from asmlib import *
from sched import *
import os, struct, copy

QF, KF, VF, HF, OF, FLG = 0, 2 << 20, 4 << 20, 6 << 20, 14 << 20, 20 << 20
WS_RANGE = 32 << 20
STAMP = int(os.environ.get('STAMP', '0'))
EXP = os.environ.get('EXP', '')
NSPREAD = int(os.environ.get('NSPREAD', '20'))
STF = os.environ.get('STF', ' sc1')
FUSED = [False]
_st = [0]
def stamp():
    if not STAMP: return []
    k = _st[0]; _st[0] += 1
    return [I('s_memtime s[%d:%d]' % (64 + 2 * k, 65 + 2 * k))]
def stamp_out(base):
    if not STAMP: return []
    out = [I('s_waitcnt lgkmcnt(0)'), I('s_lshl_b32 s54, s2, 3'), I('s_add_u32 s54, s54, s20'), I('s_lshl_b32 s54, s54, 7'), I('s_add_u32 s54, s54, %d' % base), I('v_mov_b32 v1, 0')]
    for k in range(16):
        out += [I('v_mov_b32 v2, s%d' % (64 + 2 * k)), I('buffer_store_dword v2, v1, s[16:19], s54 offen offset:%d' % (4 * k))]
    return out

CSF, ST, XR0, P1G, P1U = 0, 5120, 6144, 71680, 108672
LDS_K1 = 145536
SLOT = 12288
XR, ACC, BR = 128, 48, 24
K0 = -2.0 * 0.7978845608028654 * 1.4426950408889634
K1C = K0 * 0.044715
def f2u(f): return struct.unpack('<I', struct.pack('<f', f))[0]
def vr(b, n=4): return 'v[%d:%d]' % (b, b + n - 1)
def acc(u): return vr(ACC + 16 * u, 16)
SEL1, RS, CSA1, CT1 = 96, 100, 104, 116
SQA, SQB = 15, 16
SEL2, CSA2, CT2 = 40, 128, 136
MF, C0, C1, IRS2, RSTD, CF = 4, 15, 16, 17, 18, 8
def t_base(d): return (P1G + SLOT, P1G + 2 * SLOT, P1G, XR0)[d]
def x_base(d): return (P1U + SLOT, P1U + 2 * SLOT, P1U, XR0 + 8192)[d]

def prologue(a):
    a('''
s_cmp_ge_u32 s2, 256
s_cbranch_scc1 K1_END
s_load_dwordx2 s[4:5], s[0:1], 0
s_load_dwordx2 s[28:29], s[0:1], 8
s_load_dwordx4 s[32:35], s[0:1], 32
s_load_dwordx2 s[16:17], s[0:1], 72
s_load_dwordx2 s[96:97], s[0:1], 16
v_lshrrev_b32 v1, 6, v0
v_and_b32 v0, 63, v0
v_readfirstlane_b32 s20, v1
s_and_b32 s36, s2, 7
s_lshr_b32 s37, s2, 3
s_and_b32 s38, s36, 1
s_lshl_b32 s38, s38, 2
s_and_b32 s39, s37, 3
s_add_u32 s21, s38, s39
s_lshr_b32 s38, s36, 1
s_lshl_b32 s38, s38, 3
s_lshr_b32 s39, s37, 2
s_add_u32 s22, s38, s39
s_lshr_b32 s30, s22, 1
s_and_b32 s23, s22, 1
s_mul_i32 s31, s30, 112
s_mul_i32 s38, s23, 48
s_add_u32 s31, s31, s38
s_lshl_b32 s21, s21, 3
s_add_u32 s21, s21, s20
s_lshl_b32 s24, s21, 15
s_add_u32 s25, s24, 8192
s_add_u32 s26, s24, 16384
s_add_u32 s27, s24, 24576
s_lshl_b32 s47, s20, 13
s_add_u32 s47, s47, %d
''' % XR0)
    a('''
v_lshrrev_b32 v2, 3, v0
v_and_b32 v3, 7, v0
v_lshrrev_b32 v4, 4, v0
v_xor_b32 v3, v3, v4
v_lshlrev_b32 v3, 4, v3
v_lshl_add_u32 v2, v2, 10, v3
v_xor_b32 v3, 64, v2
v_and_b32 v4, 31, v0
v_lshrrev_b32 v5, 5, v0
v_lshrrev_b32 v6, 1, v4
v_and_b32 v6, 7, v6
v_xor_b32 v6, v6, v5
v_lshlrev_b32 v6, 4, v6
v_lshl_add_u32 v4, v4, 7, v6
v_add_u32 v4, s47, v4
v_xor_b32 v5, 32, v4
v_xor_b32 v6, 64, v4
v_xor_b32 v7, 0x60, v4
''')
    a('''
v_bfe_u32 v28, v0, 4, 1
v_lshrrev_b32 v29, 5, v0
v_lshlrev_b32 v29, 3, v29
v_bfe_u32 v30, v0, 2, 2
v_add_u32 v29, v29, v30
v_and_b32 v30, 3, v0
v_lshlrev_b32 v30, 3, v30
v_mul_u32_u24 v8, %d, v28
v_mul_u32_u24 v31, 96, v29
v_add3_u32 v8, v8, v31, v30
v_add_u32 v8, %d, v8
s_mul_i32 s36, s20, 1536
v_add_u32 v1, s36, v8
v_lshlrev_b32 v13, 6, v29
v_lshl_add_u32 v13, v28, 5, v13
v_add_u32 v13, v13, v30
v_lshlrev_b32 v22, 4, v0
''' % (P1U - P1G, P1G))
    for i in range(3):
        a('''
v_add_u32 v31, %d, v0
v_mul_u32_u24 v32, 43691, v31
v_lshrrev_b32 v32, 18, v32
v_mul_u32_u24 v33, 6, v32
v_sub_u32 v33, v31, v33
v_mul_u32_u24 v32, 3584, v32
v_lshl_add_u32 v%d, v33, 4, v32
''' % (64 * i, 9 + i))
    a('''
v_and_b32 v31, 15, v0
v_cmp_eq_u32 vcc, v31, v28
v_mov_b32 v96, 0x3f803f80
v_cndmask_b32 v96, 0, v96, vcc
v_mov_b32 v97, v96
v_mov_b32 v98, v96
v_mov_b32 v99, v96
v_mov_b32 v15, 0
v_mov_b32 v16, 0
s_waitcnt lgkmcnt(0)
s_mov_b32 s6, 0x200000
s_mov_b32 s7, 0x20000
s_mov_b32 s18, %d
s_mov_b32 s19, 0x20000
s_cmp_lt_u32 s20, 4
s_cselect_b32 s8, s32, s34
s_cselect_b32 s9, s33, s35
s_mov_b32 s10, 1835008
s_mov_b32 s11, 0x20000
s_mov_b32 s41, %d
s_cselect_b32 s41, s41, %d
s_and_b32 s36, s20, 3
s_mul_i32 s40, s36, 114688
s_lshl_b32 s37, s31, 1
s_add_u32 s40, s40, s37
s_mul_i32 s37, s36, 3072
s_add_u32 s41, s41, s37
''' % (WS_RANGE, P1G, P1U))

def prologue2(a):
    a('''
s_mov_b32 s15, 0x20000
s_cmp_ge_u32 s20, 4
s_cselect_b32 s46, 1, 0
s_cmp_lt_u32 s20, 4
s_cbranch_scc1 K1_P2_QKV
s_cmp_eq_u32 s23, 0
s_cbranch_scc1 K1_P2_QKV
s_cmp_lt_u32 s20, 6
s_cselect_b32 s12, s32, s34
s_cselect_b32 s13, s33, s35
s_cselect_b32 s37, 0, 4224
s_mov_b32 s14, 1835008
v_lshrrev_b32 v31, 1, v0
v_mul_u32_u24 v31, 3584, v31
v_and_b32 v12, 1, v0
v_lshl_add_u32 v12, v12, 4, v31
s_and_b32 s36, s20, 1
s_mul_i32 s42, s36, 229376
s_mul_i32 s38, s30, 224
s_add_u32 s42, s42, s38
s_add_u32 s42, s42, 192
s_mov_b32 s43, 458752
s_mov_b32 s44, 114688
s_lshl_b32 s36, s36, 11
s_add_u32 s45, s37, s36
s_branch K1_P2_DONE
K1_P2_QKV:
s_mov_b32 s12, s28
s_mov_b32 s13, s29
s_mov_b32 s14, 1572864
v_lshrrev_b32 v31, 2, v0
v_mul_u32_u24 v31, 3072, v31
v_and_b32 v12, 3, v0
v_lshl_add_u32 v12, v12, 4, v31
s_and_b32 s36, s20, 3
s_mul_i32 s42, s36, 98304
s_lshl_b32 s37, s22, 6
s_lshl_b32 s38, s30, 6
s_add_u32 s38, s38, 2048
s_lshl_b32 s45, s36, 11
s_cmp_lt_u32 s20, 4
s_cselect_b32 s37, s37, s38
s_add_u32 s42, s42, s37
s_mov_b32 s43, 393216
s_mov_b32 s44, 49152
K1_P2_DONE:
s_cmp_eq_u32 s23, 0
s_cbranch_scc1 K1_XA
v_mul_u32_u24 v14, 4224, v28
v_lshl_add_u32 v14, v29, 5, v14
v_add_u32 v14, v14, v30
s_branch K1_XB
K1_XA:
v_mov_b32 v14, v13
K1_XB:
v_add_u32 v23, %d, v14
v_add_u32 v14, %d, v14
v_add_u32 v21, %d, v13
v_add_u32 v13, %d, v13
''' % (XR0 + 8192, P1U, XR0, P1G))
    a('''
s_mul_i32 s48, s21, 112
s_lshr_b32 s36, s31, 4
s_add_u32 s48, s48, s36
s_lshl_b32 s48, s48, 10
s_add_u32 s48, s48, %d
s_and_b32 s36, s22, 15
s_lshl_b32 s36, s36, 7
s_add_u32 s36, s36, s21
s_lshl_b32 s36, s36, 10
s_cmp_lt_u32 s22, 16
s_cselect_b32 s37, %d, %d
s_cselect_b32 s51, 0x%08x, 0x3f800000
s_add_u32 s49, s36, s37
s_lshl_b32 s36, s30, 7
s_add_u32 s36, s36, s21
s_lshl_b32 s36, s36, 10
s_add_u32 s36, s36, %d
s_add_u32 s37, s48, 3072
s_cmp_eq_u32 s23, 0
s_cselect_b32 s50, s36, s37
''' % (HF, QF, KF, f2u(0.25 * 1.4426950408889634), VF))

def w1_dma(d):
    out = [I('s_add_u32 s55, s40, %d' % (d * 128 * 3584))]
    for i in range(3):
        out.append(I('s_add_u32 m0, s41, %d' % ((d % 3) * SLOT + i * 1024)))
        out.append(VM('buffer_load_dwordx4 v%d, s[8:11], s55 offen lds' % (9 + i), 'W1_%d' % d))
    return out

def p2_dma(d):
    out = [I('s_mul_i32 s52, s43, %d' % d), I('s_add_u32 s52, s52, s42'), I('s_add_u32 s53, s52, s44'),
           I('s_cmp_eq_u32 s46, 0'), I('s_mov_b32 s56, %d' % t_base(d)), I('s_cselect_b32 s56, s56, %d' % x_base(d)), I('s_add_u32 s56, s56, s45')]
    for i in range(2):
        out.append(I('s_add_u32 m0, s56, %d' % (i * 1024)))
        out.append(VM('buffer_load_dwordx4 v12, s[12:15], s%d offen lds' % (52 + i), 'P2_%d' % d))
    return out

def x_dma(c):
    out = []
    for j in range(4):
        out.append(I('s_add_u32 m0, s47, %d' % ((c & 1) * 4096 + j * 1024 - c * 128)))
        out.append(VM('buffer_load_dwordx4 v%d, s[4:7], s%d offen offset:%d lds' % (2 + (j & 1), 24 + j, c * 128), 'X%d' % c))
    return out

def stage(c):
    out = [W(vm='X%d' % c)]
    for s in range(4):
        out.append(DS('ds_read_b128 %s, v%d offset:%d' % (vr(XR + 16 * c + 4 * s), 4 + s, (c & 1) * 4096), 'XF%d' % c))
    return out

B1 = (24, 36)
def tr1(ks, units=(0, 1, 2)):
    out = []
    d, k = ks >> 3, ks & 7
    for u in units:
        b = B1[ks & 1] + 4 * u
        for sec in range(2):
            out.append(DS('ds_read_b64_tr_b16 %s, v8 offset:%d' % (vr(b + 2 * sec, 2), (d % 3) * SLOT + k * 1536 + u * 32 + sec * 384), 'T1_%d_%d' % (ks, u)))
    return out

def cs1_read(d):
    return [DS('ds_read_b64_tr_b16 %s, v1 offset:%d' % (vr(CT1 + 4 * u + 2 * sec, 2), (d % 3) * SLOT + u * 32 + sec * 384), 'C1_%d' % d) for u in range(3) for sec in range(2)]
def cs1_mma(d):
    return [W(ds='C1_%d' % d)] + [I('v_mfma_f32_16x16x32_bf16 %s, %s, %s, %s' % (vr(CSA1 + 4 * u), vr(SEL1), vr(CT1 + 4 * u), '0' if d == 0 else vr(CSA1 + 4 * u))) for u in range(3)]

def tr2_addr(d, k, var, unit, sec):
    if unit == 0:
        reg, base = (13, t_base(d) - P1G) if d < 3 else (21, 0)
        return reg, base + k * 1024 + sec * 256
    reg, base = (14, x_base(d) - P1U) if d < 3 else (23, 0)
    return reg, base + (k * 1024 + sec * 256 if var == 0 else k * 512 + sec * 128)
def tr2(ks, var, unit):
    d, k = ks >> 3, ks & 7
    b = BR + 8 * (ks & 1) + 4 * unit
    out = []
    for sec in range(2):
        reg, off = tr2_addr(d, k, var, unit, sec)
        out.append(DS('ds_read_b64_tr_b16 %s, v%d offset:%d' % (vr(b + 2 * sec, 2), reg, off), 'T2_%d_%d' % (ks, unit)))
    return out
def cs2(d, var):
    out = []
    for unit in range(2):
        for sec in range(2):
            reg, off = tr2_addr(d, 0, var, unit, sec)
            if sec == 0: out.append(I('v_add_u32 v%d, s%d, v%d' % (19 + unit, 57 + (unit if var else 0), reg)))
            out.append(DS('ds_read_b64_tr_b16 %s, v%d offset:%d' % (vr(CT2 + 4 * unit + 2 * sec, 2), 19 + unit, off), 'C2_%d' % d))
    mm = [W(ds='C2_%d' % d)] + [I('v_mfma_f32_16x16x32_bf16 %s, %s, %s, %s' % (vr(CSA2 + 4 * u), vr(SEL2), vr(CT2 + 4 * u), '0' if d == 0 else vr(CSA2 + 4 * u))) for u in range(2)]
    return out, mm

def cs_publish(units, csa, tmp=(1, 2, 3)):
    ta, t2, t3 = tmp
    out = [I('s_lshr_b32 s59, s20, 2'), I('s_lshl_b32 s59, s59, 9'), I('s_and_b32 s56, s20, 3'), I('s_lshl_b32 s56, s56, 2'), I('s_add_u32 s59, s59, s56'),
           I('v_add_u32 v%d, s59, v22' % ta), I('s_mov_b64 exec, 0xffff')]
    for n, u in enumerate(units):
        for k in range(2):
            c = csa + 4 * n + k
            out += [I('v_cvt_pk_bf16_f32 v%d, v%d, v%d' % (t2, c, c)), I('v_lshlrev_b32 v%d, 16, v%d' % (t2, t2)), I('v_sub_f32 v%d, v%d, v%d' % (t3, c, t2)),
                    I('v_cvt_pk_bf16_f32 v%d, v%d, v%d' % (c, c, t3)),
                    DS('ds_write_b32 v%d, v%d offset:%d' % (ta, c, CSF + u * 1024 + 256 * k), 'CSA')]
    out += [I('s_mov_b64 exec, -1')]
    return out

def mean_fix(u, tag, swap=False):
    A = [DS('ds_read_b128 %s, v22 offset:%d' % (vr(CF), CSF + u * 1024), tag), W(ds=tag)]
    if swap: A.append(I('v_mfma_f32_32x32x16_bf16 %s, %s, %s, %s' % (acc(u), vr(MF), vr(CF), acc(u))))
    else: A.append(I('v_mfma_f32_32x32x16_bf16 %s, %s, %s, %s' % (acc(u), vr(CF), vr(MF), acc(u))))
    return A

def g_epilogue(u, soff_expr, tmp=(1, 2, 3, 12)):
    A = ACC + 16 * u
    out = []
    if 'pk' in EXP:
        for q in range(2):
            g = A + 4 * q; uu = A + 8 + 4 * q; t = 8
            p2 = lambda r: 'v[%d:%d]' % (r, r + 1)
            for i in (0, 2): out.append(I('v_pk_mul_f32 %s, %s, %s' % (p2(t + i), p2(g + i), p2(g + i))))
            for i in (0, 2): out.append(I('v_pk_fma_f32 %s, %s, v[46:47], v[44:45]' % (p2(t + i), p2(t + i))))
            for i in (0, 2): out.append(I('v_pk_mul_f32 %s, %s, %s' % (p2(t + i), p2(t + i), p2(g + i))))
            for i in range(4): out.append(I('v_exp_f32 v%d, v%d' % (t + i, t + i)))
            for i in (0, 2): out.append(I('v_pk_mul_f32 %s, %s, %s' % (p2(g + i), p2(g + i), p2(uu + i))))
            for i in (0, 2): out.append(I('v_pk_fma_f32 %s, %s, v[2:3], v[2:3]' % (p2(t + i), p2(t + i))))
            for i in range(4): out.append(I('v_rcp_f32 v%d, v%d' % (t + i, t + i)))
            for i in (0, 2): out.append(I('v_pk_mul_f32 %s, %s, %s' % (p2(g + i), p2(g + i), p2(t + i))))
            out.append(I('v_cvt_pk_bf16_f32 v%d, v%d, v%d' % (A + 8 + 2 * q, g, g + 1)))
            out.append(I('v_cvt_pk_bf16_f32 v%d, v%d, v%d' % (A + 8 + 2 * q + 1, g + 2, g + 3)))
    for q in range(2):
        if 'pk' in EXP: break
        g = [A + 4 * q + i for i in range(4)]
        uu = [A + 8 + 4 * q + i for i in range(4)]
        for i in range(4): out.append(I('v_mul_f32 v%d, v%d, v%d' % (tmp[i], g[i], g[i])))
        for i in range(4): out.append(I('v_fma_f32 v%d, v%d, v%d, v%d' % (tmp[i], tmp[i], C1, C0)))
        for i in range(4): out.append(I('v_mul_f32 v%d, v%d, v%d' % (tmp[i], tmp[i], g[i])))
        for i in range(4): out.append(I('v_exp_f32 v%d, v%d' % (tmp[i], tmp[i])))
        for i in range(4): out.append(I('v_mul_f32 v%d, v%d, v%d' % (g[i], g[i], uu[i])))
        for i in range(4): out.append(I('v_fma_f32 v%d, v%d, v%d, v%d' % (tmp[i], tmp[i], IRS2, IRS2)))
        for i in range(4): out.append(I('v_rcp_f32 v%d, v%d' % (tmp[i], tmp[i])))
        for i in range(4): out.append(I('v_mul_f32 v%d, v%d, v%d' % (g[i], g[i], tmp[i])))
        out.append(I('v_cvt_pk_bf16_f32 v%d, v%d, v%d' % (A + 8 + 2 * q, g[0], g[1])))
        out.append(I('v_cvt_pk_bf16_f32 v%d, v%d, v%d' % (A + 8 + 2 * q + 1, g[2], g[3])))
    sreg, add = soff_expr
    out.append(I('s_add_u32 s54, s%d, %d' % (sreg, add)))
    out.append(VM('buffer_store_dwordx4 %s, v22, s[16:19], s54 offen%s' % (vr(A + 8), STF), 'ST'))
    return out

def t_epilogue():
    A = ACC + 48
    o = XR + 32
    out = [I('v_mul_f32 v1, s51, v%d' % RSTD)]
    for r in range(16): out.append(I('v_mul_f32 v%d, v%d, v1' % (A + r, A + r)))
    for p in range(8): out.append(I('v_cvt_pk_bf16_f32 v%d, v%d, v%d' % (o + p, A + 2 * p, A + 2 * p + 1)))
    out.append(I('s_add_u32 s54, s49, 65536'))
    out.append(VM('buffer_store_dwordx4 %s, v22, s[16:19], s49 offen%s' % (vr(o), STF), 'ST'))
    out.append(VM('buffer_store_dwordx4 %s, v22, s[16:19], s54 offen%s' % (vr(o + 4), STF), 'ST'))
    return out

def v_pre():
    rs = XR + 48
    out = [I('v_lshrrev_b32 v19, 5, v0'), I('v_lshlrev_b32 v20, 4, v19'), I('s_lshl_b32 s59, s20, 7'), I('v_add_u32 v20, s59, v20')]
    for q in range(4):
        out.append(DS('ds_read_b128 %s, v20 offset:%d' % (vr(rs + 4 * q), ST + q * 32), 'VE'))
    out += [I('v_bfe_u32 v152, v0, 4, 1'), I('v_lshlrev_b32 v152, 16, v152'), I('v_lshl_add_u32 v152, v19, 8, v152'), I('v_and_b32 v19, 15, v0'), I('v_lshl_add_u32 v152, v19, 4, v152')]
    return out
def v_epilogue():
    A = ACC + 64
    rs, o = XR + 48, XR + 64
    out = [W(ds='VE')]
    for r in range(16): out.append(I('v_mul_f32 v%d, v%d, v%d' % (A + r, A + r, rs + r)))
    for p in range(8): out.append(I('v_cvt_pk_bf16_f32 v%d, v%d, v%d' % (o + p, A + 2 * p, A + 2 * p + 1)))
    out.append(VM('buffer_store_dwordx4 %s, v152, s[16:19], s50 offen%s' % (vr(o), STF), 'ST'))
    out.append(VM('buffer_store_dwordx4 %s, v152, s[16:19], s50 offen offset:512%s' % (vr(o + 4), STF), 'ST'))
    return out

def rne_bf16(dst, src):
    return [I('v_cvt_pk_bf16_f32 v%d, v%d, v%d' % (dst, src, src)), I('v_lshlrev_b32 v%d, 16, v%d' % (dst, dst))]

def stats_final():
    out = [I('v_and_b32 v19, 15, v0'), I('v_lshlrev_b32 v19, 2, v19'),
           DS('ds_bpermute_b32 v2, v19, v%d' % RS, 'BP'), DS('ds_bpermute_b32 v3, v19, v%d' % (RS + 1), 'BP'),
           I('v_add_f32 v16, v15, v16'), I('v_mov_b32 v17, v16'), I('v_permlane32_swap_b32 v16, v17'), I('v_add_f32 v16, v16, v17'),
           I('v_and_b32 v19, 16, v0'), I('v_cmp_ne_u32 vcc, 0, v19'), W(ds='BP'), I('v_cndmask_b32 v15, v2, v3, vcc'),
           I('v_mul_f32 v15, 0x3b000000, v15'), I('v_mul_f32 v16, 0x3b000000, v16'),
           I('v_fma_f32 v16, -v15, v15, v16'), I('v_max_f32 v16, 0, v16')]
    out += rne_bf16(16, 16)
    out += [I('v_add_f32 v16, 0x%08x, v16' % f2u(1e-5))]
    out += rne_bf16(16, 16)
    out += [I('v_sqrt_f32 v16, v16')]
    out += rne_bf16(16, 16)
    out += [I('v_sub_f32 v15, 0, v15'), I('v_cvt_pk_bf16_f32 v%d, v15, v15' % MF),
            I('v_mov_b32 v%d, v%d' % (MF + 1, MF)), I('v_mov_b32 v%d, v%d' % (MF + 2, MF)), I('v_mov_b32 v%d, v%d' % (MF + 3, MF)),
            I('v_rcp_f32 v%d, v16' % RSTD), I('v_mul_f32 v%d, v16, v16' % IRS2),
            I('v_mul_f32 v%d, 0x%08x, v%d' % (C0, f2u(K0), RSTD)), I('v_mul_f32 v19, v%d, v%d' % (RSTD, RSTD)),
            I('v_mul_f32 v19, v19, v%d' % RSTD), I('v_mul_f32 v%d, 0x%08x, v19' % (C1, f2u(K1C)))]
    out += [I('v_and_b32 v19, 31, v0'), I('v_lshlrev_b32 v19, 2, v19'), I('s_lshl_b32 s54, s20, 7'), I('v_add_u32 v19, s54, v19'),
            DS('ds_write_b32 v19, v%d offset:%d' % (RSTD, ST), 'STW')]
    return out

def groups(items):
    g, cur = [], []
    for x in items:
        cur.append(x)
        if x.q == 'vm': g.append(cur); cur = []
    assert not cur
    return g

def touch():
    if 'touch' not in EXP: return []
    out = []
    out += [I('s_lshr_b32 s52, s2, 5'), I('s_and_b32 s52, s52, 3'), I('s_lshl_b32 s52, s52, 3'), I('s_add_u32 s52, s52, s20'), I('s_lshl_b32 s52, s52, 13'),
            I('s_lshr_b32 s53, s21, 3'), I('s_lshl_b32 s53, s53, 18'), I('s_add_u32 s52, s52, s53'), I('v_lshlrev_b32 v31, 7, v0'),
            VM('buffer_load_dword v252, v31, s[4:7], s52 offen', 'PF')]
    out += [I('s_lshr_b32 s52, s2, 3'), I('s_and_b32 s52, s52, 3'), I('s_lshl_b32 s52, s52, 7'), I('s_and_b32 s53, s20, 1'), I('s_lshl_b32 s53, s53, 6'), I('s_add_u32 s52, s52, s53'),
            I('v_add_u32 v31, s52, v0'), I('v_mul_u32_u24 v32, 3584, v31'), I('s_lshl_b32 s53, s31, 1'), I('s_and_b32 s52, s20, 2'), I('s_lshl_b32 s52, s52, 6'), I('s_add_u32 s53, s53, s52'),
            VM('buffer_load_dword v253, v32, s[8:11], s53 offen', 'PF')]
    out += [I('v_mul_u32_u24 v32, 3072, v31'), I('s_lshl_b32 s53, s22, 6'), I('s_lshl_b32 s52, s30, 6'), I('s_add_u32 s52, s52, 2048'), I('s_and_b32 s56, s20, 2'), I('s_cmp_eq_u32 s56, 0'), I('s_cselect_b32 s53, s53, s52'),
            I('s_mov_b32 s60, s28'), I('s_mov_b32 s61, s29'), I('s_mov_b32 s62, 1572864'), I('s_mov_b32 s63, 0x20000'),
            VM('buffer_load_dword v254, v32, s[60:63], s53 offen', 'PF')]
    return out
def touch_code(tag, first_kb, nwaves):
    if 'notouch' in EXP or 'nocode' in EXP: return []
    L = 'K1_TC%s' % tag
    return [I('s_cmp_ge_u32 s20, %d' % nwaves), I('s_cbranch_scc1 %s' % L),
            I('s_getpc_b64 s[52:53]'), I(L + 'P:'), I('s_sub_u32 s52, s52, %sP-k1_kernel' % L), I('s_subb_u32 s53, s53, 0'),
            I('s_lshl_b32 s56, s20, 13'), I('s_add_u32 s56, s56, %d' % (first_kb * 1024)), I('v_lshl_add_u32 v31, v0, 7, s56'),
            I('v_min_u32 v31, CODE_END-k1_kernel-4, v31'), I('global_load_dword v%d, v31, s[52:53]' % (255 if tag == 'A' else 47)), I(L + ':')]

def touch_tlb():
    if 'tlb' not in EXP: return []
    return [I('s_cmp_lg_u32 s20, 5'), I('s_cbranch_scc1 K1_TLB1'),
            I('v_lshlrev_b32 v31, 19, v0'), I('buffer_load_dword v254, v31, s[16:19], 0 offen'), I('K1_TLB1:'),
            I('s_cmp_lg_u32 s20, 6'), I('s_cbranch_scc1 K1_TLB2'),
            I('s_load_dwordx2 s[60:61], s[0:1], 56'), I('s_mov_b32 s62, 0x200000'), I('s_mov_b32 s63, 0x20000'), I('v_lshlrev_b32 v31, 15, v0'), I('s_waitcnt lgkmcnt(0)'),
            I('buffer_load_dword v254, v31, s[60:63], 0 offen'), I('K1_TLB2:')]

def build_k1():
    a = Asm()
    prologue(a)
    R = Resolver(a)
    pre = ([I('s_memrealtime s[92:93]')] if STAMP else []) + stamp() + w1_dma(0) + x_dma(0) + x_dma(1)
    R.run(pre)
    prologue2(a)
    R.run(touch_code('A', 0, 3) + touch() + touch_tlb())
    pre = [] if FUSED[0] else [I('s_or_b32 s52, s2, s20'), I('s_cmp_lg_u32 s52, 0'), I('s_cbranch_scc1 K1_NOZ'),
           I('v_mov_b32 v32, 0'), I('v_mov_b32 v33, 0'), I('v_mov_b32 v34, 0'), I('v_mov_b32 v35, 0'), I('s_mov_b32 s52, %d' % FLG)]
    if not FUSED[0]:
        pre += [I('buffer_store_dwordx4 v[32:35], v22, s[16:19], s52 offen offset:%d' % (1024 * i)) for i in range(4)]
        pre += [I('s_waitcnt vmcnt(0)'), I('K1_NOZ:')]
    pre += stamp() + [W(vm='W1_0'), I('s_barrier')] + stamp()
    pre += stage(0) + tr1(0)
    R.run(pre)
    stats_final_items = stats_final()
    for ks in range(32):
        c, d = ks >> 2, ks >> 3
        it = []
        b = B1[ks & 1]; x = XR + 4 * ks
        vmg = []
        if (ks & 7) == 7 and ks < 31:
            it += cs1_mma(d)
            it += stamp() + [W(vm='W1_%d' % (d + 1), ds=['T1_%d_%d' % (ks, u) for u in range(3)]), I('s_barrier')]
            vmg += groups(w1_dma(3)) if d == 0 else groups(p2_dma(d - 1))
        if (ks & 3) == 3 and c + 3 <= 7:
            g = groups(x_dma(c + 3)); g[0] = [W(ds='XF%d' % (c + 1))] + g[0]; vmg += g
        if ks == 0: vmg += groups(w1_dma(1))
        if ks == 1: vmg += groups(x_dma(2))
        if ks == 5: vmg += groups(w1_dma(2))
        def stat(k2):
            x2 = XR + 4 * k2
            sq = []
            for j in range(4):
                t = 17 + 2 * (j & 1)
                sq.append([I('v_lshlrev_b32 v%d, 16, v%d' % (t, x2 + j)), I('v_and_b32 v%d, 0xffff0000, v%d' % (t + 1, x2 + j)),
                           I('v_fmac_f32 v%d, v%d, v%d' % (SQA, t, t)), I('v_fmac_f32 v%d, v%d, v%d' % (SQB, t + 1, t + 1))])
            return [[W(ds='XF%d' % (k2 >> 2))] + sq[0] + [I('v_mfma_f32_16x16x32_bf16 %s, %s, %s, %s' % (vr(RS), vr(SEL1), vr(x2), '0' if k2 == 0 else vr(RS)))], sq[1] + sq[2], sq[3]]
        if ks < 26: side = stat(ks)
        elif ks < 29:
            a1, a2 = stat(26 + 2 * (ks - 26)), stat(27 + 2 * (ks - 26))
            side = [a1[0] + a1[1], a1[2] + a2[0], a2[1] + a2[2]]
        else:
            sf = stats_final_items
            n = len(sf); k3 = ks - 29
            part = sf[n * k3 // 3: n * (k3 + 1) // 3]
            side = [part[:len(part) // 3], part[len(part) // 3: 2 * len(part) // 3], part[2 * len(part) // 3:]]
        for u in range(3):
            if 'mw' in EXP: it += [W(ds=['T1_%d_%d' % (ks, uu) for uu in range(3)] + ['XF%d' % c])]
            else: it += [W(ds=('T1_%d_%d' % (ks, u), 'XF%d' % c))]
            it.append(I('v_mfma_f32_32x32x16_bf16 %s, %s, %s, %s' % (acc(u), vr(b + 4 * u), vr(x), '0' if ks == 0 else acc(u))))
            if ks < 31: it += tr1(ks + 1, (u,))
            it += side[u]
            if u < len(vmg): it += vmg[u]
        for g in vmg[3:]: it += g
        if (ks & 7) == 5: it += cs1_read(d)
        if (ks & 3) == 1 and c < 6: it += stage(c + 1)
        if ks == 24: it += stage(7)
        R.run(it)
    mid = stamp() + cs1_mma(3) + cs_publish((0, 1, 2), CSA1) + [I('v_mov_b32 v%d, v%d' % (SEL2 + r, SEL1)) for r in range(4)]
    mid += [I('s_lshl_b32 s57, s20, 10'), I('s_lshl_b32 s58, s20, 9')]
    mid += [W(vm=('P2_0', 'P2_1'), ds='ALL'), I('s_barrier')] + stamp() + p2_dma(2) + p2_dma(3)
    mid += touch_code('B', 16, 4)
    if 'nopf' not in EXP:
        mid += [I('s_load_dwordx2 s[60:61], s[0:1], 48'), I('s_waitcnt lgkmcnt(0)'), I('s_mov_b32 s62, 1835008'), I('s_mov_b32 s63, 0x20000'), I('s_mov_b32 s98, 0x80000'), I('s_mov_b32 s99, 0x20000'),
                I('s_lshl_b32 s54, s2, 3'), I('s_add_u32 s54, s54, s20'), I('s_lshl_b32 s54, s54, 10'),
                VM('buffer_load_dwordx4 v[44:47], v22, s[60:63], s54 offen', 'PF'), VM('buffer_load_dwordx4 v[44:47], v22, s[96:99], s54 offen', 'PF')]
    R.run(mid)
    st_save = _st[0]
    a('s_cmp_eq_u32 s23, 0\ns_cbranch_scc0 K1_VARB')
    for var in range(2):
        if var == 1: a('K1_VARB:')
        RR = copy.deepcopy(R); RR.a = a; _st[0] = st_save
        main = tr2(0, var, 0) + tr2(0, var, 1)
        body = []
        for ks in range(32):
            b = BR + 8 * (ks & 1); x = XR + 4 * ks
            if ks == 15: body.append([W(vm=('P2_2', 'P2_3')), I('s_barrier')])
            body.append([W(ds=('T2_%d_0' % ks, 'T2_%d_1' % ks) if 'mw' in EXP else 'T2_%d_0' % ks), I('v_mfma_f32_32x32x16_bf16 %s, %s, %s, %s' % (acc(3), vr(b), vr(x), '0' if ks == 0 else acc(3)))])
            if ks < 31: body.append(tr2(ks + 1, var, 0))
            if var == 0: mf = I('v_mfma_f32_32x32x16_bf16 %s, %s, %s, %s' % (acc(4), vr(x), vr(b + 4), '0' if ks == 0 else acc(4)))
            else: mf = I('v_mfma_f32_32x32x16_bf16 %s, %s, %s, %s' % (acc(4), vr(b + 4), vr(x), '0' if ks == 0 else acc(4)))
            body.append([W(ds='T2_%d_1' % ks), mf])
            if ks < 31: body.append(tr2(ks + 1, var, 1))
            for dd, kk in enumerate((5, 8, 16, 18)):
                if ks == kk: body.append(cs2(dd, var)[0])
                if ks == kk + 1: body.append(cs2(dd, var)[1])
            if ks == 20: body.append(cs_publish((3, 4), CSA2, tmp=(19, 20, 144)))
            if ks == 23: body.append([W(ds='CSA'), I('s_barrier')])
            if ks == 25: body.append([DS('ds_read_b128 %s, v22 offset:%d' % (vr(144 + 4 * n), CSF + (3 + n) * 1024), 'CFF') for n in range(2)] + (v_pre() if var == 0 else []))
        side = []
        for u in range(3): side += mean_fix(u, 'MF%d' % u)
        if 'pk' in EXP: side += [W(vm='PF'), I('v_mov_b32 v44, v%d' % C0), I('v_mov_b32 v45, v%d' % C0), I('v_mov_b32 v46, v%d' % C1), I('v_mov_b32 v47, v%d' % C1), I('v_mov_b32 v2, v%d' % IRS2), I('v_mov_b32 v3, v%d' % IRS2)]
        for u in range(3): side += g_epilogue(u, (48, u * 1024))
        merged = merge(body, side)
        flat = []
        for x in merged:
            if isinstance(x, list): flat += x
            else: flat.append(x)
        RR.run(main + flat)
        fin = stamp() + stamp() + [W(ds='CFF'), I('v_mfma_f32_32x32x16_bf16 %s, %s, %s, %s' % (acc(3), vr(144), vr(MF), acc(3)))]
        if var == 0: fin.append(I('v_mfma_f32_32x32x16_bf16 %s, %s, %s, %s' % (acc(4), vr(MF), vr(148), acc(4))))
        else: fin.append(I('v_mfma_f32_32x32x16_bf16 %s, %s, %s, %s' % (acc(4), vr(148), vr(MF), acc(4))))
        fin += t_epilogue()
        if var == 0: fin += v_epilogue()
        else: fin += g_epilogue(4, (50, 0))
        fin += stamp() + ([I('s_waitcnt vmcnt(0)')] if STAMP else []) + stamp() + ([I('s_memrealtime s[94:95]')] if STAMP else []) + stamp_out(16 << 20)
        RR.run(fin)
        if FUSED[0]: a('s_branch PHASE2' if var == 0 else 's_nop 0')
        else: a('s_endpgm' if var == 0 else 'K1_END:\ns_endpgm')
    if FUSED[0]: return a
    return a.finalize()

if __name__ == '__main__':
    print(len(build_k1().splitlines()))
```

```python
from asmlib import *
from sched import *
from k1 import QF, KF, VF, HF, OF, FLG, WS_RANGE, vr, f2u
import copy, os
import k1 as K1M
STAMP = int(os.environ.get('STAMP', '0'))
EARLYBAR = int(os.environ.get('EARLYBAR', '0'))
FLAGPOS = int(os.environ.get('FLAGPOS', '27'))
_st = [0]
SB0 = 96
def stamp():
    if not STAMP: return []
    k = _st[0]; _st[0] += 1
    return [I('s_memrealtime s[96:97]' if STAMP == 2 else 's_memtime s[96:97]'), I('s_waitcnt lgkmcnt(0)'), I('v_mov_b32 v%d, s96' % (240 + k))]
def stamp_out(base):
    if not STAMP: return []
    out = [I('s_lshl_b32 s54, s2, 3'), I('s_add_u32 s54, s54, s20'), I('s_lshl_b32 s54, s54, 7'), I('s_add_u32 s54, s54, %d' % base), I('v_mov_b32 v1, 0')]
    for k in range(16):
        out += [I('buffer_store_dword v%d, v1, s[16:19], s54 offen offset:%d' % (240 + k, 4 * k))]
    return out

DEPTH = int(os.environ.get('DEPTH', '8'))
P1SLEEP = int(os.environ.get('P1SLEEP', '16'))
GATE = int(os.environ.get('GATE', '22'))
STS = eval(os.environ.get('STS', '(4, 12, 20, 28)'))
PSLEEP = int(os.environ.get('PSLEEP', '1'))
RSZ = max(17408, DEPTH * 2048 + 1024)
FLAG = 4 * RSZ
LDS_K2 = FLAG + 256
NEG_BIG = 0xf149f2ca
GA = 16; GB = GA + 8 * DEPTH; GACC = GB + 16
AQ, AK, AV, SA, SB, CN, CT, AP, AO = 16, 24, 64, 144, 160, 176, 192, 208, 216
XRES = 232

def prologue(a):
    if K1M.FUSED[0]:
        a('''
PHASE2:
s_waitcnt vmcnt(0) lgkmcnt(0)
v_lshl_add_u32 v0, s20, 6, v0
''')
    else:
        a('''
s_cmp_ge_u32 s2, 256
s_cbranch_scc1 K2_END
''')
    a('''
s_load_dwordx2 s[4:5], s[0:1], 0
s_load_dwordx2 s[8:9], s[0:1], 16
s_load_dwordx2 s[12:13], s[0:1], 48
s_load_dwordx4 s[24:27], s[0:1], 56
s_load_dwordx2 s[16:17], s[0:1], 72
v_mov_b32 v15, v0
v_lshrrev_b32 v1, 6, v0
v_and_b32 v0, 63, v0
v_readfirstlane_b32 s20, v1
s_and_b32 s36, s2, 7
s_lshr_b32 s37, s2, 3
s_lshl_b32 s21, s36, 2
s_lshr_b32 s38, s37, 3
s_add_u32 s21, s21, s38
s_and_b32 s22, s37, 7
v_lshlrev_b32 v14, 4, v0
v_lshrrev_b32 v1, 3, v15
v_and_b32 v2, 7, v15
v_lshlrev_b32 v13, 10, v1
v_lshl_add_u32 v13, v2, 4, v13
v_mul_u32_u24 v12, 272, v1
v_lshl_add_u32 v12, v2, 5, v12
s_lshl_b32 s23, s21, 16
s_lshl_b32 s36, s22, 7
s_add_u32 s23, s23, s36
v_mov_b32 v1, 0
v_mov_b32 v2, %d
v_and_b32 v3, 3, v0
v_lshl_add_u32 v2, v3, 2, v2
ds_write_b32 v2, v1
s_waitcnt lgkmcnt(0)
s_mov_b32 s6, 0x200000
s_mov_b32 s7, 0x20000
s_mov_b32 s10, 0x80000
s_mov_b32 s11, 0x20000
s_mov_b32 s14, 1835008
s_mov_b32 s15, 0x20000
s_mov_b32 s18, %d
s_mov_b32 s19, 0x20000
s_mov_b32 s28, s24
s_mov_b32 s29, s25
s_mov_b32 s30, 0x200000
s_mov_b32 s31, 0x20000
s_mov_b32 s32, s26
s_mov_b32 s33, s27
s_mov_b32 s34, 256
s_mov_b32 s35, 0x20000
s_barrier
''' % (FLAG, WS_RANGE))
    if K1M.FUSED[0]:
        a('''
s_cmp_lg_u32 s20, 4
s_cbranch_scc1 K2_NOF1
v_mov_b32 v1, 1
v_mov_b32 v2, s2
s_mov_b64 exec, 1
buffer_store_byte v1, v2, s[32:35], 0 offen sc1
s_mov_b64 exec, -1
K2_NOF1:
''')

def final_reduce(tagp):
    out = stamp() + [I('v_add_u32 v11, %d, v12' % (2 * RSZ)), I('s_barrier')] + stamp()
    T = 192
    for g in range(4):
        for hlf in range(2):
            out.append(DS('ds_read_b128 %s, v%d offset:%d' % (vr(T + 8 * g + 4 * hlf), 12 if g < 2 else 11, (g & 1) * RSZ + 16 * hlf), tagp + 'R'))
    out.append(W(vm='XRES'))
    for i in range(4):
        out.append(I('v_lshlrev_b32 v%d, 16, v%d' % (64 + 2 * i, XRES + i)))
        out.append(I('v_and_b32 v%d, 0xffff0000, v%d' % (65 + 2 * i, XRES + i)))
    out.append(W(ds=tagp + 'R'))
    for i in range(8): out.append(I('v_add_f32 v%d, v%d, v%d' % (T + i, T + i, T + 8 + i)))
    for i in range(8): out.append(I('v_add_f32 v%d, v%d, v%d' % (T + 16 + i, T + 16 + i, T + 24 + i)))
    for i in range(8): out.append(I('v_add_f32 v%d, v%d, v%d' % (T + i, T + i, T + 16 + i)))
    for i in range(8): out.append(I('v_add_f32 v%d, v%d, v%d' % (T + i, T + i, 64 + i)))
    for i in range(4): out.append(I('v_cvt_pk_bf16_f32 v%d, v%d, v%d' % (72 + i, T + 2 * i, T + 2 * i + 1)))
    out.append(VM('buffer_store_dwordx4 v[72:75], v13, s[28:31], s23 offen', 'OUT'))
    out += stamp() + stamp_out(17 << 20)
    out.append(I('s_endpgm'))
    return out

def lds_spin(name, off, areg=4, treg=5):
    return [I(name + ':'), DS('ds_read_b32 v%d, v%d offset:%d' % (treg, areg, off), 'FL' + name), W(ds='ALL'), I('v_readfirstlane_b32 s52, v%d' % treg),
            I('s_cmp_lg_u32 s52, 0'), I('s_cbranch_scc1 %s_OK' % name), I('s_sleep 1'), I('s_branch %s' % name), I(name + '_OK:')]

def gemm(a):
    R = Resolver(a)
    txt = ('''
v_lshrrev_b32 v1, 3, v0
v_and_b32 v2, 7, v0
v_bfe_u32 v3, v0, 4, 1
v_lshlrev_b32 v3, 2, v3
v_xor_b32 v2, v2, v3
v_lshlrev_b32 v1, 10, v1
v_lshl_add_u32 v1, v2, 4, v1
v_lshrrev_b32 v2, 5, v0
v_bfe_u32 v3, v0, 2, 2
v_lshl_add_u32 v2, v2, 2, v3
v_lshlrev_b32 v2, 7, v2
v_lshrrev_b32 v3, 1, v3
v_lshl_add_u32 v2, v3, 6, v2
v_bfe_u32 v3, v0, 4, 1
v_lshl_add_u32 v2, v3, 5, v2
v_and_b32 v3, 3, v0
v_lshl_add_u32 v2, v3, 3, v2
s_mul_i32 s40, s20, %d
v_add_u32 v2, s40, v2
v_xor_b32 v3, 64, v2
s_mul_i32 s41, s21, 224
s_mul_i32 s36, s20, 28
s_add_u32 s41, s41, s36
s_lshl_b32 s41, s41, 10
s_add_u32 s41, s41, %d
s_add_u32 s42, s41, 114688
s_mul_i32 s43, s20, 458752
s_lshl_b32 s36, s22, 7
s_add_u32 s43, s43, s36
s_lshl_b32 s44, s21, 6
s_lshl_b32 s37, s20, 3
s_add_u32 s44, s44, s37
s_lshl_b32 s44, s44, 10
s_add_u32 s44, s44, %d
s_add_u32 s45, s44, 32768
s_lshl_b32 s46, s20, 17
s_add_u32 s46, s46, s36
v_mov_b32 v4, %d
''' % (RSZ, HF, OF, FLAG))
    a(txt)
    def LA(s):
        out = []
        for t in range(2):
            dst = vr(GA + 8 * (s % DEPTH) + 4 * t)
            if s < 28:
                out.append(I('s_add_u32 s50, s%d, %d' % (41 + t, s * 1024)))
                out.append(VM('buffer_load_dwordx4 %s, v14, s[16:19], s50 offen%s' % (dst, ' sc1' if K1M.FUSED[0] else ''), 'A%d' % s))
            else:
                out.append(I('s_add_u32 s50, s%d, %d' % (44 + t, (s - 28) * 1024)))
                out.append(VM('buffer_load_dwordx4 %s, v14, s[16:19], s50 offen sc1' % dst, 'A%d' % s))
        return out
    def LW(s):
        out = []
        for i in range(2):
            if s < 28:
                out.append(I('s_add_u32 s51, s43, %d' % ((16 * s + 8 * i) * 1024))); srd = 's[12:15]'
            else:
                out.append(I('s_add_u32 s51, s46, %d' % ((16 * (s - 28) + 8 * i) * 1024))); srd = 's[8:11]'
            out.append(I('s_add_u32 m0, s40, %d' % ((s % DEPTH) * 2048 + i * 1024)))
            out.append(VM('buffer_load_dwordx4 v1, %s, s51 offen lds' % srd, 'W%d' % s))
        return out
    def TR(s):
        out = [W(vm='W%d' % s)]
        for cti in range(2):
            for sec in range(2):
                out.append(DS('ds_read_b64_tr_b16 %s, v%d offset:%d' % (vr(GB + 8 * (s & 1) + 4 * cti + 2 * sec, 2), 2 + cti, (s % DEPTH) * 2048 + sec * 1024), 'T%d' % s))
        return out
    _st[0] = 0
    it = stamp() + ([I('s_barrier')] if EARLYBAR else [])
    if K1M.FUSED[0]:
        it.append(VM('buffer_load_dwordx4 %s, v13, s[4:7], s23 offen' % vr(XRES), 'XRES'))
        for s in range(8): it += LW(s)
        it += lds_spin('K2_GW1', 4)
        for s in range(8): it += LA(s)
    else:
        for s in range(DEPTH): it += LW(s) + LA(s)
    if not K1M.FUSED[0]: it.append(VM('buffer_load_dwordx4 %s, v13, s[4:7], s23 offen' % vr(XRES), 'XRES'))
    it += stamp() + TR(0)
    pend = []
    for s in range(36):
        if s in STS: it += stamp()
        if s == GATE: it += [I('v_mov_b32 v5, 1'), DS('ds_write_b32 v4, v5 offset:12', 'GT')]
        it.append(W(vm='A%d' % s, ds='T%d' % s))
        mm = []
        for t in range(2):
            for cti in range(2):
                ac = vr(GACC + 16 * (2 * t + cti), 16)
                mm.append(I('v_mfma_f32_32x32x16_bf16 %s, %s, %s, %s' % (ac, vr(GB + 8 * (s & 1) + 4 * cti), vr(GA + 8 * (s % DEPTH) + 4 * t), '0' if s == 0 else ac)))
        it += mm[:2]
        if s < 35: it += TR(s + 1)
        it += mm[2:]
        n = s + DEPTH
        if n < 36: it += LW(n)
        n = s + DEPTH - 1
        if DEPTH <= n < 28: it += LA(n)
        if s == FLAGPOS:
            it += [I('K2_FW:'), DS('ds_read_b32 v5, v4', 'FL'), W(ds='ALL'), I('v_readfirstlane_b32 s52, v5'),
                   I('s_cmp_lg_u32 s52, 0'), I('s_cbranch_scc1 K2_FOK'), I('s_sleep 1'), I('s_branch K2_FW'), I('K2_FOK:')]
            it += stamp()
            for p in range(28, min(36, n + 1)): it += LA(p)
        elif s > FLAGPOS and 28 <= n < 36: it += LA(n)
    it += [I('v_and_b32 v5, 31, v0'), I('v_mul_u32_u24 v5, 272, v5'), I('v_lshrrev_b32 v6, 5, v0'), I('v_lshl_add_u32 v5, v6, 4, v5'), I('v_add_u32 v5, s40, v5')]
    for t in range(2):
        for cti in range(2):
            for q in range(4):
                it.append(DS('ds_write_b128 v5, %s offset:%d' % (vr(GACC + 16 * (2 * t + cti) + 4 * q), t * 32 * 272 + cti * 128 + q * 32), 'RW'))
    it.append(W(ds='ALL'))
    it += final_reduce('G')
    R.run(it)

_l = [0]
def lab(p):
    _l[0] += 1
    return 'K2_%s%d' % (p, _l[0])

def attn(a):
    R = Resolver(a)
    a('''
s_setprio 3
s_sub_u32 s36, s20, 4
s_lshl_b32 s40, s22, 2
s_add_u32 s40, s40, s36
s_lshl_b32 s41, s21, 1
s_sub_u32 s41, s41, 8
s_lshl_b32 s42, s40, 16
v_and_b32 v1, 15, v0
v_lshrrev_b32 v2, 5, v0
v_lshlrev_b32 v1, 4, v1
v_lshl_add_u32 v1, v2, 8, v1
v_bfe_u32 v3, v0, 4, 1
v_lshl_add_u32 v1, v3, 9, v1
v_and_b32 v3, 31, v0
v_lshlrev_b32 v2, 2, v2
v_sub_u32 v3, v3, v2
v_mov_b32 v4, 0x%08x
''' % NEG_BIG)
    _st[0] = 0
    it = stamp()
    SC = ' sc1' if K1M.FUSED[0] else ''
    if K1M.FUSED[0]:
        it += [I('v_mov_b32 v7, %d' % FLAG), I('s_cmp_lg_u32 s20, 4'), I('s_cbranch_scc1 K2_AW1'),
               I('s_lshr_b32 s36, s21, 2'), I('s_max_i32 s37, s41, 0'), I('s_lshr_b32 s37, s37, 3'),
               I('v_bfe_u32 v5, v0, 1, 2'), I('v_mov_b32 v6, 0')]
        for sr in (36, 37):
            it += [I('s_and_b32 s38, s%d, 3' % sr), I('s_cmp_ge_u32 s%d, 4' % sr), I('s_mov_b32 s39, 0x00010001'), I('s_cselect_b32 s39, 0x01000100, s39'),
                   I('v_cmp_eq_u32 vcc, s38, v5'), I('v_mov_b32 v8, s39'), I('v_cndmask_b32 v8, 0, v8, vcc'), I('v_or_b32 v6, v6, v8')]
        it += [I('v_lshlrev_b32 v5, 2, v0'),
               I('K2_P1:'), I('s_sleep %d' % P1SLEEP), VM('buffer_load_dword v8, v5, s[32:35], 0 offen sc1', 'PL1'), W(vm='ALL'),
               I('v_lshrrev_b32 v9, 1, v8'), I('v_or_b32 v8, v8, v9'), I('v_and_b32 v8, v8, v6'), I('v_cmp_eq_u32 vcc, v8, v6'),
               I('s_cmp_eq_u64 vcc, -1'), I('s_cbranch_scc1 K2_P1D'), I('s_branch K2_P1'), I('K2_P1D:'),
               I('v_mov_b32 v8, 1'), DS('ds_write_b32 v7, v8 offset:4', 'FW1'), W(ds='ALL')]
        it += lds_spin('K2_AW1', 4, 7, 8)
    it += [I('s_lshl_b32 s37, s21, 11'), I('s_add_u32 s37, s37, s42')]
    it.append(VM('buffer_load_dwordx4 %s, v14, s[16:19], s37 offen%s' % (vr(AQ), SC), 'Q0'))
    def kload(jj):
        return [I('s_add_i32 s36, s41, %d' % jj), I('s_max_i32 s36, s36, 0'), I('s_lshl_b32 s36, s36, 10'), I('s_add_u32 s%d, s36, s42' % (44 + jj)),
                I('s_add_u32 s36, s%d, %d' % (44 + jj, KF)),
                VM('buffer_load_dwordx4 %s, v14, s[16:19], s36 offen%s' % (vr(AK + 4 * jj), SC), 'K%d' % jj)]
    def vload(jj):
        return [I('s_add_u32 s36, s%d, %d' % (44 + jj, VF)), VM('buffer_load_dwordx4 %s, v1, s[16:19], s36 offen%s' % (vr(AV + 8 * jj), SC), 'V%d' % jj)]
    for jj in range(8, -1, -1): it += kload(jj)
    it.append(VM('buffer_load_dwordx4 %s, v14, s[16:19], s37 offen offset:1024%s' % (vr(AQ + 4), SC), 'Q1'))
    it += kload(9)
    if EARLYBAR: it.append(I('s_barrier'))
    for r in range(16):
        it.append(I('v_cmp_ge_i32 s[%d:%d], v3, %d' % (64 + 2 * r, 65 + 2 * r, 8 * (r >> 2) + (r & 3))))
    for jj in range(10):
        for r in range(4): it.append(I('v_mov_b32 v%d, 0x3f803f80' % (AV + 8 * jj + 4 + r)))
    vl = [vload(jj) for jj in list(range(8, -1, -1)) + [9]] + [[VM('buffer_load_dwordx4 %s, v13, s[4:7], s23 offen' % vr(XRES), 'XRES')]]
    def smfma(qi, jp, buf, cmode):
        jj = qi + jp
        out = [W(vm=('Q%d' % qi, 'K%d' % jj))]
        if jp == 8 or jp == 0:
            val = '0' if cmode == 'A' else 'v%d' % CN
            for r in range(16):
                m = 's[%d:%d]' % (64 + 2 * r, 65 + 2 * r)
                if jp == 8: out.append(I('v_cndmask_b32 v%d, v4, %s, %s' % (CT + r, val, m)))
                else: out.append(I('v_cndmask_b32 v%d, %s, v4, %s' % (CT + r, val, m)))
            c = vr(CT, 16)
        else:
            c = '0' if cmode == 'A' else vr(CN, 16)
        out.append(I('v_mfma_f32_32x32x16_bf16 %s, %s, %s, %s' % (vr(buf, 16), vr(AK + 4 * jj), vr(AQ + 4 * qi), c)))
        return out
    def one_pass(qi, cmode, fast, proc):
        bufs = (SA, SB)
        out = smfma(qi, 8, bufs[0], cmode)
        Ld = lab('D')
        for n, jp in enumerate(range(8, -1, -1)):
            if jp > 0:
                Ls = lab('S')
                if not fast: out += [I('s_add_i32 s36, s41, %d' % (qi + jp - 1)), I('s_cmp_lt_i32 s36, 0'), I('s_cbranch_scc1 %s' % Ls)]
                out += smfma(qi, jp - 1, bufs[(n + 1) & 1], cmode)
                if not fast: out += [I(Ls + ':')]
            out += proc(jp, bufs[n & 1])
            if jp > 0 and not fast: out += [I('s_add_i32 s36, s41, %d' % (qi + jp - 1)), I('s_cmp_lt_i32 s36, 0'), I('s_cbranch_scc1 %s' % Ld)]
        if not fast: out += [I(Ld + ':'), I('s_nop 15')]
        return out
    def body(fast):
        it = []
        swapped = set()
        if not fast:
            for g in vl: it += g
            it.append(W(vm='ALL'))
            for jj in range(10):
                for r in range(4): it.append(I('v_permlane16_swap_b32 v%d, v%d' % (AV + 8 * jj + r, AV + 8 * jj + 4 + r)))
                swapped.add(jj)
        for qi in range(2):
            pend = list(vl) if (fast and qi == 0) else []
            def procA(jp, b):
                o = [I('v_max3_f32 v5, v%d, v%d, v5' % (b + 2 * i, b + 2 * i + 1)) for i in range(8)]
                if pend: o += pend.pop(0)
                if pend and jp < 3: o += pend.pop(0)
                return o
            it += (stamp() if fast else []) + [I('v_mov_b32 v5, v4')] + one_pass(qi, 'A', fast, procA)
            for g in pend: it += g
            it += [I('v_mov_b32 v6, v5'), I('v_permlane32_swap_b32 v5, v6'), I('v_max_f32 v5, v5, v6'), I('v_sub_f32 v%d, 0, v5' % CN)]
            for r in range(1, 16): it.append(I('v_mov_b32 v%d, v%d' % (CN + r, CN)))
            def procB(jp, b):
                jj = qi + jp
                o = []
                if jj not in swapped:
                    swapped.add(jj)
                    o.append(W(vm='V%d' % jj))
                    o += [I('v_permlane16_swap_b32 v%d, v%d' % (AV + 8 * jj + r, AV + 8 * jj + 4 + r)) for r in range(4)]
                o += [I('v_exp_f32 v%d, v%d' % (b + r, b + r)) for r in range(16)]
                o += [I('v_cvt_pk_bf16_f32 v%d, v%d, v%d' % (AP + p, b + 2 * p, b + 2 * p + 1)) for p in range(8)]
                for hf in range(2):
                    o.append(I('v_mfma_f32_32x32x16_bf16 %s, %s, %s, %s' % (vr(AO, 16), vr(AV + 8 * jj + 4 * hf), vr(AP + 4 * hf), '0' if (jp == 8 and hf == 0) else vr(AO, 16))))
                return o
            it += (stamp() if fast else []) + one_pass(qi, 'B', fast, procB)
            it.append(I('v_rcp_f32 v6, v%d' % (AO + 8)))
            for r in range(8): it.append(I('v_mul_f32 v%d, v%d, v6' % (AO + r, AO + r)))
            for p in range(4): it.append(I('v_cvt_pk_bf16_f32 v%d, v%d, v%d' % (8 + p, AO + 2 * p, AO + 2 * p + 1)))
            it += [I('s_lshl_b32 s36, s21, 6'), I('s_add_u32 s36, s36, s40'), I('s_lshl_b32 s36, s36, 10'), I('s_add_u32 s36, s36, %d' % (OF + qi * 32768))]
            it.append(VM('buffer_store_dwordx4 v[8:11], v14, s[16:19], s36 offen sc1', 'OST'))
        return it
    it += [I('s_cmp_ge_u32 s21, 4'), I('s_cbranch_scc1 K2_AFAST')]
    R.run(it)
    R2 = copy.deepcopy(R); R2.a = a
    R2.run(body(False) + [I('s_branch K2_AJOIN'), I('K2_AFAST:')])
    it = body(True) + [I('K2_AJOIN:')]
    it += stamp() + [W(vm='ALL')] + stamp()
    if K1M.FUSED[0]:
        it += [I('v_mov_b32 v5, %d' % FLAG), I('v_mov_b32 v6, 1'), I('s_mov_b64 exec, 1'), DS('ds_add_rtn_u32 v7, v5, v6 offset:8', 'CNT'), W(ds='ALL'), I('s_mov_b64 exec, -1'),
               I('v_readfirstlane_b32 s36, v7'), I('s_cmp_lg_u32 s36, 3'), I('s_cbranch_scc1 K2_NSIG'),
               I('v_mov_b32 v7, 2'), I('v_mov_b32 v8, s2'), I('s_mov_b64 exec, 1'), I('buffer_store_byte v7, v8, s[32:35], 0 offen sc1'), I('s_mov_b64 exec, -1'), I('K2_NSIG:'),
               I('s_cmp_lg_u32 s20, 4'), I('s_cbranch_scc1 K2_AFIN'),
               I('s_and_b32 s36, s21, 3'), I('s_lshr_b32 s37, s21, 4'), I('s_lshr_b32 s38, s21, 2'), I('s_and_b32 s38, s38, 3'), I('s_lshl_b32 s38, s38, 3'), I('s_lshl_b32 s38, 2, s38'),
               I('v_lshrrev_b32 v7, 4, v0'), I('v_cmp_eq_u32 vcc, s36, v7'), I('v_mov_b32 v8, s38'), I('v_cndmask_b32 v8, 0, v8, vcc'),
               I('v_and_b32 v7, 1, v0'), I('v_cmp_eq_u32 vcc, s37, v7'), I('v_cndmask_b32 v8, 0, v8, vcc'), I('v_lshlrev_b32 v9, 2, v0')] + lds_spin('K2_GATE', 12, 5, 7) + [
               I('K2_POLL:'), VM('buffer_load_dword v7, v9, s[32:35], 0 offen sc1', 'PL'), W(vm='ALL'), I('v_and_b32 v7, v7, v8'), I('v_cmp_eq_u32 vcc, v7, v8'),
               I('s_cmp_eq_u64 vcc, -1'), I('s_cbranch_scc1 K2_PDONE'), I('s_sleep 8'), I('s_branch K2_POLL'), I('K2_PDONE:'),
               DS('ds_write_b32 v5, v6', 'FW'), W(ds='ALL'), I('K2_AFIN:')]
    else:
        it += [I('s_lshl_b32 s37, s21, 7'), I('s_add_u32 s37, s37, %d' % FLG), I('s_lshl_b32 s36, s40, 2'), I('s_and_b32 s36, s36, 127'), I('v_mov_b32 v5, s36'), I('v_mov_b32 v6, 1'),
               I('s_mov_b64 exec, 1'), VM('buffer_store_dword v6, v5, s[16:19], s37 offen sc1', 'AT'), I('s_mov_b64 exec, -1'),
               I('s_cmp_lg_u32 s20, 4'), I('s_cbranch_scc1 K2_AFIN'),
               I('v_mov_b32 v8, %d' % FLAG)] + (lds_spin('K2_GATE', 12, 8, 9) if GATE >= 0 else []) + [I('v_and_b32 v5, 31, v0'), I('v_lshlrev_b32 v5, 2, v5'),
               I('K2_POLL:'), VM('buffer_load_dword v7, v5, s[16:19], s37 offen sc1', 'PL'), W(vm='ALL'), I('v_cmp_ne_u32 vcc, 0, v7'),
               I('s_cmp_eq_u64 vcc, -1'), I('s_cbranch_scc1 K2_PDONE'), I('s_sleep %d' % PSLEEP), I('s_branch K2_POLL'), I('K2_PDONE:'),
               I('v_mov_b32 v5, %d' % FLAG), DS('ds_write_b32 v5, v6', 'FW'), W(ds='ALL'), I('K2_AFIN:')]
    it += final_reduce('A')
    R.run(it)

def build_k2(a=None):
    if a is None: a = Asm()
    prologue(a)
    a('s_cmp_ge_u32 s20, 4\ns_cbranch_scc1 K2_ATT')
    gemm(a)
    a('K2_ATT:')
    attn(a)
    a('K2_END:\nK1_END:\ns_endpgm' if K1M.FUSED[0] else 'K2_END:\ns_endpgm')
    return a.finalize()

if __name__ == '__main__':
    print(len(build_k2().splitlines()))
```

```python
from asmlib import *
from sched import *
import os, struct, copy

QF, KF, VF, HF, OF, FLG = 0, 2 << 20, 4 << 20, 6 << 20, 14 << 20, 20 << 20
WS_RANGE = 32 << 20
STAMP = int(os.environ.get('STAMP', '0'))
EXP = os.environ.get('EXP', '')
NSPREAD = int(os.environ.get('NSPREAD', '20'))
STF = os.environ.get('STF', ' sc1')
FUSED = [False]
DBGT = int(os.environ.get('DBGT', '0'))
_st = [0]
def stamp():
    if not STAMP: return []
    k = _st[0]; _st[0] += 1
    return [I('s_memtime s[%d:%d]' % (64 + 2 * k, 65 + 2 * k))]
def stamp_out(base):
    if not STAMP: return []
    out = [I('s_waitcnt lgkmcnt(0)'), I('s_lshl_b32 s54, s2, 3'), I('s_add_u32 s54, s54, s20'), I('s_lshl_b32 s54, s54, 7'), I('s_add_u32 s54, s54, %d' % base), I('v_mov_b32 v1, 0')]
    for k in range(16):
        out += [I('v_mov_b32 v2, s%d' % (64 + 2 * k)), I('buffer_store_dword v2, v1, s[16:19], s54 offen offset:%d' % (4 * k))]
    return out

CSF, ST, XR0, P1G, P1U = 0, 5120, 6144, 71680, 108672
LDS_K1 = 145536
SLOT = 12288
XR, ACC, BR = 128, 48, 24
K0 = -2.0 * 0.7978845608028654 * 1.4426950408889634
K1C = K0 * 0.044715
def f2u(f): return struct.unpack('<I', struct.pack('<f', f))[0]
def vr(b, n=4): return 'v[%d:%d]' % (b, b + n - 1)
def acc(u): return vr(ACC + 16 * u, 16)
SEL1, RS, CSA1, CT1 = 96, 100, 104, 116
SQA, SQB = 15, 16
SEL2, CSA2, CT2 = 40, 128, 136
MF, C0, C1, IRS2, RSTD, CF = 4, 15, 16, 17, 18, 8
def t_base(d): return (P1G + SLOT, P1G + 2 * SLOT, P1G, XR0)[d]
def x_base(d): return (P1U + SLOT, P1U + 2 * SLOT, P1U, XR0 + 8192)[d]

def prologue(a):
    a('''
s_cmp_ge_u32 s2, 256
s_cbranch_scc1 K1_END
s_load_dwordx2 s[4:5], s[0:1], 0
s_load_dwordx2 s[28:29], s[0:1], 8
s_load_dwordx4 s[32:35], s[0:1], 32
s_load_dwordx2 s[16:17], s[0:1], 72
s_load_dwordx2 s[96:97], s[0:1], 16
v_lshrrev_b32 v1, 6, v0
v_and_b32 v0, 63, v0
v_readfirstlane_b32 s20, v1
s_and_b32 s36, s2, 7
s_lshr_b32 s37, s2, 3
s_and_b32 s38, s36, 1
s_lshl_b32 s38, s38, 2
s_and_b32 s39, s37, 3
s_add_u32 s21, s38, s39
s_lshr_b32 s38, s36, 1
s_lshl_b32 s38, s38, 3
s_lshr_b32 s39, s37, 2
s_add_u32 s22, s38, s39
s_lshr_b32 s30, s22, 1
s_and_b32 s23, s22, 1
s_mul_i32 s31, s30, 112
s_mul_i32 s38, s23, 48
s_add_u32 s31, s31, s38
s_lshl_b32 s21, s21, 3
s_add_u32 s21, s21, s20
s_lshl_b32 s24, s21, 15
s_add_u32 s25, s24, 8192
s_add_u32 s26, s24, 16384
s_add_u32 s27, s24, 24576
s_lshl_b32 s47, s20, 13
s_add_u32 s47, s47, %d
''' % XR0)
    a('''
v_lshrrev_b32 v2, 3, v0
v_and_b32 v3, 7, v0
v_lshrrev_b32 v4, 4, v0
v_xor_b32 v3, v3, v4
v_lshlrev_b32 v3, 4, v3
v_lshl_add_u32 v2, v2, 10, v3
v_xor_b32 v3, 64, v2
v_and_b32 v4, 31, v0
v_lshrrev_b32 v5, 5, v0
v_lshrrev_b32 v6, 1, v4
v_and_b32 v6, 7, v6
v_xor_b32 v6, v6, v5
v_lshlrev_b32 v6, 4, v6
v_lshl_add_u32 v4, v4, 7, v6
v_add_u32 v4, s47, v4
v_xor_b32 v5, 32, v4
v_xor_b32 v6, 64, v4
v_xor_b32 v7, 0x60, v4
''')
    a('''
v_bfe_u32 v28, v0, 4, 1
v_lshrrev_b32 v29, 5, v0
v_lshlrev_b32 v29, 3, v29
v_bfe_u32 v30, v0, 2, 2
v_add_u32 v29, v29, v30
v_and_b32 v30, 3, v0
v_lshlrev_b32 v30, 3, v30
v_mul_u32_u24 v8, %d, v28
v_mul_u32_u24 v31, 96, v29
v_add3_u32 v8, v8, v31, v30
v_add_u32 v8, %d, v8
s_mul_i32 s36, s20, 1536
v_add_u32 v1, s36, v8
v_lshlrev_b32 v13, 6, v29
v_lshl_add_u32 v13, v28, 5, v13
v_add_u32 v13, v13, v30
v_lshlrev_b32 v22, 4, v0
''' % (P1U - P1G, P1G))
    for i in range(3):
        a('''
v_add_u32 v31, %d, v0
v_mul_u32_u24 v32, 43691, v31
v_lshrrev_b32 v32, 18, v32
v_mul_u32_u24 v33, 6, v32
v_sub_u32 v33, v31, v33
v_mul_u32_u24 v32, 3584, v32
v_lshl_add_u32 v%d, v33, 4, v32
''' % (64 * i, 9 + i))
    a('''
v_and_b32 v31, 15, v0
v_cmp_eq_u32 vcc, v31, v28
v_mov_b32 v96, 0x3f803f80
v_cndmask_b32 v96, 0, v96, vcc
v_mov_b32 v97, v96
v_mov_b32 v98, v96
v_mov_b32 v99, v96
v_mov_b32 v15, 0
v_mov_b32 v16, 0
s_waitcnt lgkmcnt(0)
s_mov_b32 s6, 0x200000
s_mov_b32 s7, 0x20000
s_mov_b32 s18, %d
s_mov_b32 s19, 0x20000
s_cmp_lt_u32 s20, 4
s_cselect_b32 s8, s32, s34
s_cselect_b32 s9, s33, s35
s_mov_b32 s10, 1835008
s_mov_b32 s11, 0x20000
s_mov_b32 s41, %d
s_cselect_b32 s41, s41, %d
s_and_b32 s36, s20, 3
s_mul_i32 s40, s36, 114688
s_lshl_b32 s37, s31, 1
s_add_u32 s40, s40, s37
s_mul_i32 s37, s36, 3072
s_add_u32 s41, s41, s37
''' % (WS_RANGE, P1G, P1U))

def prologue2(a):
    a('''
s_mov_b32 s15, 0x20000
s_cmp_ge_u32 s20, 4
s_cselect_b32 s46, 1, 0
s_cmp_lt_u32 s20, 4
s_cbranch_scc1 K1_P2_QKV
s_cmp_eq_u32 s23, 0
s_cbranch_scc1 K1_P2_QKV
s_cmp_lt_u32 s20, 6
s_cselect_b32 s12, s32, s34
s_cselect_b32 s13, s33, s35
s_cselect_b32 s37, 0, 4224
s_mov_b32 s14, 1835008
v_lshrrev_b32 v31, 1, v0
v_mul_u32_u24 v31, 3584, v31
v_and_b32 v12, 1, v0
v_lshl_add_u32 v12, v12, 4, v31
s_and_b32 s36, s20, 1
s_mul_i32 s42, s36, 229376
s_mul_i32 s38, s30, 224
s_add_u32 s42, s42, s38
s_add_u32 s42, s42, 192
s_mov_b32 s43, 458752
s_mov_b32 s44, 114688
s_lshl_b32 s36, s36, 11
s_add_u32 s45, s37, s36
s_branch K1_P2_DONE
K1_P2_QKV:
s_mov_b32 s12, s28
s_mov_b32 s13, s29
s_mov_b32 s14, 1572864
v_lshrrev_b32 v31, 2, v0
v_mul_u32_u24 v31, 3072, v31
v_and_b32 v12, 3, v0
v_lshl_add_u32 v12, v12, 4, v31
s_and_b32 s36, s20, 3
s_mul_i32 s42, s36, 98304
s_lshl_b32 s37, s22, 6
s_lshl_b32 s38, s30, 6
s_add_u32 s38, s38, 2048
s_lshl_b32 s45, s36, 11
s_cmp_lt_u32 s20, 4
s_cselect_b32 s37, s37, s38
s_add_u32 s42, s42, s37
s_mov_b32 s43, 393216
s_mov_b32 s44, 49152
K1_P2_DONE:
s_cmp_eq_u32 s23, 0
s_cbranch_scc1 K1_XA
v_mul_u32_u24 v14, 4224, v28
v_lshl_add_u32 v14, v29, 5, v14
v_add_u32 v14, v14, v30
s_branch K1_XB
K1_XA:
v_mov_b32 v14, v13
K1_XB:
v_add_u32 v23, %d, v14
v_add_u32 v14, %d, v14
v_add_u32 v21, %d, v13
v_add_u32 v13, %d, v13
''' % (XR0 + 8192, P1U, XR0, P1G))
    a('''
s_mul_i32 s48, s21, 112
s_lshr_b32 s36, s31, 4
s_add_u32 s48, s48, s36
s_lshl_b32 s48, s48, 10
s_add_u32 s48, s48, %d
s_and_b32 s36, s22, 15
s_lshl_b32 s36, s36, 7
s_add_u32 s36, s36, s21
s_lshl_b32 s36, s36, 10
s_cmp_lt_u32 s22, 16
s_cselect_b32 s37, %d, %d
s_cselect_b32 s51, 0x%08x, 0x3f800000
s_add_u32 s49, s36, s37
s_lshl_b32 s36, s30, 7
s_add_u32 s36, s36, s21
s_lshl_b32 s36, s36, 10
s_add_u32 s36, s36, %d
s_add_u32 s37, s48, 3072
s_cmp_eq_u32 s23, 0
s_cselect_b32 s50, s36, s37
''' % (HF, QF, KF, f2u(0.25 * 1.4426950408889634), VF))

def w1_dma(d):
    out = [I('s_add_u32 s55, s40, %d' % (d * 128 * 3584))]
    for i in range(3):
        out.append(I('s_add_u32 m0, s41, %d' % ((d % 3) * SLOT + i * 1024)))
        out.append(VM('buffer_load_dwordx4 v%d, s[8:11], s55 offen lds' % (9 + i), 'W1_%d' % d))
    return out

def p2_dma(d):
    out = [I('s_mul_i32 s52, s43, %d' % d), I('s_add_u32 s52, s52, s42'), I('s_add_u32 s53, s52, s44'),
           I('s_cmp_eq_u32 s46, 0'), I('s_mov_b32 s56, %d' % t_base(d)), I('s_cselect_b32 s56, s56, %d' % x_base(d)), I('s_add_u32 s56, s56, s45')]
    for i in range(2):
        out.append(I('s_add_u32 m0, s56, %d' % (i * 1024)))
        out.append(VM('buffer_load_dwordx4 v12, s[12:15], s%d offen lds' % (52 + i), 'P2_%d' % d))
    return out

def x_dma(c):
    out = []
    for j in range(4):
        out.append(I('s_add_u32 m0, s47, %d' % ((c & 1) * 4096 + j * 1024 - c * 128)))
        out.append(VM('buffer_load_dwordx4 v%d, s[4:7], s%d offen offset:%d lds' % (2 + (j & 1), 24 + j, c * 128), 'X%d' % c))
    return out

def stage(c):
    out = [W(vm='X%d' % c)]
    for s in range(4):
        out.append(DS('ds_read_b128 %s, v%d offset:%d' % (vr(XR + 16 * c + 4 * s), 4 + s, (c & 1) * 4096), 'XF%d' % c))
    return out

B1 = (24, 36)
def tr1(ks, units=(0, 1, 2)):
    out = []
    d, k = ks >> 3, ks & 7
    for u in units:
        b = B1[ks & 1] + 4 * u
        for sec in range(2):
            out.append(DS('ds_read_b64_tr_b16 %s, v8 offset:%d' % (vr(b + 2 * sec, 2), (d % 3) * SLOT + k * 1536 + u * 32 + sec * 384), 'T1_%d_%d' % (ks, u)))
    return out

def cs1_read(d):
    return [DS('ds_read_b64_tr_b16 %s, v1 offset:%d' % (vr(CT1 + 4 * u + 2 * sec, 2), (d % 3) * SLOT + u * 32 + sec * 384), 'C1_%d' % d) for u in range(3) for sec in range(2)]
def cs1_mma(d):
    return [W(ds='C1_%d' % d)] + [I('v_mfma_f32_16x16x32_bf16 %s, %s, %s, %s' % (vr(CSA1 + 4 * u), vr(SEL1), vr(CT1 + 4 * u), '0' if d == 0 else vr(CSA1 + 4 * u))) for u in range(3)]

def tr2_addr(d, k, var, unit, sec):
    if unit == 0:
        reg, base = (13, t_base(d) - P1G) if d < 3 else (21, 0)
        return reg, base + k * 1024 + sec * 256
    reg, base = (14, x_base(d) - P1U) if d < 3 else (23, 0)
    return reg, base + (k * 1024 + sec * 256 if var == 0 else k * 512 + sec * 128)
def tr2(ks, var, unit):
    d, k = ks >> 3, ks & 7
    b = BR + 8 * (ks & 1) + 4 * unit
    out = []
    for sec in range(2):
        reg, off = tr2_addr(d, k, var, unit, sec)
        out.append(DS('ds_read_b64_tr_b16 %s, v%d offset:%d' % (vr(b + 2 * sec, 2), reg, off), 'T2_%d_%d' % (ks, unit)))
    return out
def cs2(d, var):
    out = []
    for unit in range(2):
        for sec in range(2):
            reg, off = tr2_addr(d, 0, var, unit, sec)
            if sec == 0: out.append(I('v_add_u32 v%d, s%d, v%d' % (19 + unit, 57 + (unit if var else 0), reg)))
            out.append(DS('ds_read_b64_tr_b16 %s, v%d offset:%d' % (vr(CT2 + 4 * unit + 2 * sec, 2), 19 + unit, off), 'C2_%d' % d))
    mm = [W(ds='C2_%d' % d)] + [I('v_mfma_f32_16x16x32_bf16 %s, %s, %s, %s' % (vr(CSA2 + 4 * u), vr(SEL2), vr(CT2 + 4 * u), '0' if d == 0 else vr(CSA2 + 4 * u))) for u in range(2)]
    return out, mm

def cs_publish(units, csa, tmp=(1, 2, 3)):
    ta, t2, t3 = tmp
    out = [I('s_lshr_b32 s59, s20, 2'), I('s_lshl_b32 s59, s59, 9'), I('s_and_b32 s56, s20, 3'), I('s_lshl_b32 s56, s56, 2'), I('s_add_u32 s59, s59, s56'),
           I('v_add_u32 v%d, s59, v22' % ta), I('s_mov_b64 exec, 0xffff')]
    for n, u in enumerate(units):
        for k in range(2):
            c = csa + 4 * n + k
            out += [I('v_cvt_pk_bf16_f32 v%d, v%d, v%d' % (t2, c, c)), I('v_lshlrev_b32 v%d, 16, v%d' % (t2, t2)), I('v_sub_f32 v%d, v%d, v%d' % (t3, c, t2)),
                    I('v_cvt_pk_bf16_f32 v%d, v%d, v%d' % (c, c, t3)),
                    DS('ds_write_b32 v%d, v%d offset:%d' % (ta, c, CSF + u * 1024 + 256 * k), 'CSA')]
    out += [I('s_mov_b64 exec, -1')]
    return out

def mean_fix(u, tag, swap=False):
    A = [DS('ds_read_b128 %s, v22 offset:%d' % (vr(CF), CSF + u * 1024), tag), W(ds=tag)]
    if swap: A.append(I('v_mfma_f32_32x32x16_bf16 %s, %s, %s, %s' % (acc(u), vr(MF), vr(CF), acc(u))))
    else: A.append(I('v_mfma_f32_32x32x16_bf16 %s, %s, %s, %s' % (acc(u), vr(CF), vr(MF), acc(u))))
    return A

def g_epilogue(u, soff_expr, tmp=(1, 2, 3, 12)):
    A = ACC + 16 * u
    out = []
    if 'pk' in EXP:
        for q in range(2):
            g = A + 4 * q; uu = A + 8 + 4 * q; t = 8
            p2 = lambda r: 'v[%d:%d]' % (r, r + 1)
            for i in (0, 2): out.append(I('v_pk_mul_f32 %s, %s, %s' % (p2(t + i), p2(g + i), p2(g + i))))
            for i in (0, 2): out.append(I('v_pk_fma_f32 %s, %s, v[46:47], v[44:45]' % (p2(t + i), p2(t + i))))
            for i in (0, 2): out.append(I('v_pk_mul_f32 %s, %s, %s' % (p2(t + i), p2(t + i), p2(g + i))))
            for i in range(4): out.append(I('v_exp_f32 v%d, v%d' % (t + i, t + i)))
            for i in (0, 2): out.append(I('v_pk_mul_f32 %s, %s, %s' % (p2(g + i), p2(g + i), p2(uu + i))))
            for i in (0, 2): out.append(I('v_pk_fma_f32 %s, %s, v[2:3], v[2:3]' % (p2(t + i), p2(t + i))))
            for i in range(4): out.append(I('v_rcp_f32 v%d, v%d' % (t + i, t + i)))
            for i in (0, 2): out.append(I('v_pk_mul_f32 %s, %s, %s' % (p2(g + i), p2(g + i), p2(t + i))))
            out.append(I('v_cvt_pk_bf16_f32 v%d, v%d, v%d' % (A + 8 + 2 * q, g, g + 1)))
            out.append(I('v_cvt_pk_bf16_f32 v%d, v%d, v%d' % (A + 8 + 2 * q + 1, g + 2, g + 3)))
    for q in range(2):
        if 'pk' in EXP: break
        g = [A + 4 * q + i for i in range(4)]
        uu = [A + 8 + 4 * q + i for i in range(4)]
        for i in range(4): out.append(I('v_mul_f32 v%d, v%d, v%d' % (tmp[i], g[i], g[i])))
        for i in range(4): out.append(I('v_fma_f32 v%d, v%d, v%d, v%d' % (tmp[i], tmp[i], C1, C0)))
        for i in range(4): out.append(I('v_mul_f32 v%d, v%d, v%d' % (tmp[i], tmp[i], g[i])))
        for i in range(4): out.append(I('v_exp_f32 v%d, v%d' % (tmp[i], tmp[i])))
        for i in range(4): out.append(I('v_mul_f32 v%d, v%d, v%d' % (g[i], g[i], uu[i])))
        for i in range(4): out.append(I('v_fma_f32 v%d, v%d, v%d, v%d' % (tmp[i], tmp[i], IRS2, IRS2)))
        for i in range(4): out.append(I('v_rcp_f32 v%d, v%d' % (tmp[i], tmp[i])))
        for i in range(4): out.append(I('v_mul_f32 v%d, v%d, v%d' % (g[i], g[i], tmp[i])))
        out.append(I('v_cvt_pk_bf16_f32 v%d, v%d, v%d' % (A + 8 + 2 * q, g[0], g[1])))
        out.append(I('v_cvt_pk_bf16_f32 v%d, v%d, v%d' % (A + 8 + 2 * q + 1, g[2], g[3])))
    sreg, add = soff_expr
    out.append(I('s_add_u32 s54, s%d, %d' % (sreg, add)))
    out.append(VM('buffer_store_dwordx4 %s, v22, s[16:19], s54 offen%s' % (vr(A + 8), STF), 'ST'))
    return out

def t_epilogue():
    A = ACC + 48
    o = XR + 32
    out = [I('v_mul_f32 v1, s51, v%d' % RSTD)]
    for r in range(16): out.append(I('v_mul_f32 v%d, v%d, v1' % (A + r, A + r)))
    for p in range(8): out.append(I('v_cvt_pk_bf16_f32 v%d, v%d, v%d' % (o + p, A + 2 * p, A + 2 * p + 1)))
    out.append(I('s_add_u32 s54, s49, 65536'))
    out.append(VM('buffer_store_dwordx4 %s, v22, s[16:19], s49 offen%s' % (vr(o), STF), 'ST'))
    out.append(VM('buffer_store_dwordx4 %s, v22, s[16:19], s54 offen%s' % (vr(o + 4), STF), 'ST'))
    return out

def v_pre():
    rs = XR + 48
    out = [I('v_lshrrev_b32 v19, 5, v0'), I('v_lshlrev_b32 v20, 4, v19'), I('s_lshl_b32 s59, s20, 7'), I('v_add_u32 v20, s59, v20')]
    for q in range(4):
        out.append(DS('ds_read_b128 %s, v20 offset:%d' % (vr(rs + 4 * q), ST + q * 32), 'VE'))
    out += [I('v_bfe_u32 v152, v0, 4, 1'), I('v_lshlrev_b32 v152, 16, v152'), I('v_lshl_add_u32 v152, v19, 8, v152'), I('v_and_b32 v19, 15, v0'), I('v_lshl_add_u32 v152, v19, 4, v152')]
    return out
def v_epilogue():
    A = ACC + 64
    rs, o = XR + 48, XR + 64
    out = [W(ds='VE')]
    for r in range(16): out.append(I('v_mul_f32 v%d, v%d, v%d' % (A + r, A + r, rs + r)))
    for p in range(8): out.append(I('v_cvt_pk_bf16_f32 v%d, v%d, v%d' % (o + p, A + 2 * p, A + 2 * p + 1)))
    out.append(VM('buffer_store_dwordx4 %s, v152, s[16:19], s50 offen%s' % (vr(o), STF), 'ST'))
    out.append(VM('buffer_store_dwordx4 %s, v152, s[16:19], s50 offen offset:512%s' % (vr(o + 4), STF), 'ST'))
    return out

def rne_bf16(dst, src):
    return [I('v_cvt_pk_bf16_f32 v%d, v%d, v%d' % (dst, src, src)), I('v_lshlrev_b32 v%d, 16, v%d' % (dst, dst))]

def stats_final():
    out = [I('v_and_b32 v19, 15, v0'), I('v_lshlrev_b32 v19, 2, v19'),
           DS('ds_bpermute_b32 v2, v19, v%d' % RS, 'BP'), DS('ds_bpermute_b32 v3, v19, v%d' % (RS + 1), 'BP'),
           I('v_add_f32 v16, v15, v16'), I('v_mov_b32 v17, v16'), I('v_permlane32_swap_b32 v16, v17'), I('v_add_f32 v16, v16, v17'),
           I('v_and_b32 v19, 16, v0'), I('v_cmp_ne_u32 vcc, 0, v19'), W(ds='BP'), I('v_cndmask_b32 v15, v2, v3, vcc'),
           I('v_mul_f32 v15, 0x3b000000, v15'), I('v_mul_f32 v16, 0x3b000000, v16'),
           I('v_fma_f32 v16, -v15, v15, v16'), I('v_max_f32 v16, 0, v16')]
    out += rne_bf16(16, 16)
    out += [I('v_add_f32 v16, 0x%08x, v16' % f2u(1e-5))]
    out += rne_bf16(16, 16)
    out += [I('v_sqrt_f32 v16, v16')]
    out += rne_bf16(16, 16)
    out += [I('v_sub_f32 v15, 0, v15'), I('v_cvt_pk_bf16_f32 v%d, v15, v15' % MF),
            I('v_mov_b32 v%d, v%d' % (MF + 1, MF)), I('v_mov_b32 v%d, v%d' % (MF + 2, MF)), I('v_mov_b32 v%d, v%d' % (MF + 3, MF)),
            I('v_rcp_f32 v%d, v16' % RSTD), I('v_mul_f32 v%d, v16, v16' % IRS2),
            I('v_mul_f32 v%d, 0x%08x, v%d' % (C0, f2u(K0), RSTD)), I('v_mul_f32 v19, v%d, v%d' % (RSTD, RSTD)),
            I('v_mul_f32 v19, v19, v%d' % RSTD), I('v_mul_f32 v%d, 0x%08x, v19' % (C1, f2u(K1C)))]
    out += [I('v_and_b32 v19, 31, v0'), I('v_lshlrev_b32 v19, 2, v19'), I('s_lshl_b32 s54, s20, 7'), I('v_add_u32 v19, s54, v19'),
            DS('ds_write_b32 v19, v%d offset:%d' % (RSTD, ST), 'STW')]
    return out

def groups(items):
    g, cur = [], []
    for x in items:
        cur.append(x)
        if x.q == 'vm': g.append(cur); cur = []
    assert not cur
    return g

def touch():
    if 'touch' not in EXP: return []
    out = []
    out += [I('s_lshr_b32 s52, s2, 5'), I('s_and_b32 s52, s52, 3'), I('s_lshl_b32 s52, s52, 3'), I('s_add_u32 s52, s52, s20'), I('s_lshl_b32 s52, s52, 13'),
            I('s_lshr_b32 s53, s21, 3'), I('s_lshl_b32 s53, s53, 18'), I('s_add_u32 s52, s52, s53'), I('v_lshlrev_b32 v31, 7, v0'),
            VM('buffer_load_dword v252, v31, s[4:7], s52 offen', 'PF')]
    out += [I('s_lshr_b32 s52, s2, 3'), I('s_and_b32 s52, s52, 3'), I('s_lshl_b32 s52, s52, 7'), I('s_and_b32 s53, s20, 1'), I('s_lshl_b32 s53, s53, 6'), I('s_add_u32 s52, s52, s53'),
            I('v_add_u32 v31, s52, v0'), I('v_mul_u32_u24 v32, 3584, v31'), I('s_lshl_b32 s53, s31, 1'), I('s_and_b32 s52, s20, 2'), I('s_lshl_b32 s52, s52, 6'), I('s_add_u32 s53, s53, s52'),
            VM('buffer_load_dword v253, v32, s[8:11], s53 offen', 'PF')]
    out += [I('v_mul_u32_u24 v32, 3072, v31'), I('s_lshl_b32 s53, s22, 6'), I('s_lshl_b32 s52, s30, 6'), I('s_add_u32 s52, s52, 2048'), I('s_and_b32 s56, s20, 2'), I('s_cmp_eq_u32 s56, 0'), I('s_cselect_b32 s53, s53, s52'),
            I('s_mov_b32 s60, s28'), I('s_mov_b32 s61, s29'), I('s_mov_b32 s62, 1572864'), I('s_mov_b32 s63, 0x20000'),
            VM('buffer_load_dword v254, v32, s[60:63], s53 offen', 'PF')]
    return out
def touch_code(tag, first_kb, nwaves):
    if 'notouch' in EXP or 'nocode' in EXP: return []
    L = 'K1_TC%s' % tag
    return [I('s_cmp_ge_u32 s20, %d' % nwaves), I('s_cbranch_scc1 %s' % L),
            I('s_getpc_b64 s[52:53]'), I(L + 'P:'), I('s_sub_u32 s52, s52, %sP-k1_kernel' % L), I('s_subb_u32 s53, s53, 0'),
            I('s_lshl_b32 s56, s20, 13'), I('s_add_u32 s56, s56, %d' % (first_kb * 1024)), I('v_lshl_add_u32 v31, v0, 7, s56'),
            I('v_min_u32 v31, CODE_END-k1_kernel-4, v31'), I('global_load_dword v%d, v31, s[52:53]' % (255 if tag == 'A' else 47)), I(L + ':')]

def touch_tlb():
    if 'tlb' not in EXP: return []
    return [I('s_cmp_lg_u32 s20, 5'), I('s_cbranch_scc1 K1_TLB1'),
            I('v_lshlrev_b32 v31, 19, v0'), I('buffer_load_dword v254, v31, s[16:19], 0 offen'), I('K1_TLB1:'),
            I('s_cmp_lg_u32 s20, 6'), I('s_cbranch_scc1 K1_TLB2'),
            I('s_load_dwordx2 s[60:61], s[0:1], 56'), I('s_mov_b32 s62, 0x200000'), I('s_mov_b32 s63, 0x20000'), I('v_lshlrev_b32 v31, 15, v0'), I('s_waitcnt lgkmcnt(0)'),
            I('buffer_load_dword v254, v31, s[60:63], 0 offen'), I('K1_TLB2:')]

def build_k1():
    a = Asm()
    prologue(a)
    R = Resolver(a)
    pre = ([I('s_memrealtime s[92:93]')] if (STAMP or DBGT) else []) + stamp() + w1_dma(0) + x_dma(0) + x_dma(1)
    R.run(pre)
    prologue2(a)
    R.run(touch_code('A', 0, 3) + touch() + touch_tlb())
    pre = [] if FUSED[0] else [I('s_or_b32 s52, s2, s20'), I('s_cmp_lg_u32 s52, 0'), I('s_cbranch_scc1 K1_NOZ'),
           I('v_mov_b32 v32, 0'), I('v_mov_b32 v33, 0'), I('v_mov_b32 v34, 0'), I('v_mov_b32 v35, 0'), I('s_mov_b32 s52, %d' % FLG)]
    if not FUSED[0]:
        pre += [I('buffer_store_dwordx4 v[32:35], v22, s[16:19], s52 offen offset:%d' % (1024 * i)) for i in range(4)]
        pre += [I('s_waitcnt vmcnt(0)'), I('K1_NOZ:')]
    pre += stamp() + [W(vm='W1_0'), I('s_barrier')] + stamp()
    pre += stage(0) + tr1(0)
    R.run(pre)
    stats_final_items = stats_final()
    for ks in range(32):
        c, d = ks >> 2, ks >> 3
        it = []
        b = B1[ks & 1]; x = XR + 4 * ks
        vmg = []
        if (ks & 7) == 7 and ks < 31:
            it += cs1_mma(d)
            it += stamp() + [W(vm='W1_%d' % (d + 1), ds=['T1_%d_%d' % (ks, u) for u in range(3)]), I('s_barrier')]
            vmg += groups(w1_dma(3)) if d == 0 else groups(p2_dma(d - 1))
        if (ks & 3) == 3 and c + 3 <= 7:
            g = groups(x_dma(c + 3)); g[0] = [W(ds='XF%d' % (c + 1))] + g[0]; vmg += g
        if ks == 0: vmg += groups(w1_dma(1))
        if ks == 1: vmg += groups(x_dma(2))
        if ks == 5: vmg += groups(w1_dma(2))
        def stat(k2):
            x2 = XR + 4 * k2
            sq = []
            for j in range(4):
                t = 17 + 2 * (j & 1)
                sq.append([I('v_lshlrev_b32 v%d, 16, v%d' % (t, x2 + j)), I('v_and_b32 v%d, 0xffff0000, v%d' % (t + 1, x2 + j)),
                           I('v_fmac_f32 v%d, v%d, v%d' % (SQA, t, t)), I('v_fmac_f32 v%d, v%d, v%d' % (SQB, t + 1, t + 1))])
            return [[W(ds='XF%d' % (k2 >> 2))] + sq[0] + [I('v_mfma_f32_16x16x32_bf16 %s, %s, %s, %s' % (vr(RS), vr(SEL1), vr(x2), '0' if k2 == 0 else vr(RS)))], sq[1] + sq[2], sq[3]]
        if ks < 26: side = stat(ks)
        elif ks < 29:
            a1, a2 = stat(26 + 2 * (ks - 26)), stat(27 + 2 * (ks - 26))
            side = [a1[0] + a1[1], a1[2] + a2[0], a2[1] + a2[2]]
        else:
            sf = stats_final_items
            n = len(sf); k3 = ks - 29
            part = sf[n * k3 // 3: n * (k3 + 1) // 3]
            side = [part[:len(part) // 3], part[len(part) // 3: 2 * len(part) // 3], part[2 * len(part) // 3:]]
        for u in range(3):
            if 'mw' in EXP: it += [W(ds=['T1_%d_%d' % (ks, uu) for uu in range(3)] + ['XF%d' % c])]
            else: it += [W(ds=('T1_%d_%d' % (ks, u), 'XF%d' % c))]
            it.append(I('v_mfma_f32_32x32x16_bf16 %s, %s, %s, %s' % (acc(u), vr(b + 4 * u), vr(x), '0' if ks == 0 else acc(u))))
            if ks < 31: it += tr1(ks + 1, (u,))
            it += side[u]
            if u < len(vmg): it += vmg[u]
        for g in vmg[3:]: it += g
        if (ks & 7) == 5: it += cs1_read(d)
        if (ks & 3) == 1 and c < 6: it += stage(c + 1)
        if ks == 24: it += stage(7)
        R.run(it)
    mid = stamp() + cs1_mma(3) + cs_publish((0, 1, 2), CSA1) + [I('v_mov_b32 v%d, v%d' % (SEL2 + r, SEL1)) for r in range(4)]
    mid += [I('s_lshl_b32 s57, s20, 10'), I('s_lshl_b32 s58, s20, 9')]
    mid += [W(vm=('P2_0', 'P2_1'), ds='ALL'), I('s_barrier')] + stamp() + p2_dma(2) + p2_dma(3)
    mid += touch_code('B', 16, 4)
    if 'nopf' not in EXP:
        mid += [I('s_load_dwordx2 s[60:61], s[0:1], 48'), I('s_waitcnt lgkmcnt(0)'), I('s_mov_b32 s62, 1835008'), I('s_mov_b32 s63, 0x20000'), I('s_mov_b32 s98, 0x80000'), I('s_mov_b32 s99, 0x20000'),
                I('s_lshl_b32 s54, s2, 3'), I('s_add_u32 s54, s54, s20'), I('s_lshl_b32 s54, s54, 10'),
                VM('buffer_load_dwordx4 v[44:47], v22, s[60:63], s54 offen', 'PF'), VM('buffer_load_dwordx4 v[44:47], v22, s[96:99], s54 offen', 'PF')]
    R.run(mid)
    st_save = _st[0]
    a('s_cmp_eq_u32 s23, 0\ns_cbranch_scc0 K1_VARB')
    for var in range(2):
        if var == 1: a('K1_VARB:')
        RR = copy.deepcopy(R); RR.a = a; _st[0] = st_save
        main = tr2(0, var, 0) + tr2(0, var, 1)
        body = []
        for ks in range(32):
            b = BR + 8 * (ks & 1); x = XR + 4 * ks
            if ks == 15: body.append([W(vm=('P2_2', 'P2_3')), I('s_barrier')])
            body.append([W(ds=('T2_%d_0' % ks, 'T2_%d_1' % ks) if 'mw' in EXP else 'T2_%d_0' % ks), I('v_mfma_f32_32x32x16_bf16 %s, %s, %s, %s' % (acc(3), vr(b), vr(x), '0' if ks == 0 else acc(3)))])
            if ks < 31: body.append(tr2(ks + 1, var, 0))
            if var == 0: mf = I('v_mfma_f32_32x32x16_bf16 %s, %s, %s, %s' % (acc(4), vr(x), vr(b + 4), '0' if ks == 0 else acc(4)))
            else: mf = I('v_mfma_f32_32x32x16_bf16 %s, %s, %s, %s' % (acc(4), vr(b + 4), vr(x), '0' if ks == 0 else acc(4)))
            body.append([W(ds='T2_%d_1' % ks), mf])
            if ks < 31: body.append(tr2(ks + 1, var, 1))
            for dd, kk in enumerate((5, 8, 16, 18)):
                if ks == kk: body.append(cs2(dd, var)[0])
                if ks == kk + 1: body.append(cs2(dd, var)[1])
            if ks == 20: body.append(cs_publish((3, 4), CSA2, tmp=(19, 20, 144)))
            if ks == 23: body.append([W(ds='CSA'), I('s_barrier')])
            if ks == 25: body.append([DS('ds_read_b128 %s, v22 offset:%d' % (vr(144 + 4 * n), CSF + (3 + n) * 1024), 'CFF') for n in range(2)] + (v_pre() if var == 0 else []))
        side = []
        for u in range(3): side += mean_fix(u, 'MF%d' % u)
        if 'pk' in EXP: side += [W(vm='PF'), I('v_mov_b32 v44, v%d' % C0), I('v_mov_b32 v45, v%d' % C0), I('v_mov_b32 v46, v%d' % C1), I('v_mov_b32 v47, v%d' % C1), I('v_mov_b32 v2, v%d' % IRS2), I('v_mov_b32 v3, v%d' % IRS2)]
        for u in range(3): side += g_epilogue(u, (48, u * 1024))
        merged = merge(body, side)
        flat = []
        for x in merged:
            if isinstance(x, list): flat += x
            else: flat.append(x)
        RR.run(main + flat)
        fin = stamp() + stamp() + [W(ds='CFF'), I('v_mfma_f32_32x32x16_bf16 %s, %s, %s, %s' % (acc(3), vr(144), vr(MF), acc(3)))]
        if var == 0: fin.append(I('v_mfma_f32_32x32x16_bf16 %s, %s, %s, %s' % (acc(4), vr(MF), vr(148), acc(4))))
        else: fin.append(I('v_mfma_f32_32x32x16_bf16 %s, %s, %s, %s' % (acc(4), vr(148), vr(MF), acc(4))))
        fin += t_epilogue()
        if var == 0: fin += v_epilogue()
        else: fin += g_epilogue(4, (50, 0))
        fin += stamp() + ([I('s_waitcnt vmcnt(0)')] if STAMP else []) + stamp() + ([I('s_memrealtime s[94:95]')] if STAMP else []) + stamp_out(16 << 20)
        if DBGT:
            fin += [I('s_waitcnt vmcnt(0)'), I('s_memrealtime s[94:95]'), I('s_waitcnt lgkmcnt(0)'), I('s_lshl_b32 s54, s2, 3'), I('s_add_u32 s54, s54, s20'), I('s_lshl_b32 s54, s54, 3'), I('s_add_u32 s54, s54, %d' % (24 << 20)),
                    I('v_mov_b32 v1, 0'), I('v_mov_b32 v2, s92'), I('v_mov_b32 v3, s94'), I('buffer_store_dwordx2 v[2:3], v1, s[16:19], s54 offen')]
        RR.run(fin)
        if FUSED[0]: a('s_branch PHASE2' if var == 0 else 's_nop 0')
        else: a('s_endpgm' if var == 0 else 'K1_END:\ns_endpgm')
    if FUSED[0]: return a
    return a.finalize()

if __name__ == '__main__':
    print(len(build_k1().splitlines()))
```

```python
from asmlib import *
from sched import *
from k1 import QF, KF, VF, HF, OF, FLG, WS_RANGE, vr, f2u
import copy, os
import k1 as K1M
STAMP = int(os.environ.get('STAMP', '0'))
EARLYBAR = int(os.environ.get('EARLYBAR', '0'))
FLAGPOS = int(os.environ.get('FLAGPOS', '27'))
_st = [0]
SB0 = 96
def stamp():
    if not STAMP: return []
    k = _st[0]; _st[0] += 1
    return [I('s_memrealtime s[96:97]' if STAMP == 2 else 's_memtime s[96:97]'), I('s_waitcnt lgkmcnt(0)'), I('v_mov_b32 v%d, s96' % (240 + k))]
def stamp_out(base):
    if not STAMP: return []
    out = [I('s_lshl_b32 s54, s2, 3'), I('s_add_u32 s54, s54, s20'), I('s_lshl_b32 s54, s54, 7'), I('s_add_u32 s54, s54, %d' % base), I('v_mov_b32 v1, 0')]
    for k in range(16):
        out += [I('buffer_store_dword v%d, v1, s[16:19], s54 offen offset:%d' % (240 + k, 4 * k))]
    return out

DEPTH = int(os.environ.get('DEPTH', '8'))
P1SLEEP = int(os.environ.get('P1SLEEP', '16'))
GATE = int(os.environ.get('GATE', '22'))
STS = eval(os.environ.get('STS', '(4, 12, 20, 28)'))
PSLEEP = int(os.environ.get('PSLEEP', '1'))
RSZ = max(17408, DEPTH * 2048 + 1024)
FLAG = 4 * RSZ
LDS_K2 = FLAG + 256
NEG_BIG = 0xf149f2ca
GA = 16; GB = GA + 8 * DEPTH; GACC = GB + 16
AQ, AK, AV, SA, SB, CN, CT, AP, AO = 16, 24, 64, 144, 160, 176, 192, 208, 216
XRES = 232

def prologue(a):
    if K1M.FUSED[0]:
        a('''
PHASE2:
s_waitcnt vmcnt(0) lgkmcnt(0)
v_lshl_add_u32 v0, s20, 6, v0
''')
    else:
        a('''
s_cmp_ge_u32 s2, 256
s_cbranch_scc1 K2_END
''')
    a('''
s_memrealtime s[98:99]
s_load_dwordx2 s[4:5], s[0:1], 0
s_load_dwordx2 s[8:9], s[0:1], 16
s_load_dwordx2 s[12:13], s[0:1], 48
s_load_dwordx4 s[24:27], s[0:1], 56
s_load_dwordx2 s[16:17], s[0:1], 72
v_mov_b32 v15, v0
v_lshrrev_b32 v1, 6, v0
v_and_b32 v0, 63, v0
v_readfirstlane_b32 s20, v1
s_and_b32 s36, s2, 7
s_lshr_b32 s37, s2, 3
s_lshl_b32 s21, s36, 2
s_lshr_b32 s38, s37, 3
s_add_u32 s21, s21, s38
s_and_b32 s22, s37, 7
v_lshlrev_b32 v14, 4, v0
v_lshrrev_b32 v1, 3, v15
v_and_b32 v2, 7, v15
v_lshlrev_b32 v13, 10, v1
v_lshl_add_u32 v13, v2, 4, v13
v_mul_u32_u24 v12, 272, v1
v_lshl_add_u32 v12, v2, 5, v12
s_lshl_b32 s23, s21, 16
s_lshl_b32 s36, s22, 7
s_add_u32 s23, s23, s36
v_mov_b32 v1, 0
v_mov_b32 v2, %d
v_and_b32 v3, 3, v0
v_lshl_add_u32 v2, v3, 2, v2
ds_write_b32 v2, v1
s_waitcnt lgkmcnt(0)
s_mov_b32 s6, 0x200000
s_mov_b32 s7, 0x20000
s_mov_b32 s10, 0x80000
s_mov_b32 s11, 0x20000
s_mov_b32 s14, 1835008
s_mov_b32 s15, 0x20000
s_mov_b32 s18, %d
s_mov_b32 s19, 0x20000
s_mov_b32 s28, s24
s_mov_b32 s29, s25
s_mov_b32 s30, 0x200000
s_mov_b32 s31, 0x20000
s_mov_b32 s32, s26
s_mov_b32 s33, s27
s_mov_b32 s34, 256
s_mov_b32 s35, 0x20000
s_barrier
''' % (FLAG, WS_RANGE))
    if K1M.FUSED[0]:
        a('''
s_cmp_lg_u32 s20, 4
s_cbranch_scc1 K2_NOF1
v_mov_b32 v1, 1
v_mov_b32 v2, s2
s_mov_b64 exec, 1
buffer_store_byte v1, v2, s[32:35], 0 offen sc1
s_mov_b64 exec, -1
K2_NOF1:
''')

def final_reduce(tagp):
    out = stamp() + [I('v_add_u32 v11, %d, v12' % (2 * RSZ)), I('s_barrier')] + stamp()
    T = 192
    for g in range(4):
        for hlf in range(2):
            out.append(DS('ds_read_b128 %s, v%d offset:%d' % (vr(T + 8 * g + 4 * hlf), 12 if g < 2 else 11, (g & 1) * RSZ + 16 * hlf), tagp + 'R'))
    out.append(W(vm='XRES'))
    for i in range(4):
        out.append(I('v_lshlrev_b32 v%d, 16, v%d' % (64 + 2 * i, XRES + i)))
        out.append(I('v_and_b32 v%d, 0xffff0000, v%d' % (65 + 2 * i, XRES + i)))
    out.append(W(ds=tagp + 'R'))
    for i in range(8): out.append(I('v_add_f32 v%d, v%d, v%d' % (T + i, T + i, T + 8 + i)))
    for i in range(8): out.append(I('v_add_f32 v%d, v%d, v%d' % (T + 16 + i, T + 16 + i, T + 24 + i)))
    for i in range(8): out.append(I('v_add_f32 v%d, v%d, v%d' % (T + i, T + i, T + 16 + i)))
    for i in range(8): out.append(I('v_add_f32 v%d, v%d, v%d' % (T + i, T + i, 64 + i)))
    for i in range(4): out.append(I('v_cvt_pk_bf16_f32 v%d, v%d, v%d' % (72 + i, T + 2 * i, T + 2 * i + 1)))
    out.append(VM('buffer_store_dwordx4 v[72:75], v13, s[28:31], s23 offen%s' % os.environ.get('OSF', ''), 'OUT'))
    out += stamp() + stamp_out(17 << 20)
    if K1M.DBGT:
        L = 'K2_DBG' + tagp
        out += [I('s_waitcnt vmcnt(0)'), I('s_memrealtime s[96:97]'), I('s_waitcnt lgkmcnt(0)'), I('v_mov_b32 v1, 0'), I('v_mov_b32 v2, s96'), I('s_not_b32 s98, s98'), I('v_mov_b32 v3, s98'),
                I('s_mov_b64 exec, 1'), I('buffer_atomic_umax v2, v1, s[32:35], 0 offen'), I('buffer_atomic_umax v3, v1, s[32:35], 0 offen offset:4'), I('s_mov_b64 exec, -1'),
                I('s_cmp_ge_u32 s2, 32'), I('s_cbranch_scc1 %s' % L),
                I('s_lshl_b32 s54, s2, 9'), I('s_add_u32 s54, s54, %d' % (24 << 20)), I('v_lshlrev_b32 v4, 3, v0'), I('buffer_load_dwordx2 v[2:3], v4, s[16:19], s54 offen'), I('s_waitcnt vmcnt(0)'),
                I('v_not_b32 v2, v2'), I('buffer_atomic_umax v2, v1, s[32:35], 0 offen offset:8'), I('buffer_atomic_umax v3, v1, s[32:35], 0 offen offset:12'), I(L + ':')]
    out.append(I('s_endpgm'))
    return out

def lds_spin(name, off, areg=4, treg=5):
    return [I(name + ':'), DS('ds_read_b32 v%d, v%d offset:%d' % (treg, areg, off), 'FL' + name), W(ds='ALL'), I('v_readfirstlane_b32 s52, v%d' % treg),
            I('s_cmp_lg_u32 s52, 0'), I('s_cbranch_scc1 %s_OK' % name), I('s_sleep 1'), I('s_branch %s' % name), I(name + '_OK:')]

def gemm(a):
    R = Resolver(a)
    txt = ('''
v_lshrrev_b32 v1, 3, v0
v_and_b32 v2, 7, v0
v_bfe_u32 v3, v0, 4, 1
v_lshlrev_b32 v3, 2, v3
v_xor_b32 v2, v2, v3
v_lshlrev_b32 v1, 10, v1
v_lshl_add_u32 v1, v2, 4, v1
v_lshrrev_b32 v2, 5, v0
v_bfe_u32 v3, v0, 2, 2
v_lshl_add_u32 v2, v2, 2, v3
v_lshlrev_b32 v2, 7, v2
v_lshrrev_b32 v3, 1, v3
v_lshl_add_u32 v2, v3, 6, v2
v_bfe_u32 v3, v0, 4, 1
v_lshl_add_u32 v2, v3, 5, v2
v_and_b32 v3, 3, v0
v_lshl_add_u32 v2, v3, 3, v2
s_mul_i32 s40, s20, %d
v_add_u32 v2, s40, v2
v_xor_b32 v3, 64, v2
s_mul_i32 s41, s21, 224
s_mul_i32 s36, s20, 28
s_add_u32 s41, s41, s36
s_lshl_b32 s41, s41, 10
s_add_u32 s41, s41, %d
s_add_u32 s42, s41, 114688
s_mul_i32 s43, s20, 458752
s_lshl_b32 s36, s22, 7
s_add_u32 s43, s43, s36
s_lshl_b32 s44, s21, 6
s_lshl_b32 s37, s20, 3
s_add_u32 s44, s44, s37
s_lshl_b32 s44, s44, 10
s_add_u32 s44, s44, %d
s_add_u32 s45, s44, 32768
s_lshl_b32 s46, s20, 17
s_add_u32 s46, s46, s36
v_mov_b32 v4, %d
''' % (RSZ, HF, OF, FLAG))
    a(txt)
    def LA(s):
        out = []
        for t in range(2):
            dst = vr(GA + 8 * (s % DEPTH) + 4 * t)
            if s < 28:
                out.append(I('s_add_u32 s50, s%d, %d' % (41 + t, s * 1024)))
                out.append(VM('buffer_load_dwordx4 %s, v14, s[16:19], s50 offen%s' % (dst, ' sc1' if K1M.FUSED[0] else ''), 'A%d' % s))
            else:
                out.append(I('s_add_u32 s50, s%d, %d' % (44 + t, (s - 28) * 1024)))
                out.append(VM('buffer_load_dwordx4 %s, v14, s[16:19], s50 offen sc1' % dst, 'A%d' % s))
        return out
    def LW(s):
        out = []
        for i in range(2):
            if s < 28:
                out.append(I('s_add_u32 s51, s43, %d' % ((16 * s + 8 * i) * 1024))); srd = 's[12:15]'
            else:
                out.append(I('s_add_u32 s51, s46, %d' % ((16 * (s - 28) + 8 * i) * 1024))); srd = 's[8:11]'
            out.append(I('s_add_u32 m0, s40, %d' % ((s % DEPTH) * 2048 + i * 1024)))
            out.append(VM('buffer_load_dwordx4 v1, %s, s51 offen lds' % srd, 'W%d' % s))
        return out
    def TR(s):
        out = [W(vm='W%d' % s)]
        for cti in range(2):
            for sec in range(2):
                out.append(DS('ds_read_b64_tr_b16 %s, v%d offset:%d' % (vr(GB + 8 * (s & 1) + 4 * cti + 2 * sec, 2), 2 + cti, (s % DEPTH) * 2048 + sec * 1024), 'T%d' % s))
        return out
    _st[0] = 0
    it = stamp() + ([I('s_barrier')] if EARLYBAR else [])
    if K1M.FUSED[0]:
        it.append(VM('buffer_load_dwordx4 %s, v13, s[4:7], s23 offen' % vr(XRES), 'XRES'))
        for s in range(8): it += LW(s)
        it += lds_spin('K2_GW1', 4)
        for s in range(8): it += LA(s)
    else:
        for s in range(DEPTH): it += LW(s) + LA(s)
    if not K1M.FUSED[0]: it.append(VM('buffer_load_dwordx4 %s, v13, s[4:7], s23 offen' % vr(XRES), 'XRES'))
    it += stamp() + TR(0)
    pend = []
    for s in range(36):
        if s in STS: it += stamp()
        if s == GATE: it += [I('v_mov_b32 v5, 1'), DS('ds_write_b32 v4, v5 offset:12', 'GT')]
        it.append(W(vm='A%d' % s, ds='T%d' % s))
        mm = []
        for t in range(2):
            for cti in range(2):
                ac = vr(GACC + 16 * (2 * t + cti), 16)
                mm.append(I('v_mfma_f32_32x32x16_bf16 %s, %s, %s, %s' % (ac, vr(GB + 8 * (s & 1) + 4 * cti), vr(GA + 8 * (s % DEPTH) + 4 * t), '0' if s == 0 else ac)))
        it += mm[:2]
        if s < 35: it += TR(s + 1)
        it += mm[2:]
        n = s + DEPTH
        if n < 36: it += LW(n)
        n = s + DEPTH - 1
        if DEPTH <= n < 28: it += LA(n)
        if s == FLAGPOS:
            it += [I('K2_FW:'), DS('ds_read_b32 v5, v4', 'FL'), W(ds='ALL'), I('v_readfirstlane_b32 s52, v5'),
                   I('s_cmp_lg_u32 s52, 0'), I('s_cbranch_scc1 K2_FOK'), I('s_sleep 1'), I('s_branch K2_FW'), I('K2_FOK:')]
            it += stamp()
            for p in range(28, min(36, n + 1)): it += LA(p)
        elif s > FLAGPOS and 28 <= n < 36: it += LA(n)
    it += [I('v_and_b32 v5, 31, v0'), I('v_mul_u32_u24 v5, 272, v5'), I('v_lshrrev_b32 v6, 5, v0'), I('v_lshl_add_u32 v5, v6, 4, v5'), I('v_add_u32 v5, s40, v5')]
    for t in range(2):
        for cti in range(2):
            for q in range(4):
                it.append(DS('ds_write_b128 v5, %s offset:%d' % (vr(GACC + 16 * (2 * t + cti) + 4 * q), t * 32 * 272 + cti * 128 + q * 32), 'RW'))
    it.append(W(ds='ALL'))
    it += final_reduce('G')
    R.run(it)

_l = [0]
def lab(p):
    _l[0] += 1
    return 'K2_%s%d' % (p, _l[0])

def attn(a):
    R = Resolver(a)
    a('''
s_setprio 3
s_sub_u32 s36, s20, 4
s_lshl_b32 s40, s22, 2
s_add_u32 s40, s40, s36
s_lshl_b32 s41, s21, 1
s_sub_u32 s41, s41, 8
s_lshl_b32 s42, s40, 16
v_and_b32 v1, 15, v0
v_lshrrev_b32 v2, 5, v0
v_lshlrev_b32 v1, 4, v1
v_lshl_add_u32 v1, v2, 8, v1
v_bfe_u32 v3, v0, 4, 1
v_lshl_add_u32 v1, v3, 9, v1
v_and_b32 v3, 31, v0
v_lshlrev_b32 v2, 2, v2
v_sub_u32 v3, v3, v2
v_mov_b32 v4, 0x%08x
''' % NEG_BIG)
    _st[0] = 0
    it = stamp()
    SC = ' sc1' if K1M.FUSED[0] else ''
    if K1M.FUSED[0]:
        it += [I('v_mov_b32 v7, %d' % FLAG), I('s_cmp_lg_u32 s20, 4'), I('s_cbranch_scc1 K2_AW1'),
               I('s_lshr_b32 s36, s21, 2'), I('s_max_i32 s37, s41, 0'), I('s_lshr_b32 s37, s37, 3'),
               I('v_bfe_u32 v5, v0, 1, 2'), I('v_mov_b32 v6, 0')]
        for sr in (36, 37):
            it += [I('s_and_b32 s38, s%d, 3' % sr), I('s_cmp_ge_u32 s%d, 4' % sr), I('s_mov_b32 s39, 0x00010001'), I('s_cselect_b32 s39, 0x01000100, s39'),
                   I('v_cmp_eq_u32 vcc, s38, v5'), I('v_mov_b32 v8, s39'), I('v_cndmask_b32 v8, 0, v8, vcc'), I('v_or_b32 v6, v6, v8')]
        it += [I('v_lshlrev_b32 v5, 2, v0'),
               I('K2_P1:'), I('s_sleep %d' % P1SLEEP), VM('buffer_load_dword v8, v5, s[32:35], 0 offen sc1', 'PL1'), W(vm='ALL'),
               I('v_lshrrev_b32 v9, 1, v8'), I('v_or_b32 v8, v8, v9'), I('v_and_b32 v8, v8, v6'), I('v_cmp_eq_u32 vcc, v8, v6'),
               I('s_cmp_eq_u64 vcc, -1'), I('s_cbranch_scc1 K2_P1D'), I('s_branch K2_P1'), I('K2_P1D:'),
               I('v_mov_b32 v8, 1'), DS('ds_write_b32 v7, v8 offset:4', 'FW1'), W(ds='ALL')]
        it += lds_spin('K2_AW1', 4, 7, 8)
    it += [I('s_lshl_b32 s37, s21, 11'), I('s_add_u32 s37, s37, s42')]
    it.append(VM('buffer_load_dwordx4 %s, v14, s[16:19], s37 offen%s' % (vr(AQ), SC), 'Q0'))
    def kload(jj):
        return [I('s_add_i32 s36, s41, %d' % jj), I('s_max_i32 s36, s36, 0'), I('s_lshl_b32 s36, s36, 10'), I('s_add_u32 s%d, s36, s42' % (44 + jj)),
                I('s_add_u32 s36, s%d, %d' % (44 + jj, KF)),
                VM('buffer_load_dwordx4 %s, v14, s[16:19], s36 offen%s' % (vr(AK + 4 * jj), SC), 'K%d' % jj)]
    def vload(jj):
        return [I('s_add_u32 s36, s%d, %d' % (44 + jj, VF)), VM('buffer_load_dwordx4 %s, v1, s[16:19], s36 offen%s' % (vr(AV + 8 * jj), SC), 'V%d' % jj)]
    for jj in range(8, -1, -1): it += kload(jj)
    it.append(VM('buffer_load_dwordx4 %s, v14, s[16:19], s37 offen offset:1024%s' % (vr(AQ + 4), SC), 'Q1'))
    it += kload(9)
    if EARLYBAR: it.append(I('s_barrier'))
    for r in range(16):
        it.append(I('v_cmp_ge_i32 s[%d:%d], v3, %d' % (64 + 2 * r, 65 + 2 * r, 8 * (r >> 2) + (r & 3))))
    for jj in range(10):
        for r in range(4): it.append(I('v_mov_b32 v%d, 0x3f803f80' % (AV + 8 * jj + 4 + r)))
    vl = [vload(jj) for jj in list(range(8, -1, -1)) + [9]] + [[VM('buffer_load_dwordx4 %s, v13, s[4:7], s23 offen' % vr(XRES), 'XRES')]]
    def smfma(qi, jp, buf, cmode):
        jj = qi + jp
        out = [W(vm=('Q%d' % qi, 'K%d' % jj))]
        if jp == 8 or jp == 0:
            val = '0' if cmode == 'A' else 'v%d' % CN
            for r in range(16):
                m = 's[%d:%d]' % (64 + 2 * r, 65 + 2 * r)
                if jp == 8: out.append(I('v_cndmask_b32 v%d, v4, %s, %s' % (CT + r, val, m)))
                else: out.append(I('v_cndmask_b32 v%d, %s, v4, %s' % (CT + r, val, m)))
            c = vr(CT, 16)
        else:
            c = '0' if cmode == 'A' else vr(CN, 16)
        out.append(I('v_mfma_f32_32x32x16_bf16 %s, %s, %s, %s' % (vr(buf, 16), vr(AK + 4 * jj), vr(AQ + 4 * qi), c)))
        return out
    def one_pass(qi, cmode, fast, proc):
        bufs = (SA, SB)
        out = smfma(qi, 8, bufs[0], cmode)
        Ld = lab('D')
        for n, jp in enumerate(range(8, -1, -1)):
            if jp > 0:
                Ls = lab('S')
                if not fast: out += [I('s_add_i32 s36, s41, %d' % (qi + jp - 1)), I('s_cmp_lt_i32 s36, 0'), I('s_cbranch_scc1 %s' % Ls)]
                out += smfma(qi, jp - 1, bufs[(n + 1) & 1], cmode)
                if not fast: out += [I(Ls + ':')]
            out += proc(jp, bufs[n & 1])
            if jp > 0 and not fast: out += [I('s_add_i32 s36, s41, %d' % (qi + jp - 1)), I('s_cmp_lt_i32 s36, 0'), I('s_cbranch_scc1 %s' % Ld)]
        if not fast: out += [I(Ld + ':'), I('s_nop 15')]
        return out
    def body(fast):
        it = []
        swapped = set()
        if not fast:
            for g in vl: it += g
            it.append(W(vm='ALL'))
            for jj in range(10):
                for r in range(4): it.append(I('v_permlane16_swap_b32 v%d, v%d' % (AV + 8 * jj + r, AV + 8 * jj + 4 + r)))
                swapped.add(jj)
        for qi in range(2):
            pend = list(vl) if (fast and qi == 0) else []
            def procA(jp, b):
                o = [I('v_max3_f32 v5, v%d, v%d, v5' % (b + 2 * i, b + 2 * i + 1)) for i in range(8)]
                if pend: o += pend.pop(0)
                if pend and jp < 3: o += pend.pop(0)
                return o
            it += (stamp() if fast else []) + [I('v_mov_b32 v5, v4')] + one_pass(qi, 'A', fast, procA)
            for g in pend: it += g
            it += [I('v_mov_b32 v6, v5'), I('v_permlane32_swap_b32 v5, v6'), I('v_max_f32 v5, v5, v6'), I('v_sub_f32 v%d, 0, v5' % CN)]
            for r in range(1, 16): it.append(I('v_mov_b32 v%d, v%d' % (CN + r, CN)))
            def procB(jp, b):
                jj = qi + jp
                o = []
                if jj not in swapped:
                    swapped.add(jj)
                    o.append(W(vm='V%d' % jj))
                    o += [I('v_permlane16_swap_b32 v%d, v%d' % (AV + 8 * jj + r, AV + 8 * jj + 4 + r)) for r in range(4)]
                o += [I('v_exp_f32 v%d, v%d' % (b + r, b + r)) for r in range(16)]
                o += [I('v_cvt_pk_bf16_f32 v%d, v%d, v%d' % (AP + p, b + 2 * p, b + 2 * p + 1)) for p in range(8)]
                for hf in range(2):
                    o.append(I('v_mfma_f32_32x32x16_bf16 %s, %s, %s, %s' % (vr(AO, 16), vr(AV + 8 * jj + 4 * hf), vr(AP + 4 * hf), '0' if (jp == 8 and hf == 0) else vr(AO, 16))))
                return o
            it += (stamp() if fast else []) + one_pass(qi, 'B', fast, procB)
            it.append(I('v_rcp_f32 v6, v%d' % (AO + 8)))
            for r in range(8): it.append(I('v_mul_f32 v%d, v%d, v6' % (AO + r, AO + r)))
            for p in range(4): it.append(I('v_cvt_pk_bf16_f32 v%d, v%d, v%d' % (8 + p, AO + 2 * p, AO + 2 * p + 1)))
            it += [I('s_lshl_b32 s36, s21, 6'), I('s_add_u32 s36, s36, s40'), I('s_lshl_b32 s36, s36, 10'), I('s_add_u32 s36, s36, %d' % (OF + qi * 32768))]
            it.append(VM('buffer_store_dwordx4 v[8:11], v14, s[16:19], s36 offen sc1', 'OST'))
        return it
    it += [I('s_cmp_ge_u32 s21, 4'), I('s_cbranch_scc1 K2_AFAST')]
    R.run(it)
    R2 = copy.deepcopy(R); R2.a = a
    R2.run(body(False) + [I('s_branch K2_AJOIN'), I('K2_AFAST:')])
    it = body(True) + [I('K2_AJOIN:')]
    it += stamp() + [W(vm='ALL')] + stamp()
    if K1M.FUSED[0]:
        it += [I('v_mov_b32 v5, %d' % FLAG), I('v_mov_b32 v6, 1'), I('s_mov_b64 exec, 1'), DS('ds_add_rtn_u32 v7, v5, v6 offset:8', 'CNT'), W(ds='ALL'), I('s_mov_b64 exec, -1'),
               I('v_readfirstlane_b32 s36, v7'), I('s_cmp_lg_u32 s36, 3'), I('s_cbranch_scc1 K2_NSIG'),
               I('v_mov_b32 v7, 2'), I('v_mov_b32 v8, s2'), I('s_mov_b64 exec, 1'), I('buffer_store_byte v7, v8, s[32:35], 0 offen sc1'), I('s_mov_b64 exec, -1'), I('K2_NSIG:'),
               I('s_cmp_lg_u32 s20, 4'), I('s_cbranch_scc1 K2_AFIN'),
               I('s_and_b32 s36, s21, 3'), I('s_lshr_b32 s37, s21, 4'), I('s_lshr_b32 s38, s21, 2'), I('s_and_b32 s38, s38, 3'), I('s_lshl_b32 s38, s38, 3'), I('s_lshl_b32 s38, 2, s38'),
               I('v_lshrrev_b32 v7, 4, v0'), I('v_cmp_eq_u32 vcc, s36, v7'), I('v_mov_b32 v8, s38'), I('v_cndmask_b32 v8, 0, v8, vcc'),
               I('v_and_b32 v7, 1, v0'), I('v_cmp_eq_u32 vcc, s37, v7'), I('v_cndmask_b32 v8, 0, v8, vcc'), I('v_lshlrev_b32 v9, 2, v0')] + lds_spin('K2_GATE', 12, 5, 7) + [
               I('K2_POLL:'), VM('buffer_load_dword v7, v9, s[32:35], 0 offen sc1', 'PL'), W(vm='ALL'), I('v_and_b32 v7, v7, v8'), I('v_cmp_eq_u32 vcc, v7, v8'),
               I('s_cmp_eq_u64 vcc, -1'), I('s_cbranch_scc1 K2_PDONE'), I('s_sleep 8'), I('s_branch K2_POLL'), I('K2_PDONE:'),
               DS('ds_write_b32 v5, v6', 'FW'), W(ds='ALL'), I('K2_AFIN:')]
    else:
        it += [I('s_lshl_b32 s37, s21, 7'), I('s_add_u32 s37, s37, %d' % FLG), I('s_lshl_b32 s36, s40, 2'), I('s_and_b32 s36, s36, 127'), I('v_mov_b32 v5, s36'), I('v_mov_b32 v6, 1'),
               I('s_mov_b64 exec, 1'), VM('buffer_store_dword v6, v5, s[16:19], s37 offen sc1', 'AT'), I('s_mov_b64 exec, -1'),
               I('s_cmp_lg_u32 s20, 4'), I('s_cbranch_scc1 K2_AFIN'),
               I('v_mov_b32 v8, %d' % FLAG)] + (lds_spin('K2_GATE', 12, 8, 9) if GATE >= 0 else []) + [I('v_and_b32 v5, 31, v0'), I('v_lshlrev_b32 v5, 2, v5'),
               I('K2_POLL:'), VM('buffer_load_dword v7, v5, s[16:19], s37 offen sc1', 'PL'), W(vm='ALL'), I('v_cmp_ne_u32 vcc, 0, v7'),
               I('s_cmp_eq_u64 vcc, -1'), I('s_cbranch_scc1 K2_PDONE'), I('s_sleep %d' % PSLEEP), I('s_branch K2_POLL'), I('K2_PDONE:'),
               I('v_mov_b32 v5, %d' % FLAG), DS('ds_write_b32 v5, v6', 'FW'), W(ds='ALL'), I('K2_AFIN:')]
    it += final_reduce('A')
    R.run(it)

def build_k2(a=None):
    if a is None: a = Asm()
    prologue(a)
    a('s_cmp_ge_u32 s20, 4\ns_cbranch_scc1 K2_ATT')
    gemm(a)
    a('K2_ATT:')
    attn(a)
    a('K2_END:\nK1_END:\ns_endpgm' if K1M.FUSED[0] else 'K2_END:\ns_endpgm')
    return a.finalize()

if __name__ == '__main__':
    print(len(build_k2().splitlines()))
```

```python
from asmlib import *
from sched import *
import os, struct, copy

QF, KF, VF, HF, OF, FLG = 0, 2 << 20, 4 << 20, 6 << 20, 14 << 20, 20 << 20
WS_RANGE = 32 << 20
STAMP = int(os.environ.get('STAMP', '0'))
EXP = os.environ.get('EXP', '')
NSPREAD = int(os.environ.get('NSPREAD', '20'))
STF = os.environ.get('STF', ' sc1')
FUSED = [False]
DBGT = int(os.environ.get('DBGT', '0'))
_st = [0]
def stamp():
    if not STAMP: return []
    k = _st[0]; _st[0] += 1
    return [I('s_memtime s[%d:%d]' % (64 + 2 * k, 65 + 2 * k))]
def stamp_out(base):
    if not STAMP: return []
    out = [I('s_waitcnt lgkmcnt(0)'), I('s_lshl_b32 s54, s2, 3'), I('s_add_u32 s54, s54, s20'), I('s_lshl_b32 s54, s54, 7'), I('s_add_u32 s54, s54, %d' % base), I('v_mov_b32 v1, 0')]
    for k in range(16):
        out += [I('v_mov_b32 v2, s%d' % (64 + 2 * k)), I('buffer_store_dword v2, v1, s[16:19], s54 offen offset:%d' % (4 * k))]
    return out

CSF, ST, XR0, P1G, P1U = 0, 5120, 6144, 71680, 108672
LDS_K1 = 145536
SLOT = 12288
XR, ACC, BR = 128, 48, 24
K0 = -2.0 * 0.7978845608028654 * 1.4426950408889634
K1C = K0 * 0.044715
def f2u(f): return struct.unpack('<I', struct.pack('<f', f))[0]
def vr(b, n=4): return 'v[%d:%d]' % (b, b + n - 1)
def acc(u): return vr(ACC + 16 * u, 16)
SEL1, RS, CSA1, CT1 = 96, 100, 104, 116
SQA, SQB = 15, 16
SQ4A = 16
SEL2, CSA2, CT2 = 40, 128, 136
MF, C0, C1, IRS2, RSTD, CF = 4, 15, 16, 17, 18, 8
def t_base(d): return (P1G + SLOT, P1G + 2 * SLOT, P1G, XR0)[d]
def x_base(d): return (P1U + SLOT, P1U + 2 * SLOT, P1U, XR0 + 8192)[d]

def prologue(a):
    a('''
s_cmp_ge_u32 s2, 256
s_cbranch_scc1 K1_END
s_load_dwordx2 s[4:5], s[0:1], 0
s_load_dwordx2 s[28:29], s[0:1], 8
s_load_dwordx4 s[32:35], s[0:1], 32
s_load_dwordx2 s[16:17], s[0:1], 72
s_load_dwordx2 s[96:97], s[0:1], 16
v_lshrrev_b32 v1, 6, v0
v_and_b32 v0, 63, v0
v_readfirstlane_b32 s20, v1
s_and_b32 s36, s2, 7
s_lshr_b32 s37, s2, 3
s_and_b32 s38, s36, 1
s_lshl_b32 s38, s38, 2
s_and_b32 s39, s37, 3
s_add_u32 s21, s38, s39
s_lshr_b32 s38, s36, 1
s_lshl_b32 s38, s38, 3
s_lshr_b32 s39, s37, 2
s_add_u32 s22, s38, s39
s_lshr_b32 s30, s22, 1
s_and_b32 s23, s22, 1
s_mul_i32 s31, s30, 112
s_mul_i32 s38, s23, 48
s_add_u32 s31, s31, s38
s_lshl_b32 s21, s21, 3
s_add_u32 s21, s21, s20
s_lshl_b32 s24, s21, 15
s_add_u32 s25, s24, 8192
s_add_u32 s26, s24, 16384
s_add_u32 s27, s24, 24576
s_lshl_b32 s47, s20, 13
s_add_u32 s47, s47, %d
''' % XR0)
    a('''
v_lshrrev_b32 v2, 3, v0
v_and_b32 v3, 7, v0
v_lshrrev_b32 v4, 4, v0
v_xor_b32 v3, v3, v4
v_lshlrev_b32 v3, 4, v3
v_lshl_add_u32 v2, v2, 10, v3
v_xor_b32 v3, 64, v2
v_and_b32 v4, 31, v0
v_lshrrev_b32 v5, 5, v0
v_lshrrev_b32 v6, 1, v4
v_and_b32 v6, 7, v6
v_xor_b32 v6, v6, v5
v_lshlrev_b32 v6, 4, v6
v_lshl_add_u32 v4, v4, 7, v6
v_add_u32 v4, s47, v4
v_xor_b32 v5, 32, v4
v_xor_b32 v6, 64, v4
v_xor_b32 v7, 0x60, v4
''')
    a('''
v_bfe_u32 v28, v0, 4, 1
v_lshrrev_b32 v29, 5, v0
v_lshlrev_b32 v29, 3, v29
v_bfe_u32 v30, v0, 2, 2
v_add_u32 v29, v29, v30
v_and_b32 v30, 3, v0
v_lshlrev_b32 v30, 3, v30
v_mul_u32_u24 v8, %d, v28
v_mul_u32_u24 v31, 96, v29
v_add3_u32 v8, v8, v31, v30
v_add_u32 v8, %d, v8
s_mul_i32 s36, s20, 1536
v_add_u32 v1, s36, v8
v_lshlrev_b32 v13, 6, v29
v_lshl_add_u32 v13, v28, 5, v13
v_add_u32 v13, v13, v30
v_lshlrev_b32 v22, 4, v0
''' % (P1U - P1G, P1G))
    for i in range(3):
        a('''
v_add_u32 v31, %d, v0
v_mul_u32_u24 v32, 43691, v31
v_lshrrev_b32 v32, 18, v32
v_mul_u32_u24 v33, 6, v32
v_sub_u32 v33, v31, v33
v_mul_u32_u24 v32, 3584, v32
v_lshl_add_u32 v%d, v33, 4, v32
''' % (64 * i, 9 + i))
    a('''
v_and_b32 v31, 15, v0
v_cmp_eq_u32 vcc, v31, v28
v_mov_b32 v96, 0x3f803f80
v_cndmask_b32 v96, 0, v96, vcc
v_mov_b32 v97, v96
v_mov_b32 v98, v96
v_mov_b32 v99, v96
v_mov_b32 v15, 0
v_mov_b32 v16, 0
s_waitcnt lgkmcnt(0)
s_mov_b32 s6, 0x200000
s_mov_b32 s7, 0x20000
s_mov_b32 s18, %d
s_mov_b32 s19, 0x20000
s_cmp_lt_u32 s20, 4
s_cselect_b32 s8, s32, s34
s_cselect_b32 s9, s33, s35
s_mov_b32 s10, 1835008
s_mov_b32 s11, 0x20000
s_mov_b32 s41, %d
s_cselect_b32 s41, s41, %d
s_and_b32 s36, s20, 3
s_mul_i32 s40, s36, 114688
s_lshl_b32 s37, s31, 1
s_add_u32 s40, s40, s37
s_mul_i32 s37, s36, 3072
s_add_u32 s41, s41, s37
''' % (WS_RANGE, P1G, P1U))

def prologue2(a):
    a('''
s_mov_b32 s15, 0x20000
s_cmp_ge_u32 s20, 4
s_cselect_b32 s46, 1, 0
s_cmp_lt_u32 s20, 4
s_cbranch_scc1 K1_P2_QKV
s_cmp_eq_u32 s23, 0
s_cbranch_scc1 K1_P2_QKV
s_cmp_lt_u32 s20, 6
s_cselect_b32 s12, s32, s34
s_cselect_b32 s13, s33, s35
s_cselect_b32 s37, 0, 4224
s_mov_b32 s14, 1835008
v_lshrrev_b32 v31, 1, v0
v_mul_u32_u24 v31, 3584, v31
v_and_b32 v12, 1, v0
v_lshl_add_u32 v12, v12, 4, v31
s_and_b32 s36, s20, 1
s_mul_i32 s42, s36, 229376
s_mul_i32 s38, s30, 224
s_add_u32 s42, s42, s38
s_add_u32 s42, s42, 192
s_mov_b32 s43, 458752
s_mov_b32 s44, 114688
s_lshl_b32 s36, s36, 11
s_add_u32 s45, s37, s36
s_branch K1_P2_DONE
K1_P2_QKV:
s_mov_b32 s12, s28
s_mov_b32 s13, s29
s_mov_b32 s14, 1572864
v_lshrrev_b32 v31, 2, v0
v_mul_u32_u24 v31, 3072, v31
v_and_b32 v12, 3, v0
v_lshl_add_u32 v12, v12, 4, v31
s_and_b32 s36, s20, 3
s_mul_i32 s42, s36, 98304
s_lshl_b32 s37, s22, 6
s_lshl_b32 s38, s30, 6
s_add_u32 s38, s38, 2048
s_lshl_b32 s45, s36, 11
s_cmp_lt_u32 s20, 4
s_cselect_b32 s37, s37, s38
s_add_u32 s42, s42, s37
s_mov_b32 s43, 393216
s_mov_b32 s44, 49152
K1_P2_DONE:
s_cmp_eq_u32 s23, 0
s_cbranch_scc1 K1_XA
v_mul_u32_u24 v14, 4224, v28
v_lshl_add_u32 v14, v29, 5, v14
v_add_u32 v14, v14, v30
s_branch K1_XB
K1_XA:
v_mov_b32 v14, v13
K1_XB:
v_add_u32 v23, %d, v14
v_add_u32 v14, %d, v14
v_add_u32 v21, %d, v13
v_add_u32 v13, %d, v13
''' % (XR0 + 8192, P1U, XR0, P1G))
    a('''
s_mul_i32 s48, s21, 112
s_lshr_b32 s36, s31, 4
s_add_u32 s48, s48, s36
s_lshl_b32 s48, s48, 10
s_add_u32 s48, s48, %d
s_and_b32 s36, s22, 15
s_lshl_b32 s36, s36, 7
s_add_u32 s36, s36, s21
s_lshl_b32 s36, s36, 10
s_cmp_lt_u32 s22, 16
s_cselect_b32 s37, %d, %d
s_cselect_b32 s51, 0x%08x, 0x3f800000
s_add_u32 s49, s36, s37
s_lshl_b32 s36, s30, 7
s_add_u32 s36, s36, s21
s_lshl_b32 s36, s36, 10
s_add_u32 s36, s36, %d
s_add_u32 s37, s48, 3072
s_cmp_eq_u32 s23, 0
s_cselect_b32 s50, s36, s37
''' % (HF, QF, KF, f2u(0.25 * 1.4426950408889634), VF))

def w1_dma(d):
    out = [I('s_add_u32 s55, s40, %d' % (d * 128 * 3584))]
    for i in range(3):
        out.append(I('s_add_u32 m0, s41, %d' % ((d % 3) * SLOT + i * 1024)))
        out.append(VM('buffer_load_dwordx4 v%d, s[8:11], s55 offen lds' % (9 + i), 'W1_%d' % d))
    return out

def p2_dma(d):
    out = [I('s_mul_i32 s52, s43, %d' % d), I('s_add_u32 s52, s52, s42'), I('s_add_u32 s53, s52, s44'),
           I('s_cmp_eq_u32 s46, 0'), I('s_mov_b32 s56, %d' % t_base(d)), I('s_cselect_b32 s56, s56, %d' % x_base(d)), I('s_add_u32 s56, s56, s45')]
    for i in range(2):
        out.append(I('s_add_u32 m0, s56, %d' % (i * 1024)))
        out.append(VM('buffer_load_dwordx4 v12, s[12:15], s%d offen lds' % (52 + i), 'P2_%d' % d))
    return out

def x_dma(c):
    out = []
    for j in range(4):
        out.append(I('s_add_u32 m0, s47, %d' % ((c & 1) * 4096 + j * 1024 - c * 128)))
        out.append(VM('buffer_load_dwordx4 v%d, s[4:7], s%d offen offset:%d lds' % (2 + (j & 1), 24 + j, c * 128), 'X%d' % c))
    return out

def stage(c):
    out = [W(vm='X%d' % c)]
    for s in range(4):
        out.append(DS('ds_read_b128 %s, v%d offset:%d' % (vr(XR + 16 * c + 4 * s), 4 + s, (c & 1) * 4096), 'XF%d' % c))
    return out

B1 = (24, 36)
def tr1(ks, units=(0, 1, 2)):
    out = []
    d, k = ks >> 3, ks & 7
    for u in units:
        b = B1[ks & 1] + 4 * u
        for sec in range(2):
            out.append(DS('ds_read_b64_tr_b16 %s, v8 offset:%d' % (vr(b + 2 * sec, 2), (d % 3) * SLOT + k * 1536 + u * 32 + sec * 384), 'T1_%d_%d' % (ks, u)))
    return out

def cs1_read(d):
    return [DS('ds_read_b64_tr_b16 %s, v1 offset:%d' % (vr(CT1 + 4 * u + 2 * sec, 2), (d % 3) * SLOT + u * 32 + sec * 384), 'C1_%d' % d) for u in range(3) for sec in range(2)]
def cs1_mma(d):
    return [W(ds='C1_%d' % d)] + [I('v_mfma_f32_16x16x32_bf16 %s, %s, %s, %s' % (vr(CSA1 + 4 * u), vr(SEL1), vr(CT1 + 4 * u), '0' if d == 0 else vr(CSA1 + 4 * u))) for u in range(3)]

def tr2_addr(d, k, var, unit, sec):
    if unit == 0:
        reg, base = (13, t_base(d) - P1G) if d < 3 else (21, 0)
        return reg, base + k * 1024 + sec * 256
    reg, base = (14, x_base(d) - P1U) if d < 3 else (23, 0)
    return reg, base + (k * 1024 + sec * 256 if var == 0 else k * 512 + sec * 128)
def tr2(ks, var, unit):
    d, k = ks >> 3, ks & 7
    b = BR + 8 * (ks & 1) + 4 * unit
    out = []
    for sec in range(2):
        reg, off = tr2_addr(d, k, var, unit, sec)
        out.append(DS('ds_read_b64_tr_b16 %s, v%d offset:%d' % (vr(b + 2 * sec, 2), reg, off), 'T2_%d_%d' % (ks, unit)))
    return out
def cs2(d, var):
    out = []
    for unit in range(2):
        for sec in range(2):
            reg, off = tr2_addr(d, 0, var, unit, sec)
            if sec == 0: out.append(I('v_add_u32 v%d, s%d, v%d' % (19 + unit, 57 + (unit if var else 0), reg)))
            out.append(DS('ds_read_b64_tr_b16 %s, v%d offset:%d' % (vr(CT2 + 4 * unit + 2 * sec, 2), 19 + unit, off), 'C2_%d' % d))
    mm = [W(ds='C2_%d' % d)] + [I('v_mfma_f32_16x16x32_bf16 %s, %s, %s, %s' % (vr(CSA2 + 4 * u), vr(SEL2), vr(CT2 + 4 * u), '0' if d == 0 else vr(CSA2 + 4 * u))) for u in range(2)]
    return out, mm

def cs_publish(units, csa, tmp=(1, 2, 3)):
    ta, t2, t3 = tmp
    out = [I('s_lshr_b32 s59, s20, 2'), I('s_lshl_b32 s59, s59, 9'), I('s_and_b32 s56, s20, 3'), I('s_lshl_b32 s56, s56, 2'), I('s_add_u32 s59, s59, s56'),
           I('v_add_u32 v%d, s59, v22' % ta), I('s_mov_b64 exec, 0xffff')]
    for n, u in enumerate(units):
        for k in range(2):
            c = csa + 4 * n + k
            out += [I('v_cvt_pk_bf16_f32 v%d, v%d, v%d' % (t2, c, c)), I('v_lshlrev_b32 v%d, 16, v%d' % (t2, t2)), I('v_sub_f32 v%d, v%d, v%d' % (t3, c, t2)),
                    I('v_cvt_pk_bf16_f32 v%d, v%d, v%d' % (c, c, t3)),
                    DS('ds_write_b32 v%d, v%d offset:%d' % (ta, c, CSF + u * 1024 + 256 * k), 'CSA')]
    out += [I('s_mov_b64 exec, -1')]
    return out

def mean_fix(u, tag, swap=False):
    A = [DS('ds_read_b128 %s, v22 offset:%d' % (vr(CF), CSF + u * 1024), tag), W(ds=tag)]
    if swap: A.append(I('v_mfma_f32_32x32x16_bf16 %s, %s, %s, %s' % (acc(u), vr(MF), vr(CF), acc(u))))
    else: A.append(I('v_mfma_f32_32x32x16_bf16 %s, %s, %s, %s' % (acc(u), vr(CF), vr(MF), acc(u))))
    return A

def g_epilogue(u, soff_expr, tmp=(1, 2, 3, 12)):
    A = ACC + 16 * u
    out = []
    if 'pk' in EXP:
        for q in range(2):
            g = A + 4 * q; uu = A + 8 + 4 * q; t = 8
            p2 = lambda r: 'v[%d:%d]' % (r, r + 1)
            for i in (0, 2): out.append(I('v_pk_mul_f32 %s, %s, %s' % (p2(t + i), p2(g + i), p2(g + i))))
            for i in (0, 2): out.append(I('v_pk_fma_f32 %s, %s, v[46:47], v[44:45]' % (p2(t + i), p2(t + i))))
            for i in (0, 2): out.append(I('v_pk_mul_f32 %s, %s, %s' % (p2(t + i), p2(t + i), p2(g + i))))
            for i in range(4): out.append(I('v_exp_f32 v%d, v%d' % (t + i, t + i)))
            for i in (0, 2): out.append(I('v_pk_mul_f32 %s, %s, %s' % (p2(g + i), p2(g + i), p2(uu + i))))
            for i in (0, 2): out.append(I('v_pk_fma_f32 %s, %s, v[2:3], v[2:3]' % (p2(t + i), p2(t + i))))
            for i in range(4): out.append(I('v_rcp_f32 v%d, v%d' % (t + i, t + i)))
            for i in (0, 2): out.append(I('v_pk_mul_f32 %s, %s, %s' % (p2(g + i), p2(g + i), p2(t + i))))
            out.append(I('v_cvt_pk_bf16_f32 v%d, v%d, v%d' % (A + 8 + 2 * q, g, g + 1)))
            out.append(I('v_cvt_pk_bf16_f32 v%d, v%d, v%d' % (A + 8 + 2 * q + 1, g + 2, g + 3)))
    for q in range(2):
        if 'pk' in EXP: break
        g = [A + 4 * q + i for i in range(4)]
        uu = [A + 8 + 4 * q + i for i in range(4)]
        for i in range(4): out.append(I('v_mul_f32 v%d, v%d, v%d' % (tmp[i], g[i], g[i])))
        for i in range(4): out.append(I('v_fma_f32 v%d, v%d, v%d, v%d' % (tmp[i], tmp[i], C1, C0)))
        for i in range(4): out.append(I('v_mul_f32 v%d, v%d, v%d' % (tmp[i], tmp[i], g[i])))
        for i in range(4): out.append(I('v_exp_f32 v%d, v%d' % (tmp[i], tmp[i])))
        for i in range(4): out.append(I('v_mul_f32 v%d, v%d, v%d' % (g[i], g[i], uu[i])))
        for i in range(4): out.append(I('v_fma_f32 v%d, v%d, v%d, v%d' % (tmp[i], tmp[i], IRS2, IRS2)))
        for i in range(4): out.append(I('v_rcp_f32 v%d, v%d' % (tmp[i], tmp[i])))
        for i in range(4): out.append(I('v_mul_f32 v%d, v%d, v%d' % (g[i], g[i], tmp[i])))
        out.append(I('v_cvt_pk_bf16_f32 v%d, v%d, v%d' % (A + 8 + 2 * q, g[0], g[1])))
        out.append(I('v_cvt_pk_bf16_f32 v%d, v%d, v%d' % (A + 8 + 2 * q + 1, g[2], g[3])))
    sreg, add = soff_expr
    out.append(I('s_add_u32 s54, s%d, %d' % (sreg, add)))
    out.append(VM('buffer_store_dwordx4 %s, v22, s[16:19], s54 offen%s' % (vr(A + 8), STF), 'ST'))
    return out

def t_epilogue():
    A = ACC + 48
    o = XR + 32
    out = [I('v_mul_f32 v1, s51, v%d' % RSTD)]
    for r in range(16): out.append(I('v_mul_f32 v%d, v%d, v1' % (A + r, A + r)))
    for p in range(8): out.append(I('v_cvt_pk_bf16_f32 v%d, v%d, v%d' % (o + p, A + 2 * p, A + 2 * p + 1)))
    out.append(I('s_add_u32 s54, s49, 65536'))
    out.append(VM('buffer_store_dwordx4 %s, v22, s[16:19], s49 offen%s' % (vr(o), STF), 'ST'))
    out.append(VM('buffer_store_dwordx4 %s, v22, s[16:19], s54 offen%s' % (vr(o + 4), STF), 'ST'))
    return out

def v_pre():
    rs = XR + 48
    out = [I('v_lshrrev_b32 v19, 5, v0'), I('v_lshlrev_b32 v20, 4, v19'), I('s_lshl_b32 s59, s20, 7'), I('v_add_u32 v20, s59, v20')]
    for q in range(4):
        out.append(DS('ds_read_b128 %s, v20 offset:%d' % (vr(rs + 4 * q), ST + q * 32), 'VE'))
    out += [I('v_bfe_u32 v152, v0, 4, 1'), I('v_lshlrev_b32 v152, 16, v152'), I('v_lshl_add_u32 v152, v19, 8, v152'), I('v_and_b32 v19, 15, v0'), I('v_lshl_add_u32 v152, v19, 4, v152')]
    return out
def v_epilogue():
    A = ACC + 64
    rs, o = XR + 48, XR + 64
    out = [W(ds='VE')]
    for r in range(16): out.append(I('v_mul_f32 v%d, v%d, v%d' % (A + r, A + r, rs + r)))
    for p in range(8): out.append(I('v_cvt_pk_bf16_f32 v%d, v%d, v%d' % (o + p, A + 2 * p, A + 2 * p + 1)))
    out.append(VM('buffer_store_dwordx4 %s, v152, s[16:19], s50 offen%s' % (vr(o), STF), 'ST'))
    out.append(VM('buffer_store_dwordx4 %s, v152, s[16:19], s50 offen offset:512%s' % (vr(o + 4), STF), 'ST'))
    return out

def rne_bf16(dst, src):
    return [I('v_cvt_pk_bf16_f32 v%d, v%d, v%d' % (dst, src, src)), I('v_lshlrev_b32 v%d, 16, v%d' % (dst, dst))]

def stats_final():
    out = ([I('v_mov_b32 v20, v19')] if 'sq4' in EXP else []) + [I('v_and_b32 v19, 15, v0'), I('v_lshlrev_b32 v19, 2, v19'),
           DS('ds_bpermute_b32 v2, v19, v%d' % RS, 'BP'), DS('ds_bpermute_b32 v3, v19, v%d' % (RS + 1), 'BP'),
           ] + ([I('v_and_b32 v15, 3, v0'), I('v_cmp_eq_u32 vcc, 1, v15'), I('v_cndmask_b32 v16, v16, v17, vcc'), I('v_cmp_eq_u32 vcc, 2, v15'), I('v_cndmask_b32 v16, v16, v18, vcc'),
           I('v_cmp_eq_u32 vcc, 3, v15'), I('v_cndmask_b32 v16, v16, v20, vcc')] if 'sq4' in EXP else [I('v_add_f32 v16, v15, v16')]) + [I('v_mov_b32 v17, v16'), I('v_permlane32_swap_b32 v16, v17'), I('v_add_f32 v16, v16, v17'),
           I('v_and_b32 v19, 16, v0'), I('v_cmp_ne_u32 vcc, 0, v19'), W(ds='BP'), I('v_cndmask_b32 v15, v2, v3, vcc'),
           I('v_mul_f32 v15, 0x3b000000, v15'), I('v_mul_f32 v16, 0x3b000000, v16'),
           I('v_fma_f32 v16, -v15, v15, v16'), I('v_max_f32 v16, 0, v16')]
    out += rne_bf16(16, 16)
    out += [I('v_add_f32 v16, 0x%08x, v16' % f2u(1e-5))]
    out += rne_bf16(16, 16)
    out += [I('v_sqrt_f32 v16, v16')]
    out += rne_bf16(16, 16)
    out += [I('v_sub_f32 v15, 0, v15'), I('v_cvt_pk_bf16_f32 v%d, v15, v15' % MF),
            I('v_mov_b32 v%d, v%d' % (MF + 1, MF)), I('v_mov_b32 v%d, v%d' % (MF + 2, MF)), I('v_mov_b32 v%d, v%d' % (MF + 3, MF)),
            I('v_rcp_f32 v%d, v16' % RSTD), I('v_mul_f32 v%d, v16, v16' % IRS2),
            I('v_mul_f32 v%d, 0x%08x, v%d' % (C0, f2u(K0), RSTD)), I('v_mul_f32 v19, v%d, v%d' % (RSTD, RSTD)),
            I('v_mul_f32 v19, v19, v%d' % RSTD), I('v_mul_f32 v%d, 0x%08x, v19' % (C1, f2u(K1C)))]
    out += [I('v_and_b32 v19, 31, v0'), I('v_lshlrev_b32 v19, 2, v19'), I('s_lshl_b32 s54, s20, 7'), I('v_add_u32 v19, s54, v19'),
            DS('ds_write_b32 v19, v%d offset:%d' % (RSTD, ST), 'STW')]
    return out

def groups(items):
    g, cur = [], []
    for x in items:
        cur.append(x)
        if x.q == 'vm': g.append(cur); cur = []
    assert not cur
    return g

def touch():
    if 'xpf' not in EXP: return []
    out = [I('s_lshr_b32 s60, s2, 5'), I('s_lshl_b32 s60, s60, 3'), I('s_add_u32 s60, s60, s20'), I('s_lshl_b32 s60, s60, 12'),
           I('s_lshr_b32 s61, s21, 3'), I('s_lshl_b32 s61, s61, 18'), I('s_add_u32 s60, s60, s61')]
    for i in range(4):
        out.append(VM('buffer_load_dwordx4 v[252:255], v22, s[4:7], s60 offen offset:%d' % (1024 * i), 'PF'))
    return out
def touch_code(tag, first_kb, nwaves):
    if 'notouch' in EXP or 'nocode' in EXP: return []
    L = 'K1_TC%s' % tag
    return [I('s_cmp_ge_u32 s20, %d' % nwaves), I('s_cbranch_scc1 %s' % L),
            I('s_getpc_b64 s[52:53]'), I(L + 'P:'), I('s_sub_u32 s52, s52, %sP-k1_kernel' % L), I('s_subb_u32 s53, s53, 0'),
            I('s_lshl_b32 s56, s20, 13'), I('s_add_u32 s56, s56, %d' % (first_kb * 1024)), I('v_lshl_add_u32 v31, v0, 7, s56'),
            I('v_min_u32 v31, CODE_END-k1_kernel-4, v31'), I('global_load_dword v%d, v31, s[52:53]' % (255 if tag == 'A' else 47)), I(L + ':')]

def touch_tlb():
    if 'tlb' not in EXP: return []
    return [I('s_cmp_lg_u32 s20, 5'), I('s_cbranch_scc1 K1_TLB1'),
            I('v_lshlrev_b32 v31, 19, v0'), I('buffer_load_dword v254, v31, s[16:19], 0 offen'), I('K1_TLB1:'),
            I('s_cmp_lg_u32 s20, 6'), I('s_cbranch_scc1 K1_TLB2'),
            I('s_load_dwordx2 s[60:61], s[0:1], 56'), I('s_mov_b32 s62, 0x200000'), I('s_mov_b32 s63, 0x20000'), I('v_lshlrev_b32 v31, 15, v0'), I('s_waitcnt lgkmcnt(0)'),
            I('buffer_load_dword v254, v31, s[60:63], 0 offen'), I('K1_TLB2:')]

def build_k1():
    a = Asm()
    prologue(a)
    R = Resolver(a)
    pre = ([I('s_memrealtime s[92:93]')] if (STAMP or DBGT) else []) + stamp() + w1_dma(0) + x_dma(0) + x_dma(1)
    R.run(pre)
    prologue2(a)
    R.run(touch_code('A', 0, 3) + touch_tlb())
    tch = groups(touch())
    pre = [] if FUSED[0] else [I('s_or_b32 s52, s2, s20'), I('s_cmp_lg_u32 s52, 0'), I('s_cbranch_scc1 K1_NOZ'),
           I('v_mov_b32 v32, 0'), I('v_mov_b32 v33, 0'), I('v_mov_b32 v34, 0'), I('v_mov_b32 v35, 0'), I('s_mov_b32 s52, %d' % FLG)]
    if not FUSED[0]:
        pre += [I('buffer_store_dwordx4 v[32:35], v22, s[16:19], s52 offen offset:%d' % (1024 * i)) for i in range(4)]
        pre += [I('s_waitcnt vmcnt(0)'), I('K1_NOZ:')]
    if 'prio' in EXP: pre += [I('s_cmp_lt_u32 s20, 4'), I('s_cbranch_scc1 K1_NP'), I('s_setprio 1'), I('K1_NP:')]
    pre += stamp() + [W(vm='W1_0'), I('s_barrier')] + stamp()
    pre += stage(0) + tr1(0)
    R.run(pre)
    stats_final_items = stats_final()
    for ks in range(32):
        c, d = ks >> 2, ks >> 3
        it = []
        b = B1[ks & 1]; x = XR + 4 * ks
        vmg = []
        if (ks & 7) == 7 and ks < 31:
            it += cs1_mma(d)
            it += stamp() + [W(vm='W1_%d' % (d + 1), ds=['T1_%d_%d' % (ks, u) for u in range(3)]), I('s_barrier')]
            vmg += groups(w1_dma(3)) if d == 0 else groups(p2_dma(d - 1))
        if (ks & 3) == 3 and c + 3 <= 7:
            g = groups(x_dma(c + 3)); g[0] = [W(ds='XF%d' % (c + 1))] + g[0]; vmg += g
        if ks == 0: vmg += groups(w1_dma(1))
        if tch and ks < 4: vmg.append(tch[ks])
        if ks == 1: vmg += groups(x_dma(2))
        if ks == 2: vmg += groups(w1_dma(2))
        def stat(k2):
            x2 = XR + 4 * k2
            sq = []
            for j in range(4):
                t = 17 + 2 * (j & 1)
                sq.append([I('v_lshlrev_b32 v%d, 16, v%d' % (t, x2 + j)), I('v_and_b32 v%d, 0xffff0000, v%d' % (t + 1, x2 + j)),
                           I('v_fmac_f32 v%d, v%d, v%d' % (SQA, t, t)), I('v_fmac_f32 v%d, v%d, v%d' % (SQB, t + 1, t + 1))])
            rs = I('v_mfma_f32_16x16x32_bf16 %s, %s, %s, %s' % (vr(RS), vr(SEL1), vr(x2), '0' if k2 == 0 else vr(RS)))
            if 'sq4' in EXP:
                return [[W(ds='XF%d' % (k2 >> 2)), I('v_mfma_f32_4x4x4_16b_bf16 %s, %s, %s, %s' % (vr(SQ4A), vr(x2, 2), vr(x2, 2), '0' if k2 == 0 else vr(SQ4A)))], [rs],
                        [I('v_mfma_f32_4x4x4_16b_bf16 %s, %s, %s, %s' % (vr(SQ4A), vr(x2 + 2, 2), vr(x2 + 2, 2), vr(SQ4A)))]]
            return [[W(ds='XF%d' % (k2 >> 2))] + sq[0] + [rs], sq[1] + sq[2], sq[3]]
        if ks < 26: side = stat(ks)
        elif ks < 29:
            a1, a2 = stat(26 + 2 * (ks - 26)), stat(27 + 2 * (ks - 26))
            side = [a1[0] + a1[1], a1[2] + a2[0], a2[1] + a2[2]]
        else:
            sf = stats_final_items
            n = len(sf); k3 = ks - 29
            part = sf[n * k3 // 3: n * (k3 + 1) // 3]
            side = [part[:len(part) // 3], part[len(part) // 3: 2 * len(part) // 3], part[2 * len(part) // 3:]]
        for u in range(3):
            if 'mw' in EXP: it += [W(ds=['T1_%d_%d' % (ks, uu) for uu in range(3)] + ['XF%d' % c])]
            else: it += [W(ds=('T1_%d_%d' % (ks, u), 'XF%d' % c))]
            it.append(I('v_mfma_f32_32x32x16_bf16 %s, %s, %s, %s' % (acc(u), vr(b + 4 * u), vr(x), '0' if ks == 0 else acc(u))))
            if ks < 31: it += tr1(ks + 1, (u,))
            it += side[u]
            if u < len(vmg): it += vmg[u]
        for g in vmg[3:]: it += g
        if (ks & 7) == 5: it += cs1_read(d)
        if (ks & 3) == 1 and c < 6: it += stage(c + 1)
        if ks == 24: it += stage(7)
        R.run(it)
    mid = stamp() + cs1_mma(3) + cs_publish((0, 1, 2), CSA1) + [I('v_mov_b32 v%d, v%d' % (SEL2 + r, SEL1)) for r in range(4)]
    mid += [I('s_lshl_b32 s57, s20, 10'), I('s_lshl_b32 s58, s20, 9')]
    mid += [W(vm=('P2_0', 'P2_1'), ds='ALL'), I('s_barrier')] + stamp() + p2_dma(2) + p2_dma(3)
    mid += touch_code('B', 16, 4)
    if 'nopf' not in EXP:
        mid += [I('s_load_dwordx2 s[60:61], s[0:1], 48'), I('s_waitcnt lgkmcnt(0)'), I('s_mov_b32 s62, 1835008'), I('s_mov_b32 s63, 0x20000'), I('s_mov_b32 s98, 0x80000'), I('s_mov_b32 s99, 0x20000'),
                I('s_lshl_b32 s54, s2, 3'), I('s_add_u32 s54, s54, s20'), I('s_lshl_b32 s54, s54, 10'),
                VM('buffer_load_dwordx4 v[44:47], v22, s[60:63], s54 offen', 'PF'), VM('buffer_load_dwordx4 v[44:47], v22, s[96:99], s54 offen', 'PF')]
    R.run(mid)
    st_save = _st[0]
    a('s_cmp_eq_u32 s23, 0\ns_cbranch_scc0 K1_VARB')
    for var in range(2):
        if var == 1: a('K1_VARB:')
        RR = copy.deepcopy(R); RR.a = a; _st[0] = st_save
        main = tr2(0, var, 0) + tr2(0, var, 1)
        body = []
        for ks in range(32):
            b = BR + 8 * (ks & 1); x = XR + 4 * ks
            if ks == 15: body.append([W(vm=('P2_2', 'P2_3')), I('s_barrier')])
            body.append([W(ds=('T2_%d_0' % ks, 'T2_%d_1' % ks) if 'mw' in EXP else 'T2_%d_0' % ks), I('v_mfma_f32_32x32x16_bf16 %s, %s, %s, %s' % (acc(3), vr(b), vr(x), '0' if ks == 0 else acc(3)))])
            if ks < 31: body.append(tr2(ks + 1, var, 0))
            if var == 0: mf = I('v_mfma_f32_32x32x16_bf16 %s, %s, %s, %s' % (acc(4), vr(x), vr(b + 4), '0' if ks == 0 else acc(4)))
            else: mf = I('v_mfma_f32_32x32x16_bf16 %s, %s, %s, %s' % (acc(4), vr(b + 4), vr(x), '0' if ks == 0 else acc(4)))
            body.append([W(ds='T2_%d_1' % ks), mf])
            if ks < 31: body.append(tr2(ks + 1, var, 1))
            for dd, kk in enumerate((5, 8, 16, 18)):
                if ks == kk: body.append(cs2(dd, var)[0])
                if ks == kk + 1: body.append(cs2(dd, var)[1])
            if ks == 20: body.append(cs_publish((3, 4), CSA2, tmp=(19, 20, 144)))
            if ks == 23: body.append([W(ds='CSA'), I('s_barrier')])
            if ks == 25: body.append([DS('ds_read_b128 %s, v22 offset:%d' % (vr(144 + 4 * n), CSF + (3 + n) * 1024), 'CFF') for n in range(2)] + (v_pre() if var == 0 else []))
        side = []
        for u in range(3): side += mean_fix(u, 'MF%d' % u)
        if 'pk' in EXP: side += [W(vm='PF'), I('v_mov_b32 v44, v%d' % C0), I('v_mov_b32 v45, v%d' % C0), I('v_mov_b32 v46, v%d' % C1), I('v_mov_b32 v47, v%d' % C1), I('v_mov_b32 v2, v%d' % IRS2), I('v_mov_b32 v3, v%d' % IRS2)]
        for u in range(3): side += g_epilogue(u, (48, u * 1024))
        merged = merge(body, side)
        flat = []
        for x in merged:
            if isinstance(x, list): flat += x
            else: flat.append(x)
        RR.run(main + flat)
        fin = stamp() + stamp() + [W(ds='CFF'), I('v_mfma_f32_32x32x16_bf16 %s, %s, %s, %s' % (acc(3), vr(144), vr(MF), acc(3)))]
        if var == 0: fin.append(I('v_mfma_f32_32x32x16_bf16 %s, %s, %s, %s' % (acc(4), vr(MF), vr(148), acc(4))))
        else: fin.append(I('v_mfma_f32_32x32x16_bf16 %s, %s, %s, %s' % (acc(4), vr(148), vr(MF), acc(4))))
        fin += t_epilogue()
        if var == 0: fin += v_epilogue()
        else: fin += g_epilogue(4, (50, 0))
        fin += stamp() + ([I('s_waitcnt vmcnt(0)')] if STAMP else []) + stamp() + ([I('s_memrealtime s[94:95]')] if STAMP else []) + stamp_out(16 << 20)
        if DBGT:
            fin += [I('s_waitcnt vmcnt(0)'), I('s_memrealtime s[94:95]'), I('s_waitcnt lgkmcnt(0)'), I('s_lshl_b32 s54, s2, 3'), I('s_add_u32 s54, s54, s20'), I('s_lshl_b32 s54, s54, 3'), I('s_add_u32 s54, s54, %d' % (24 << 20)),
                    I('v_mov_b32 v1, 0'), I('v_mov_b32 v2, s92'), I('v_mov_b32 v3, s94'), I('buffer_store_dwordx2 v[2:3], v1, s[16:19], s54 offen')]
        RR.run(fin)
        if FUSED[0]: a('s_branch PHASE2' if var == 0 else 's_nop 0')
        else: a('s_endpgm' if var == 0 else 'K1_END:\ns_endpgm')
    if FUSED[0]: return a
    return a.finalize()

if __name__ == '__main__':
    print(len(build_k1().splitlines()))
```

```python
from asmlib import *
from sched import *
import os, struct, copy

QF, KF, VF, HF, OF, FLG = 0, 2 << 20, 4 << 20, 6 << 20, 14 << 20, 20 << 20
WS_RANGE = 32 << 20
STAMP = int(os.environ.get('STAMP', '0'))
EXP = os.environ.get('EXP', '')
NSPREAD = int(os.environ.get('NSPREAD', '20'))
STF = os.environ.get('STF', ' sc1')
FUSED = [False]
DBGT = int(os.environ.get('DBGT', '0'))
_st = [0]
def stamp():
    if not STAMP: return []
    k = _st[0]; _st[0] += 1
    return [I('s_memtime s[%d:%d]' % (64 + 2 * k, 65 + 2 * k))]
def stamp_out(base):
    if not STAMP: return []
    out = [I('s_waitcnt lgkmcnt(0)'), I('s_lshl_b32 s54, s2, 3'), I('s_add_u32 s54, s54, s20'), I('s_lshl_b32 s54, s54, 7'), I('s_add_u32 s54, s54, %d' % base), I('v_mov_b32 v1, 0')]
    for k in range(16):
        out += [I('v_mov_b32 v2, s%d' % (64 + 2 * k)), I('buffer_store_dword v2, v1, s[16:19], s54 offen offset:%d' % (4 * k))]
    return out

CSF, ST, XR0, P1G, P1U = 0, 5120, 6144, 71680, 108672
LDS_K1 = 145536
SLOT = 12288
XR, ACC, BR = 128, 48, 24
K0 = -2.0 * 0.7978845608028654 * 1.4426950408889634
K1C = K0 * 0.044715
def f2u(f): return struct.unpack('<I', struct.pack('<f', f))[0]
def vr(b, n=4): return 'v[%d:%d]' % (b, b + n - 1)
def acc(u): return vr(ACC + 16 * u, 16)
SEL1, RS, CSA1, CT1 = 96, 100, 104, 116
SQA, SQB = 15, 16
SQ4A = 16
SEL2, CSA2, CT2 = 40, 128, 136
MF, C0, C1, IRS2, RSTD, CF = 4, 15, 16, 17, 18, 8
def t_base(d): return (P1G + SLOT, P1G + 2 * SLOT, P1G, XR0)[d]
def x_base(d): return (P1U + SLOT, P1U + 2 * SLOT, P1U, XR0 + 8192)[d]

def prologue(a):
    a('''
s_cmp_ge_u32 s2, 256
s_cbranch_scc1 K1_END
s_load_dwordx2 s[4:5], s[0:1], 0
s_load_dwordx2 s[28:29], s[0:1], 8
s_load_dwordx4 s[32:35], s[0:1], 32
s_load_dwordx2 s[16:17], s[0:1], 72
s_load_dwordx2 s[96:97], s[0:1], 16
s_load_dwordx2 s[60:61], s[0:1], 48
v_lshrrev_b32 v1, 6, v0
v_and_b32 v0, 63, v0
v_readfirstlane_b32 s20, v1
s_and_b32 s36, s2, 7
s_lshr_b32 s37, s2, 3
s_and_b32 s38, s36, 1
s_lshl_b32 s38, s38, 2
s_and_b32 s39, s37, 3
s_add_u32 s21, s38, s39
s_lshr_b32 s38, s36, 1
s_lshl_b32 s38, s38, 3
s_lshr_b32 s39, s37, 2
s_add_u32 s22, s38, s39
s_lshr_b32 s30, s22, 1
s_and_b32 s23, s22, 1
s_mul_i32 s31, s30, 112
s_mul_i32 s38, s23, 48
s_add_u32 s31, s31, s38
s_lshl_b32 s21, s21, 3
s_add_u32 s21, s21, s20
s_lshl_b32 s24, s21, 15
s_add_u32 s25, s24, 8192
s_add_u32 s26, s24, 16384
s_add_u32 s27, s24, 24576
s_lshl_b32 s47, s20, 13
s_add_u32 s47, s47, %d
''' % XR0)
    a('''
v_lshrrev_b32 v2, 3, v0
v_and_b32 v3, 7, v0
v_lshrrev_b32 v4, 4, v0
v_xor_b32 v3, v3, v4
v_lshlrev_b32 v3, 4, v3
v_lshl_add_u32 v2, v2, 10, v3
v_xor_b32 v3, 64, v2
v_and_b32 v4, 31, v0
v_lshrrev_b32 v5, 5, v0
v_lshrrev_b32 v6, 1, v4
v_and_b32 v6, 7, v6
v_xor_b32 v6, v6, v5
v_lshlrev_b32 v6, 4, v6
v_lshl_add_u32 v4, v4, 7, v6
v_add_u32 v4, s47, v4
v_xor_b32 v5, 32, v4
v_xor_b32 v6, 64, v4
v_xor_b32 v7, 0x60, v4
''')
    a('''
v_bfe_u32 v28, v0, 4, 1
v_lshrrev_b32 v29, 5, v0
v_lshlrev_b32 v29, 3, v29
v_bfe_u32 v30, v0, 2, 2
v_add_u32 v29, v29, v30
v_and_b32 v30, 3, v0
v_lshlrev_b32 v30, 3, v30
v_mul_u32_u24 v8, %d, v28
v_mul_u32_u24 v31, 96, v29
v_add3_u32 v8, v8, v31, v30
v_add_u32 v8, %d, v8
s_mul_i32 s36, s20, 1536
v_add_u32 v1, s36, v8
v_lshlrev_b32 v13, 6, v29
v_lshl_add_u32 v13, v28, 5, v13
v_add_u32 v13, v13, v30
v_lshlrev_b32 v22, 4, v0
''' % (P1U - P1G, P1G))
    for i in range(3):
        a('''
v_add_u32 v31, %d, v0
v_mul_u32_u24 v32, 43691, v31
v_lshrrev_b32 v32, 18, v32
v_mul_u32_u24 v33, 6, v32
v_sub_u32 v33, v31, v33
v_mul_u32_u24 v32, 3584, v32
v_lshl_add_u32 v%d, v33, 4, v32
''' % (64 * i, 9 + i))
    a('''
v_and_b32 v31, 15, v0
v_cmp_eq_u32 vcc, v31, v28
v_mov_b32 v96, 0x3f803f80
v_cndmask_b32 v96, 0, v96, vcc
v_mov_b32 v97, v96
v_mov_b32 v98, v96
v_mov_b32 v99, v96
v_mov_b32 v15, 0
v_mov_b32 v16, 0
s_waitcnt lgkmcnt(0)
s_mov_b32 s6, 0x200000
s_mov_b32 s7, 0x20000
s_mov_b32 s18, %d
s_mov_b32 s19, 0x20000
s_cmp_lt_u32 s20, 4
s_cselect_b32 s8, s32, s34
s_cselect_b32 s9, s33, s35
s_mov_b32 s10, 1835008
s_mov_b32 s11, 0x20000
s_mov_b32 s41, %d
s_cselect_b32 s41, s41, %d
s_and_b32 s36, s20, 3
s_mul_i32 s40, s36, 114688
s_lshl_b32 s37, s31, 1
s_add_u32 s40, s40, s37
s_mul_i32 s37, s36, 3072
s_add_u32 s41, s41, s37
''' % (WS_RANGE, P1G, P1U))

def prologue2(a):
    a('''
s_mov_b32 s15, 0x20000
s_cmp_ge_u32 s20, 4
s_cselect_b32 s46, 1, 0
s_cmp_lt_u32 s20, 4
s_cbranch_scc1 K1_P2_QKV
s_cmp_eq_u32 s23, 0
s_cbranch_scc1 K1_P2_QKV
s_cmp_lt_u32 s20, 6
s_cselect_b32 s12, s32, s34
s_cselect_b32 s13, s33, s35
s_cselect_b32 s37, 0, 4224
s_mov_b32 s14, 1835008
v_lshrrev_b32 v31, 1, v0
v_mul_u32_u24 v31, 3584, v31
v_and_b32 v12, 1, v0
v_lshl_add_u32 v12, v12, 4, v31
s_and_b32 s36, s20, 1
s_mul_i32 s42, s36, 229376
s_mul_i32 s38, s30, 224
s_add_u32 s42, s42, s38
s_add_u32 s42, s42, 192
s_mov_b32 s43, 458752
s_mov_b32 s44, 114688
s_lshl_b32 s36, s36, 11
s_add_u32 s45, s37, s36
s_branch K1_P2_DONE
K1_P2_QKV:
s_mov_b32 s12, s28
s_mov_b32 s13, s29
s_mov_b32 s14, 1572864
v_lshrrev_b32 v31, 2, v0
v_mul_u32_u24 v31, 3072, v31
v_and_b32 v12, 3, v0
v_lshl_add_u32 v12, v12, 4, v31
s_and_b32 s36, s20, 3
s_mul_i32 s42, s36, 98304
s_lshl_b32 s37, s22, 6
s_lshl_b32 s38, s30, 6
s_add_u32 s38, s38, 2048
s_lshl_b32 s45, s36, 11
s_cmp_lt_u32 s20, 4
s_cselect_b32 s37, s37, s38
s_add_u32 s42, s42, s37
s_mov_b32 s43, 393216
s_mov_b32 s44, 49152
K1_P2_DONE:
s_cmp_eq_u32 s23, 0
s_cbranch_scc1 K1_XA
v_mul_u32_u24 v14, 4224, v28
v_lshl_add_u32 v14, v29, 5, v14
v_add_u32 v14, v14, v30
s_branch K1_XB
K1_XA:
v_mov_b32 v14, v13
K1_XB:
v_add_u32 v23, %d, v14
v_add_u32 v14, %d, v14
v_add_u32 v21, %d, v13
v_add_u32 v13, %d, v13
''' % (XR0 + 8192, P1U, XR0, P1G))
    a('''
s_mul_i32 s48, s21, 112
s_lshr_b32 s36, s31, 4
s_add_u32 s48, s48, s36
s_lshl_b32 s48, s48, 10
s_add_u32 s48, s48, %d
s_and_b32 s36, s22, 15
s_lshl_b32 s36, s36, 7
s_add_u32 s36, s36, s21
s_lshl_b32 s36, s36, 10
s_cmp_lt_u32 s22, 16
s_cselect_b32 s37, %d, %d
s_cselect_b32 s51, 0x%08x, 0x3f800000
s_add_u32 s49, s36, s37
s_lshl_b32 s36, s30, 7
s_add_u32 s36, s36, s21
s_lshl_b32 s36, s36, 10
s_add_u32 s36, s36, %d
s_add_u32 s37, s48, 3072
s_cmp_eq_u32 s23, 0
s_cselect_b32 s50, s36, s37
''' % (HF, QF, KF, f2u(0.25 * 1.4426950408889634), VF))

def w1_dma(d):
    out = [I('s_add_u32 s55, s40, %d' % (d * 128 * 3584))]
    for i in range(3):
        out.append(I('s_add_u32 m0, s41, %d' % ((d % 3) * SLOT + i * 1024)))
        out.append(VM('buffer_load_dwordx4 v%d, s[8:11], s55 offen lds' % (9 + i), 'W1_%d' % d))
    return out

def p2_dma(d):
    out = [I('s_mul_i32 s52, s43, %d' % d), I('s_add_u32 s52, s52, s42'), I('s_add_u32 s53, s52, s44'),
           I('s_cmp_eq_u32 s46, 0'), I('s_mov_b32 s56, %d' % t_base(d)), I('s_cselect_b32 s56, s56, %d' % x_base(d)), I('s_add_u32 s56, s56, s45')]
    for i in range(2):
        out.append(I('s_add_u32 m0, s56, %d' % (i * 1024)))
        out.append(VM('buffer_load_dwordx4 v12, s[12:15], s%d offen lds' % (52 + i), 'P2_%d' % d))
    return out

def x_dma(c):
    out = []
    for j in range(4):
        out.append(I('s_add_u32 m0, s47, %d' % ((c & 1) * 4096 + j * 1024 - c * 128)))
        out.append(VM('buffer_load_dwordx4 v%d, s[4:7], s%d offen offset:%d lds' % (2 + (j & 1), 24 + j, c * 128), 'X%d' % c))
    return out

def stage(c):
    out = [W(vm='X%d' % c)]
    for s in range(4):
        out.append(DS('ds_read_b128 %s, v%d offset:%d' % (vr(XR + 16 * c + 4 * s), 4 + s, (c & 1) * 4096), 'XF%d' % c))
    return out

B1 = (24, 36)
def tr1(ks, units=(0, 1, 2)):
    out = []
    d, k = ks >> 3, ks & 7
    for u in units:
        b = B1[ks & 1] + 4 * u
        for sec in range(2):
            out.append(DS('ds_read_b64_tr_b16 %s, v8 offset:%d' % (vr(b + 2 * sec, 2), (d % 3) * SLOT + k * 1536 + u * 32 + sec * 384), 'T1_%d_%d' % (ks, u)))
    return out

def cs1_read(d):
    return [DS('ds_read_b64_tr_b16 %s, v1 offset:%d' % (vr(CT1 + 4 * u + 2 * sec, 2), (d % 3) * SLOT + u * 32 + sec * 384), 'C1_%d' % d) for u in range(3) for sec in range(2)]
def cs1_mma(d):
    return [W(ds='C1_%d' % d)] + [I('v_mfma_f32_16x16x32_bf16 %s, %s, %s, %s' % (vr(CSA1 + 4 * u), vr(SEL1), vr(CT1 + 4 * u), '0' if d == 0 else vr(CSA1 + 4 * u))) for u in range(3)]

def tr2_addr(d, k, var, unit, sec):
    if unit == 0:
        reg, base = (13, t_base(d) - P1G) if d < 3 else (21, 0)
        return reg, base + k * 1024 + sec * 256
    reg, base = (14, x_base(d) - P1U) if d < 3 else (23, 0)
    return reg, base + (k * 1024 + sec * 256 if var == 0 else k * 512 + sec * 128)
def tr2(ks, var, unit):
    d, k = ks >> 3, ks & 7
    b = BR + 8 * (ks & 1) + 4 * unit
    out = []
    for sec in range(2):
        reg, off = tr2_addr(d, k, var, unit, sec)
        out.append(DS('ds_read_b64_tr_b16 %s, v%d offset:%d' % (vr(b + 2 * sec, 2), reg, off), 'T2_%d_%d' % (ks, unit)))
    return out
def cs2(d, var):
    out = []
    for unit in range(2):
        for sec in range(2):
            reg, off = tr2_addr(d, 0, var, unit, sec)
            if sec == 0: out.append(I('v_add_u32 v%d, s%d, v%d' % (19 + unit, 57 + (unit if var else 0), reg)))
            out.append(DS('ds_read_b64_tr_b16 %s, v%d offset:%d' % (vr(CT2 + 4 * unit + 2 * sec, 2), 19 + unit, off), 'C2_%d' % d))
    mm = [W(ds='C2_%d' % d)] + [I('v_mfma_f32_16x16x32_bf16 %s, %s, %s, %s' % (vr(CSA2 + 4 * u), vr(SEL2), vr(CT2 + 4 * u), '0' if d == 0 else vr(CSA2 + 4 * u))) for u in range(2)]
    return out, mm

def cs_publish(units, csa, tmp=(1, 2, 3)):
    ta, t2, t3 = tmp
    out = [I('s_lshr_b32 s59, s20, 2'), I('s_lshl_b32 s59, s59, 9'), I('s_and_b32 s56, s20, 3'), I('s_lshl_b32 s56, s56, 2'), I('s_add_u32 s59, s59, s56'),
           I('v_add_u32 v%d, s59, v22' % ta), I('s_mov_b64 exec, 0xffff')]
    for n, u in enumerate(units):
        for k in range(2):
            c = csa + 4 * n + k
            out += [I('v_cvt_pk_bf16_f32 v%d, v%d, v%d' % (t2, c, c)), I('v_lshlrev_b32 v%d, 16, v%d' % (t2, t2)), I('v_sub_f32 v%d, v%d, v%d' % (t3, c, t2)),
                    I('v_cvt_pk_bf16_f32 v%d, v%d, v%d' % (c, c, t3)),
                    DS('ds_write_b32 v%d, v%d offset:%d' % (ta, c, CSF + u * 1024 + 256 * k), 'CSA')]
    out += [I('s_mov_b64 exec, -1')]
    return out

def mean_fix(u, tag, swap=False):
    A = [DS('ds_read_b128 %s, v22 offset:%d' % (vr(CF), CSF + u * 1024), tag), W(ds=tag)]
    if swap: A.append(I('v_mfma_f32_32x32x16_bf16 %s, %s, %s, %s' % (acc(u), vr(MF), vr(CF), acc(u))))
    else: A.append(I('v_mfma_f32_32x32x16_bf16 %s, %s, %s, %s' % (acc(u), vr(CF), vr(MF), acc(u))))
    return A

def g_epilogue(u, soff_expr, tmp=(1, 2, 3, 12)):
    A = ACC + 16 * u
    out = []
    if 'pk' in EXP:
        for q in range(2):
            g = A + 4 * q; uu = A + 8 + 4 * q; t = 8
            p2 = lambda r: 'v[%d:%d]' % (r, r + 1)
            for i in (0, 2): out.append(I('v_pk_mul_f32 %s, %s, %s' % (p2(t + i), p2(g + i), p2(g + i))))
            for i in (0, 2): out.append(I('v_pk_fma_f32 %s, %s, v[46:47], v[44:45]' % (p2(t + i), p2(t + i))))
            for i in (0, 2): out.append(I('v_pk_mul_f32 %s, %s, %s' % (p2(t + i), p2(t + i), p2(g + i))))
            for i in range(4): out.append(I('v_exp_f32 v%d, v%d' % (t + i, t + i)))
            for i in (0, 2): out.append(I('v_pk_mul_f32 %s, %s, %s' % (p2(g + i), p2(g + i), p2(uu + i))))
            for i in (0, 2): out.append(I('v_pk_fma_f32 %s, %s, v[2:3], v[2:3]' % (p2(t + i), p2(t + i))))
            for i in range(4): out.append(I('v_rcp_f32 v%d, v%d' % (t + i, t + i)))
            for i in (0, 2): out.append(I('v_pk_mul_f32 %s, %s, %s' % (p2(g + i), p2(g + i), p2(t + i))))
            out.append(I('v_cvt_pk_bf16_f32 v%d, v%d, v%d' % (A + 8 + 2 * q, g, g + 1)))
            out.append(I('v_cvt_pk_bf16_f32 v%d, v%d, v%d' % (A + 8 + 2 * q + 1, g + 2, g + 3)))
    for q in range(2):
        if 'pk' in EXP: break
        g = [A + 4 * q + i for i in range(4)]
        uu = [A + 8 + 4 * q + i for i in range(4)]
        for i in range(4): out.append(I('v_mul_f32 v%d, v%d, v%d' % (tmp[i], g[i], g[i])))
        for i in range(4): out.append(I('v_fma_f32 v%d, v%d, v%d, v%d' % (tmp[i], tmp[i], C1, C0)))
        for i in range(4): out.append(I('v_mul_f32 v%d, v%d, v%d' % (tmp[i], tmp[i], g[i])))
        for i in range(4): out.append(I('v_exp_f32 v%d, v%d' % (tmp[i], tmp[i])))
        for i in range(4): out.append(I('v_mul_f32 v%d, v%d, v%d' % (g[i], g[i], uu[i])))
        for i in range(4): out.append(I('v_fma_f32 v%d, v%d, v%d, v%d' % (tmp[i], tmp[i], IRS2, IRS2)))
        for i in range(4): out.append(I('v_rcp_f32 v%d, v%d' % (tmp[i], tmp[i])))
        for i in range(4): out.append(I('v_mul_f32 v%d, v%d, v%d' % (g[i], g[i], tmp[i])))
        out.append(I('v_cvt_pk_bf16_f32 v%d, v%d, v%d' % (A + 8 + 2 * q, g[0], g[1])))
        out.append(I('v_cvt_pk_bf16_f32 v%d, v%d, v%d' % (A + 8 + 2 * q + 1, g[2], g[3])))
    sreg, add = soff_expr
    out.append(I('s_add_u32 s54, s%d, %d' % (sreg, add)))
    out.append(VM('buffer_store_dwordx4 %s, v22, s[16:19], s54 offen%s' % (vr(A + 8), STF), 'ST'))
    return out

def t_epilogue():
    A = ACC + 48
    o = XR + 32
    out = [I('v_mul_f32 v1, s51, v%d' % RSTD)]
    for r in range(16): out.append(I('v_mul_f32 v%d, v%d, v1' % (A + r, A + r)))
    for p in range(8): out.append(I('v_cvt_pk_bf16_f32 v%d, v%d, v%d' % (o + p, A + 2 * p, A + 2 * p + 1)))
    out.append(I('s_add_u32 s54, s49, 65536'))
    out.append(VM('buffer_store_dwordx4 %s, v22, s[16:19], s49 offen%s' % (vr(o), STF), 'ST'))
    out.append(VM('buffer_store_dwordx4 %s, v22, s[16:19], s54 offen%s' % (vr(o + 4), STF), 'ST'))
    return out

def v_pre():
    rs = XR + 48
    out = [I('v_lshrrev_b32 v19, 5, v0'), I('v_lshlrev_b32 v20, 4, v19'), I('s_lshl_b32 s59, s20, 7'), I('v_add_u32 v20, s59, v20')]
    for q in range(4):
        out.append(DS('ds_read_b128 %s, v20 offset:%d' % (vr(rs + 4 * q), ST + q * 32), 'VE'))
    out += [I('v_bfe_u32 v152, v0, 4, 1'), I('v_lshlrev_b32 v152, 16, v152'), I('v_lshl_add_u32 v152, v19, 8, v152'), I('v_and_b32 v19, 15, v0'), I('v_lshl_add_u32 v152, v19, 4, v152')]
    return out
def v_epilogue():
    A = ACC + 64
    rs, o = XR + 48, XR + 64
    out = [W(ds='VE')]
    for r in range(16): out.append(I('v_mul_f32 v%d, v%d, v%d' % (A + r, A + r, rs + r)))
    for p in range(8): out.append(I('v_cvt_pk_bf16_f32 v%d, v%d, v%d' % (o + p, A + 2 * p, A + 2 * p + 1)))
    out.append(VM('buffer_store_dwordx4 %s, v152, s[16:19], s50 offen%s' % (vr(o), STF), 'ST'))
    out.append(VM('buffer_store_dwordx4 %s, v152, s[16:19], s50 offen offset:512%s' % (vr(o + 4), STF), 'ST'))
    return out

def rne_bf16(dst, src):
    return [I('v_cvt_pk_bf16_f32 v%d, v%d, v%d' % (dst, src, src)), I('v_lshlrev_b32 v%d, 16, v%d' % (dst, dst))]

def stats_final():
    out = ([I('v_mov_b32 v20, v19')] if 'sq4' in EXP else []) + [I('v_and_b32 v19, 15, v0'), I('v_lshlrev_b32 v19, 2, v19'),
           DS('ds_bpermute_b32 v2, v19, v%d' % RS, 'BP'), DS('ds_bpermute_b32 v3, v19, v%d' % (RS + 1), 'BP'),
           ] + ([I('v_and_b32 v15, 3, v0'), I('v_cmp_eq_u32 vcc, 1, v15'), I('v_cndmask_b32 v16, v16, v17, vcc'), I('v_cmp_eq_u32 vcc, 2, v15'), I('v_cndmask_b32 v16, v16, v18, vcc'),
           I('v_cmp_eq_u32 vcc, 3, v15'), I('v_cndmask_b32 v16, v16, v20, vcc')] if 'sq4' in EXP else [I('v_add_f32 v16, v15, v16')]) + [I('v_mov_b32 v17, v16'), I('v_permlane32_swap_b32 v16, v17'), I('v_add_f32 v16, v16, v17'),
           I('v_and_b32 v19, 16, v0'), I('v_cmp_ne_u32 vcc, 0, v19'), W(ds='BP'), I('v_cndmask_b32 v15, v2, v3, vcc'),
           I('v_mul_f32 v15, 0x3b000000, v15'), I('v_mul_f32 v16, 0x3b000000, v16'),
           I('v_fma_f32 v16, -v15, v15, v16'), I('v_max_f32 v16, 0, v16')]
    out += rne_bf16(16, 16)
    out += [I('v_add_f32 v16, 0x%08x, v16' % f2u(1e-5))]
    out += rne_bf16(16, 16)
    out += [I('v_sqrt_f32 v16, v16')]
    out += rne_bf16(16, 16)
    out += [I('v_sub_f32 v15, 0, v15'), I('v_cvt_pk_bf16_f32 v%d, v15, v15' % MF),
            I('v_mov_b32 v%d, v%d' % (MF + 1, MF)), I('v_mov_b32 v%d, v%d' % (MF + 2, MF)), I('v_mov_b32 v%d, v%d' % (MF + 3, MF)),
            I('v_rcp_f32 v%d, v16' % RSTD), I('v_mul_f32 v%d, v16, v16' % IRS2),
            I('v_mul_f32 v%d, 0x%08x, v%d' % (C0, f2u(K0), RSTD)), I('v_mul_f32 v19, v%d, v%d' % (RSTD, RSTD)),
            I('v_mul_f32 v19, v19, v%d' % RSTD), I('v_mul_f32 v%d, 0x%08x, v19' % (C1, f2u(K1C)))]
    out += [I('v_and_b32 v19, 31, v0'), I('v_lshlrev_b32 v19, 2, v19'), I('s_lshl_b32 s54, s20, 7'), I('v_add_u32 v19, s54, v19'),
            DS('ds_write_b32 v19, v%d offset:%d' % (RSTD, ST), 'STW')]
    return out

def groups(items):
    g, cur = [], []
    for x in items:
        cur.append(x)
        if x.q == 'vm': g.append(cur); cur = []
    assert not cur
    return g

def touch():
    if 'wpf' not in EXP: return []
    out = [I('s_lshl_b32 s59, s2, 3'), I('s_add_u32 s59, s59, s20'), I('s_lshl_b32 s59, s59, 10')]
    for (lo, sz) in ((32, 1835008), (34, 1835008), (28, 1572864)):
        out += [I('s_mov_b32 s100, s%d' % lo), I('s_mov_b32 s101, s%d' % (lo + 1))] if False else []
        out += [I('s_mov_b32 s88, s%d' % lo), I('s_mov_b32 s89, s%d' % (lo + 1)), I('s_mov_b32 s90, %d' % sz), I('s_mov_b32 s91, 0x20000'),
                VM('buffer_load_dwordx4 v[252:255], v22, s[88:91], s59 offen', 'PF')]
    return out
def touch_code(tag, first_kb, nwaves, areg=31):
    if 'notouch' in EXP or 'nocode' in EXP: return []
    L = 'K1_TC%s' % tag
    return [I('s_cmp_ge_u32 s20, %d' % nwaves), I('s_cbranch_scc1 %s' % L),
            I('s_getpc_b64 s[52:53]'), I(L + 'P:'), I('s_sub_u32 s52, s52, %sP-k1_kernel' % L), I('s_subb_u32 s53, s53, 0'),
            I('s_lshl_b32 s56, s20, 13'), I('s_add_u32 s56, s56, %d' % (first_kb * 1024)), I('v_lshl_add_u32 v%d, v0, 7, s56' % areg),
            I('v_min_u32 v%d, CODE_END-k1_kernel-4, v%d' % (areg, areg)), I('global_load_dword v%d, v%d, s[52:53]' % (255 if tag == 'A' else 47, areg)), I(L + ':')]

def touch_tlb():
    if 'tlb' not in EXP: return []
    return [I('s_cmp_lg_u32 s20, 5'), I('s_cbranch_scc1 K1_TLB1'),
            I('v_lshlrev_b32 v31, 19, v0'), I('buffer_load_dword v254, v31, s[16:19], 0 offen'), I('K1_TLB1:'),
            I('s_cmp_lg_u32 s20, 6'), I('s_cbranch_scc1 K1_TLB2'),
            I('s_load_dwordx2 s[60:61], s[0:1], 56'), I('s_mov_b32 s62, 0x200000'), I('s_mov_b32 s63, 0x20000'), I('v_lshlrev_b32 v31, 15, v0'), I('s_waitcnt lgkmcnt(0)'),
            I('buffer_load_dword v254, v31, s[60:63], 0 offen'), I('K1_TLB2:')]

def build_k1():
    a = Asm()
    prologue(a)
    R = Resolver(a)
    pre = ([I('s_memrealtime s[92:93]')] if (STAMP or DBGT) else []) + stamp() + w1_dma(0) + x_dma(0) + x_dma(1)
    R.run(pre)
    prologue2(a)
    R.run(touch_code('A', 0, 3) + touch_tlb())
    tch = groups(touch())
    if tch and 'wpfl' not in EXP: R.run(touch())
    pre = [] if FUSED[0] else [I('s_or_b32 s52, s2, s20'), I('s_cmp_lg_u32 s52, 0'), I('s_cbranch_scc1 K1_NOZ'),
           I('v_mov_b32 v32, 0'), I('v_mov_b32 v33, 0'), I('v_mov_b32 v34, 0'), I('v_mov_b32 v35, 0'), I('s_mov_b32 s52, %d' % FLG)]
    if not FUSED[0]:
        pre += [I('buffer_store_dwordx4 v[32:35], v22, s[16:19], s52 offen offset:%d' % (1024 * i)) for i in range(4)]
        pre += [I('s_waitcnt vmcnt(0)'), I('K1_NOZ:')]
    if 'prio' in EXP: pre += [I('s_cmp_lt_u32 s20, 4'), I('s_cbranch_scc1 K1_NP'), I('s_setprio 1'), I('K1_NP:')]
    pre += stamp() + [W(vm='W1_0'), I('s_barrier')] + stamp()
    pre += stage(0) + tr1(0)
    R.run(pre)
    stats_final_items = stats_final()
    for ks in range(32):
        c, d = ks >> 2, ks >> 3
        it = []
        b = B1[ks & 1]; x = XR + 4 * ks
        vmg = []
        if (ks & 7) == 7 and ks < 31:
            it += cs1_mma(d)
            it += stamp() + [W(vm='W1_%d' % (d + 1), ds=['T1_%d_%d' % (ks, u) for u in range(3)]), I('s_barrier')]
            vmg += groups(w1_dma(3)) if d == 0 else groups(p2_dma(d - 1))
        if (ks & 3) == 3 and c + 3 <= 7:
            g = groups(x_dma(c + 3)); g[0] = [W(ds='XF%d' % (c + 1))] + g[0]; vmg += g
        if ks == 0: vmg += groups(w1_dma(1))
        if tch and ks < 3 and 'wpfl' in EXP: vmg.append(tch[ks])
        if ks == 1: vmg += groups(x_dma(2))
        if ks == 2: vmg += groups(w1_dma(2))
        def stat(k2):
            x2 = XR + 4 * k2
            sq = []
            for j in range(4):
                t = 17 + 2 * (j & 1)
                sq.append([I('v_lshlrev_b32 v%d, 16, v%d' % (t, x2 + j)), I('v_and_b32 v%d, 0xffff0000, v%d' % (t + 1, x2 + j)),
                           I('v_fmac_f32 v%d, v%d, v%d' % (SQA, t, t)), I('v_fmac_f32 v%d, v%d, v%d' % (SQB, t + 1, t + 1))])
            rs = I('v_mfma_f32_16x16x32_bf16 %s, %s, %s, %s' % (vr(RS), vr(SEL1), vr(x2), '0' if k2 == 0 else vr(RS)))
            if 'sq4' in EXP:
                return [[W(ds='XF%d' % (k2 >> 2)), I('v_mfma_f32_4x4x4_16b_bf16 %s, %s, %s, %s' % (vr(SQ4A), vr(x2, 2), vr(x2, 2), '0' if k2 == 0 else vr(SQ4A)))], [rs],
                        [I('v_mfma_f32_4x4x4_16b_bf16 %s, %s, %s, %s' % (vr(SQ4A), vr(x2 + 2, 2), vr(x2 + 2, 2), vr(SQ4A)))]]
            return [[W(ds='XF%d' % (k2 >> 2))] + sq[0] + [rs], sq[1] + sq[2], sq[3]]
        if ks < 26: side = stat(ks)
        elif ks < 29:
            a1, a2 = stat(26 + 2 * (ks - 26)), stat(27 + 2 * (ks - 26))
            side = [a1[0] + a1[1], a1[2] + a2[0], a2[1] + a2[2]]
        else:
            sf = stats_final_items
            n = len(sf); k3 = ks - 29
            part = sf[n * k3 // 3: n * (k3 + 1) // 3]
            side = [part[:len(part) // 3], part[len(part) // 3: 2 * len(part) // 3], part[2 * len(part) // 3:]]
        for u in range(3):
            if 'mw' in EXP: it += [W(ds=['T1_%d_%d' % (ks, uu) for uu in range(3)] + ['XF%d' % c])]
            else: it += [W(ds=('T1_%d_%d' % (ks, u), 'XF%d' % c))]
            it.append(I('v_mfma_f32_32x32x16_bf16 %s, %s, %s, %s' % (acc(u), vr(b + 4 * u), vr(x), '0' if ks == 0 else acc(u))))
            if ks < 31: it += tr1(ks + 1, (u,))
            it += side[u]
            if u < len(vmg): it += vmg[u]
        for g in vmg[3:]: it += g
        if (ks & 7) == 5: it += cs1_read(d)
        if (ks & 3) == 1 and c < 6: it += stage(c + 1)
        if ks == 24: it += stage(7)
        R.run(it)
    mid = stamp() + cs1_mma(3) + cs_publish((0, 1, 2), CSA1) + [I('v_mov_b32 v%d, v%d' % (SEL2 + r, SEL1)) for r in range(4)]
    mid += [I('s_lshl_b32 s57, s20, 10'), I('s_lshl_b32 s58, s20, 9')]
    mid += [W(vm=('P2_0', 'P2_1'), ds='ALL'), I('s_barrier')] + stamp() + p2_dma(2) + p2_dma(3)
    late = []
    if 'nopf' not in EXP:
        late += [I('s_mov_b32 s62, 1835008'), I('s_mov_b32 s63, 0x20000'), I('s_mov_b32 s98, 0x80000'), I('s_mov_b32 s99, 0x20000'),
                 I('s_lshl_b32 s59, s2, 3'), I('s_add_u32 s59, s59, s20'), I('s_lshl_b32 s59, s59, 10'),
                 VM('buffer_load_dwordx4 v[44:47], v22, s[60:63], s59 offen', 'PF'), VM('buffer_load_dwordx4 v[44:47], v22, s[96:99], s59 offen', 'PF')]
    if 'midpf' in EXP:
        mid += touch_code('B', 16, 4) + late; late = []
    R.run(mid)
    st_save = _st[0]
    a('s_cmp_eq_u32 s23, 0\ns_cbranch_scc0 K1_VARB')
    for var in range(2):
        if var == 1: a('K1_VARB:')
        RR = copy.deepcopy(R); RR.a = a; _st[0] = st_save
        main = tr2(0, var, 0) + tr2(0, var, 1)
        body = []
        for ks in range(32):
            b = BR + 8 * (ks & 1); x = XR + 4 * ks
            if ks == 15: body.append([W(vm=('P2_2', 'P2_3')), I('s_barrier')])
            body.append([W(ds=('T2_%d_0' % ks, 'T2_%d_1' % ks) if 'mw' in EXP else 'T2_%d_0' % ks), I('v_mfma_f32_32x32x16_bf16 %s, %s, %s, %s' % (acc(3), vr(b), vr(x), '0' if ks == 0 else acc(3)))])
            if ks < 31: body.append(tr2(ks + 1, var, 0))
            if var == 0: mf = I('v_mfma_f32_32x32x16_bf16 %s, %s, %s, %s' % (acc(4), vr(x), vr(b + 4), '0' if ks == 0 else acc(4)))
            else: mf = I('v_mfma_f32_32x32x16_bf16 %s, %s, %s, %s' % (acc(4), vr(b + 4), vr(x), '0' if ks == 0 else acc(4)))
            body.append([W(ds='T2_%d_1' % ks), mf])
            if ks < 31: body.append(tr2(ks + 1, var, 1))
            for dd, kk in enumerate((5, 8, 16, 18)):
                if ks == kk: body.append(cs2(dd, var)[0])
                if ks == kk + 1: body.append(cs2(dd, var)[1])
            if ks == 2 and late: body.append(late)
            if ks == 3 and late: body.append(touch_code('B%d' % var, 16, 4, 19))
            if ks == 20: body.append(cs_publish((3, 4), CSA2, tmp=(19, 20, 144)))
            if ks == 23: body.append([W(ds='CSA'), I('s_barrier')])
            if ks == 25: body.append([DS('ds_read_b128 %s, v22 offset:%d' % (vr(144 + 4 * n), CSF + (3 + n) * 1024), 'CFF') for n in range(2)] + (v_pre() if var == 0 else []))
        side = []
        for u in range(3): side += mean_fix(u, 'MF%d' % u)
        if 'pk' in EXP: side += [W(vm='PF'), I('v_mov_b32 v44, v%d' % C0), I('v_mov_b32 v45, v%d' % C0), I('v_mov_b32 v46, v%d' % C1), I('v_mov_b32 v47, v%d' % C1), I('v_mov_b32 v2, v%d' % IRS2), I('v_mov_b32 v3, v%d' % IRS2)]
        for u in range(3): side += g_epilogue(u, (48, u * 1024))
        merged = merge(body, side)
        flat = []
        for x in merged:
            if isinstance(x, list): flat += x
            else: flat.append(x)
        RR.run(main + flat)
        fin = stamp() + stamp() + [W(ds='CFF'), I('v_mfma_f32_32x32x16_bf16 %s, %s, %s, %s' % (acc(3), vr(144), vr(MF), acc(3)))]
        if var == 0: fin.append(I('v_mfma_f32_32x32x16_bf16 %s, %s, %s, %s' % (acc(4), vr(MF), vr(148), acc(4))))
        else: fin.append(I('v_mfma_f32_32x32x16_bf16 %s, %s, %s, %s' % (acc(4), vr(148), vr(MF), acc(4))))
        fin += t_epilogue()
        if var == 0: fin += v_epilogue()
        else: fin += g_epilogue(4, (50, 0))
        fin += stamp() + ([I('s_waitcnt vmcnt(0)')] if STAMP else []) + stamp() + ([I('s_memrealtime s[94:95]')] if STAMP else []) + stamp_out(16 << 20)
        if DBGT:
            fin += [I('s_waitcnt vmcnt(0)'), I('s_memrealtime s[94:95]'), I('s_waitcnt lgkmcnt(0)'), I('s_lshl_b32 s54, s2, 3'), I('s_add_u32 s54, s54, s20'), I('s_lshl_b32 s54, s54, 3'), I('s_add_u32 s54, s54, %d' % (24 << 20)),
                    I('v_mov_b32 v1, 0'), I('v_mov_b32 v2, s92'), I('v_mov_b32 v3, s94'), I('buffer_store_dwordx2 v[2:3], v1, s[16:19], s54 offen')]
        RR.run(fin)
        if FUSED[0]: a('s_branch PHASE2' if var == 0 else 's_nop 0')
        else: a('s_endpgm' if var == 0 else 'K1_END:\ns_endpgm')
    if FUSED[0]: return a
    return a.finalize()

if __name__ == '__main__':
    print(len(build_k1().splitlines()))
```

```python
from asmlib import *
from sched import *
from k1 import QF, KF, VF, HF, OF, FLG, WS_RANGE, vr, f2u
import copy, os
import k1 as K1M
STAMP = int(os.environ.get('STAMP', '0'))
EARLYBAR = int(os.environ.get('EARLYBAR', '0'))
FLAGPOS = int(os.environ.get('FLAGPOS', '27'))
_st = [0]
SB0 = 96
def stamp():
    if not STAMP: return []
    k = _st[0]; _st[0] += 1
    return [I('s_memrealtime s[96:97]' if STAMP == 2 else 's_memtime s[96:97]'), I('s_waitcnt lgkmcnt(0)'), I('v_mov_b32 v%d, s96' % (240 + k))]
def stamp_out(base):
    if not STAMP: return []
    out = [I('s_lshl_b32 s54, s2, 3'), I('s_add_u32 s54, s54, s20'), I('s_lshl_b32 s54, s54, 7'), I('s_add_u32 s54, s54, %d' % base), I('v_mov_b32 v1, 0')]
    for k in range(16):
        out += [I('buffer_store_dword v%d, v1, s[16:19], s54 offen offset:%d' % (240 + k, 4 * k))]
    return out

DEPTH = int(os.environ.get('DEPTH', '8'))
P1SLEEP = int(os.environ.get('P1SLEEP', '16'))
GATE = int(os.environ.get('GATE', '22'))
STS = eval(os.environ.get('STS', '(4, 12, 20, 28)'))
PSLEEP = int(os.environ.get('PSLEEP', '1'))
RSZ = max(17408, DEPTH * 2048 + 1024)
FLAG = 4 * RSZ
OBUF = FLAG + 256
ODMA = int(os.environ.get('ODMA', '0'))
LDS_K2 = OBUF + (65536 if ODMA else 0)
NEG_BIG = 0xf149f2ca
GA = 16; GB = GA + 8 * DEPTH; GACC = GB + 16
AQ, AK, AV, SA, SB, CN, CT, AP, AO = 16, 24, 64, 144, 160, 176, 192, 208, 216
XRES = 232

def prologue(a):
    if K1M.FUSED[0]:
        a('''
PHASE2:
s_waitcnt vmcnt(0) lgkmcnt(0)
v_lshl_add_u32 v0, s20, 6, v0
''')
    else:
        a('''
s_cmp_ge_u32 s2, 256
s_cbranch_scc1 K2_END
''')
    a('''
s_memrealtime s[98:99]
s_load_dwordx2 s[4:5], s[0:1], 0
s_load_dwordx2 s[8:9], s[0:1], 16
s_load_dwordx2 s[12:13], s[0:1], 48
s_load_dwordx4 s[24:27], s[0:1], 56
s_load_dwordx2 s[16:17], s[0:1], 72
v_mov_b32 v15, v0
v_lshrrev_b32 v1, 6, v0
v_and_b32 v0, 63, v0
v_readfirstlane_b32 s20, v1
s_and_b32 s36, s2, 7
s_lshr_b32 s37, s2, 3
s_lshl_b32 s21, s36, 2
s_lshr_b32 s38, s37, 3
s_add_u32 s21, s21, s38
s_and_b32 s22, s37, 7
v_lshlrev_b32 v14, 4, v0
v_lshrrev_b32 v1, 3, v15
v_and_b32 v2, 7, v15
v_lshlrev_b32 v13, 10, v1
v_lshl_add_u32 v13, v2, 4, v13
v_mul_u32_u24 v12, 272, v1
v_lshl_add_u32 v12, v2, 5, v12
s_lshl_b32 s23, s21, 16
s_lshl_b32 s36, s22, 7
s_add_u32 s23, s23, s36
v_mov_b32 v1, 0
v_mov_b32 v2, %d
v_and_b32 v3, 7, v0
v_lshl_add_u32 v2, v3, 2, v2
ds_write_b32 v2, v1
s_waitcnt lgkmcnt(0)
s_mov_b32 s6, 0x200000
s_mov_b32 s7, 0x20000
s_mov_b32 s10, 0x80000
s_mov_b32 s11, 0x20000
s_mov_b32 s14, 1835008
s_mov_b32 s15, 0x20000
s_mov_b32 s18, %d
s_mov_b32 s19, 0x20000
s_mov_b32 s28, s24
s_mov_b32 s29, s25
s_mov_b32 s30, 0x200000
s_mov_b32 s31, 0x20000
s_mov_b32 s32, s26
s_mov_b32 s33, s27
s_mov_b32 s34, 256
s_mov_b32 s35, 0x20000
s_barrier
''' % (FLAG, WS_RANGE))
    if K1M.FUSED[0]:
        a('''
s_cmp_lg_u32 s20, 4
s_cbranch_scc1 K2_NOF1
v_mov_b32 v1, 1
v_mov_b32 v2, s2
s_mov_b64 exec, 1
buffer_store_byte v1, v2, s[32:35], 0 offen sc1
s_mov_b64 exec, -1
K2_NOF1:
''')

def final_reduce(tagp):
    out = stamp() + [I('v_add_u32 v11, %d, v12' % (2 * RSZ)), I('s_barrier')] + stamp()
    T = 192
    for g in range(4):
        for hlf in range(2):
            out.append(DS('ds_read_b128 %s, v%d offset:%d' % (vr(T + 8 * g + 4 * hlf), 12 if g < 2 else 11, (g & 1) * RSZ + 16 * hlf), tagp + 'R'))
    out.append(W(vm='XRES'))
    for i in range(4):
        out.append(I('v_lshlrev_b32 v%d, 16, v%d' % (64 + 2 * i, XRES + i)))
        out.append(I('v_and_b32 v%d, 0xffff0000, v%d' % (65 + 2 * i, XRES + i)))
    out.append(W(ds=tagp + 'R'))
    for i in range(8): out.append(I('v_add_f32 v%d, v%d, v%d' % (T + i, T + i, T + 8 + i)))
    for i in range(8): out.append(I('v_add_f32 v%d, v%d, v%d' % (T + 16 + i, T + 16 + i, T + 24 + i)))
    for i in range(8): out.append(I('v_add_f32 v%d, v%d, v%d' % (T + i, T + i, T + 16 + i)))
    for i in range(8): out.append(I('v_add_f32 v%d, v%d, v%d' % (T + i, T + i, 64 + i)))
    for i in range(4): out.append(I('v_cvt_pk_bf16_f32 v%d, v%d, v%d' % (72 + i, T + 2 * i, T + 2 * i + 1)))
    out.append(VM('buffer_store_dwordx4 v[72:75], v13, s[28:31], s23 offen%s' % os.environ.get('OSF', ' sc1'), 'OUT'))
    out += stamp() + stamp_out(17 << 20)
    if K1M.DBGT:
        L = 'K2_DBG' + tagp
        out += [I('s_waitcnt vmcnt(0)'), I('s_memrealtime s[96:97]'), I('s_waitcnt lgkmcnt(0)'), I('v_mov_b32 v1, 0'), I('v_mov_b32 v2, s96'), I('s_not_b32 s98, s98'), I('v_mov_b32 v3, s98'),
                I('s_mov_b64 exec, 1'), I('buffer_atomic_umax v2, v1, s[32:35], 0 offen'), I('buffer_atomic_umax v3, v1, s[32:35], 0 offen offset:4'), I('s_mov_b64 exec, -1'),
                I('s_cmp_ge_u32 s2, 32'), I('s_cbranch_scc1 %s' % L),
                I('s_lshl_b32 s54, s2, 9'), I('s_add_u32 s54, s54, %d' % (24 << 20)), I('v_lshlrev_b32 v4, 3, v0'), I('buffer_load_dwordx2 v[2:3], v4, s[16:19], s54 offen'), I('s_waitcnt vmcnt(0)'),
                I('v_not_b32 v2, v2'), I('buffer_atomic_umax v2, v1, s[32:35], 0 offen offset:8'), I('buffer_atomic_umax v3, v1, s[32:35], 0 offen offset:12'), I(L + ':')]
    out.append(I('s_endpgm'))
    return out

def lds_spin(name, off, areg=4, treg=5):
    return [I(name + ':'), DS('ds_read_b32 v%d, v%d offset:%d' % (treg, areg, off), 'FL' + name), W(ds='ALL'), I('v_readfirstlane_b32 s52, v%d' % treg),
            I('s_cmp_lg_u32 s52, 0'), I('s_cbranch_scc1 %s_OK' % name), I('s_sleep 1'), I('s_branch %s' % name), I(name + '_OK:')]

def gemm(a):
    R = Resolver(a)
    txt = ('''
v_lshrrev_b32 v1, 3, v0
v_and_b32 v2, 7, v0
v_bfe_u32 v3, v0, 4, 1
v_lshlrev_b32 v3, 2, v3
v_xor_b32 v2, v2, v3
v_lshlrev_b32 v1, 10, v1
v_lshl_add_u32 v1, v2, 4, v1
v_lshrrev_b32 v2, 5, v0
v_bfe_u32 v3, v0, 2, 2
v_lshl_add_u32 v2, v2, 2, v3
v_lshlrev_b32 v2, 7, v2
v_lshrrev_b32 v3, 1, v3
v_lshl_add_u32 v2, v3, 6, v2
v_bfe_u32 v3, v0, 4, 1
v_lshl_add_u32 v2, v3, 5, v2
v_and_b32 v3, 3, v0
v_lshl_add_u32 v2, v3, 3, v2
s_mul_i32 s40, s20, %d
v_add_u32 v2, s40, v2
v_xor_b32 v3, 64, v2
s_mul_i32 s41, s21, 224
s_mul_i32 s36, s20, 28
s_add_u32 s41, s41, s36
s_lshl_b32 s41, s41, 10
s_add_u32 s41, s41, %d
s_add_u32 s42, s41, 114688
s_mul_i32 s43, s20, 458752
s_lshl_b32 s36, s22, 7
s_add_u32 s43, s43, s36
s_lshl_b32 s44, s21, 6
s_lshl_b32 s37, s20, 3
s_add_u32 s44, s44, s37
s_lshl_b32 s44, s44, 10
s_add_u32 s44, s44, %d
s_add_u32 s45, s44, 32768
s_lshl_b32 s46, s20, 17
s_add_u32 s46, s46, s36
v_mov_b32 v4, %d
''' % (RSZ, HF, OF, FLAG))
    a(txt)
    def LA(s):
        out = []
        for t in range(2):
            dst = vr(GA + 8 * (s % DEPTH) + 4 * t)
            if s < 28:
                out.append(I('s_add_u32 s50, s%d, %d' % (41 + t, s * 1024)))
                out.append(VM('buffer_load_dwordx4 %s, v14, s[16:19], s50 offen%s' % (dst, ' sc1' if K1M.FUSED[0] else ''), 'A%d' % s))
            else:
                out.append(I('s_add_u32 s50, s%d, %d' % (44 + t, (s - 28) * 1024)))
                out.append(VM('buffer_load_dwordx4 %s, v14, s[16:19], s50 offen sc1' % dst, 'A%d' % s))
        return out
    def LW(s):
        out = []
        for i in range(2):
            if s < 28:
                out.append(I('s_add_u32 s51, s43, %d' % ((16 * s + 8 * i) * 1024))); srd = 's[12:15]'
            else:
                out.append(I('s_add_u32 s51, s46, %d' % ((16 * (s - 28) + 8 * i) * 1024))); srd = 's[8:11]'
            out.append(I('s_add_u32 m0, s40, %d' % ((s % DEPTH) * 2048 + i * 1024)))
            out.append(VM('buffer_load_dwordx4 v1, %s, s51 offen lds' % srd, 'W%d' % s))
        return out
    def TR(s):
        out = [W(vm='W%d' % s)]
        for cti in range(2):
            for sec in range(2):
                out.append(DS('ds_read_b64_tr_b16 %s, v%d offset:%d' % (vr(GB + 8 * (s & 1) + 4 * cti + 2 * sec, 2), 2 + cti, (s % DEPTH) * 2048 + sec * 1024), 'T%d' % s))
        return out
    _st[0] = 0
    it = stamp() + ([I('s_barrier')] if EARLYBAR else [])
    if K1M.FUSED[0]:
        it.append(VM('buffer_load_dwordx4 %s, v13, s[4:7], s23 offen' % vr(XRES), 'XRES'))
        for s in range(8): it += LW(s)
        it += lds_spin('K2_GW1', 4)
        for s in range(8): it += LA(s)
    else:
        for s in range(DEPTH): it += LW(s) + LA(s)
    if not K1M.FUSED[0]: it.append(VM('buffer_load_dwordx4 %s, v13, s[4:7], s23 offen' % vr(XRES), 'XRES'))
    it += stamp() + TR(0)
    pend = []
    for s in range(36):
        if s in STS: it += stamp()
        if s == GATE: it += [I('v_mov_b32 v5, 1'), DS('ds_write_b32 v4, v5 offset:12', 'GT')]
        it.append(W(ds=('T%d' % s, 'A%d' % s)) if (ODMA and s >= 28) else W(vm='A%d' % s, ds='T%d' % s))
        mm = []
        for t in range(2):
            for cti in range(2):
                ac = vr(GACC + 16 * (2 * t + cti), 16)
                mm.append(I('v_mfma_f32_32x32x16_bf16 %s, %s, %s, %s' % (ac, vr(GB + 8 * (s & 1) + 4 * cti), vr(GA + 8 * (s % DEPTH) + 4 * t), '0' if s == 0 else ac)))
        it += mm[:2]
        if s < 35: it += TR(s + 1)
        it += mm[2:]
        n = s + DEPTH
        if n < 36: it += LW(n)
        n = s + DEPTH - 1
        if DEPTH <= n < 28: it += LA(n)
        if ODMA:
            if s == 27:
                it += [I('s_lshl_b32 s52, s20, 2'), I('v_add_u32 v6, s52, v4'), I('s_lshl_b32 s52, s20, 14'), I('s_add_u32 s52, s52, %d' % OBUF), I('v_add_u32 v7, s52, v14')]
                it += lds_spin('K2_FW', 16, 6, 5) + stamp()
                for p in range(28, 36):
                    for t in range(2):
                        it.append(DS('ds_read_b128 %s, v7 offset:%d' % (vr(GA + 8 * (p % DEPTH) + 4 * t), (2 * (p - 28) + t) * 1024), 'A%d' % p))
        elif s == FLAGPOS:
            it += [I('K2_FW:'), DS('ds_read_b32 v5, v4', 'FL'), W(ds='ALL'), I('v_readfirstlane_b32 s52, v5'),
                   I('s_cmp_lg_u32 s52, 0'), I('s_cbranch_scc1 K2_FOK'), I('s_sleep 1'), I('s_branch K2_FW'), I('K2_FOK:')]
            it += stamp()
            for p in range(28, min(36, n + 1)): it += LA(p)
        elif s > FLAGPOS and 28 <= n < 36: it += LA(n)
    it += [I('v_and_b32 v5, 31, v0'), I('v_mul_u32_u24 v5, 272, v5'), I('v_lshrrev_b32 v6, 5, v0'), I('v_lshl_add_u32 v5, v6, 4, v5'), I('v_add_u32 v5, s40, v5')]
    for t in range(2):
        for cti in range(2):
            for q in range(4):
                it.append(DS('ds_write_b128 v5, %s offset:%d' % (vr(GACC + 16 * (2 * t + cti) + 4 * q), t * 32 * 272 + cti * 128 + q * 32), 'RW'))
    it.append(W(ds='ALL'))
    it += final_reduce('G')
    R.run(it)

_l = [0]
def lab(p):
    _l[0] += 1
    return 'K2_%s%d' % (p, _l[0])

def attn(a):
    R = Resolver(a)
    a('''
s_setprio 3
s_sub_u32 s36, s20, 4
s_lshl_b32 s40, s22, 2
s_add_u32 s40, s40, s36
s_lshl_b32 s41, s21, 1
s_sub_u32 s41, s41, 8
s_lshl_b32 s42, s40, 16
v_and_b32 v1, 15, v0
v_lshrrev_b32 v2, 5, v0
v_lshlrev_b32 v1, 4, v1
v_lshl_add_u32 v1, v2, 8, v1
v_bfe_u32 v3, v0, 4, 1
v_lshl_add_u32 v1, v3, 9, v1
v_and_b32 v3, 31, v0
v_lshlrev_b32 v2, 2, v2
v_sub_u32 v3, v3, v2
v_mov_b32 v4, 0x%08x
''' % NEG_BIG)
    _st[0] = 0
    it = stamp()
    SC = ' sc1' if K1M.FUSED[0] else ''
    if K1M.FUSED[0]:
        it += [I('v_mov_b32 v7, %d' % FLAG), I('s_cmp_lg_u32 s20, 4'), I('s_cbranch_scc1 K2_AW1'),
               I('s_lshr_b32 s36, s21, 2'), I('s_max_i32 s37, s41, 0'), I('s_lshr_b32 s37, s37, 3'),
               I('v_bfe_u32 v5, v0, 1, 2'), I('v_mov_b32 v6, 0')]
        for sr in (36, 37):
            it += [I('s_and_b32 s38, s%d, 3' % sr), I('s_cmp_ge_u32 s%d, 4' % sr), I('s_mov_b32 s39, 0x00010001'), I('s_cselect_b32 s39, 0x01000100, s39'),
                   I('v_cmp_eq_u32 vcc, s38, v5'), I('v_mov_b32 v8, s39'), I('v_cndmask_b32 v8, 0, v8, vcc'), I('v_or_b32 v6, v6, v8')]
        it += [I('v_lshlrev_b32 v5, 2, v0'),
               I('K2_P1:'), I('s_sleep %d' % P1SLEEP), VM('buffer_load_dword v8, v5, s[32:35], 0 offen sc1', 'PL1'), W(vm='ALL'),
               I('v_lshrrev_b32 v9, 1, v8'), I('v_or_b32 v8, v8, v9'), I('v_and_b32 v8, v8, v6'), I('v_cmp_eq_u32 vcc, v8, v6'),
               I('s_cmp_eq_u64 vcc, -1'), I('s_cbranch_scc1 K2_P1D'), I('s_branch K2_P1'), I('K2_P1D:'),
               I('v_mov_b32 v8, 1'), DS('ds_write_b32 v7, v8 offset:4', 'FW1'), W(ds='ALL')]
        it += lds_spin('K2_AW1', 4, 7, 8)
    it += [I('s_lshl_b32 s37, s21, 11'), I('s_add_u32 s37, s37, s42')]
    it.append(VM('buffer_load_dwordx4 %s, v14, s[16:19], s37 offen%s' % (vr(AQ), SC), 'Q0'))
    def kload(jj):
        return [I('s_add_i32 s36, s41, %d' % jj), I('s_max_i32 s36, s36, 0'), I('s_lshl_b32 s36, s36, 10'), I('s_add_u32 s%d, s36, s42' % (44 + jj)),
                I('s_add_u32 s36, s%d, %d' % (44 + jj, KF)),
                VM('buffer_load_dwordx4 %s, v14, s[16:19], s36 offen%s' % (vr(AK + 4 * jj), SC), 'K%d' % jj)]
    def vload(jj):
        return [I('s_add_u32 s36, s%d, %d' % (44 + jj, VF)), VM('buffer_load_dwordx4 %s, v1, s[16:19], s36 offen%s' % (vr(AV + 8 * jj), SC), 'V%d' % jj)]
    for jj in range(8, -1, -1): it += kload(jj)
    it.append(VM('buffer_load_dwordx4 %s, v14, s[16:19], s37 offen offset:1024%s' % (vr(AQ + 4), SC), 'Q1'))
    it += kload(9)
    if EARLYBAR: it.append(I('s_barrier'))
    for r in range(16):
        it.append(I('v_cmp_ge_i32 s[%d:%d], v3, %d' % (64 + 2 * r, 65 + 2 * r, 8 * (r >> 2) + (r & 3))))
    for jj in range(10):
        for r in range(4): it.append(I('v_mov_b32 v%d, 0x3f803f80' % (AV + 8 * jj + 4 + r)))
    vl = [vload(jj) for jj in list(range(8, -1, -1)) + [9]] + [[VM('buffer_load_dwordx4 %s, v13, s[4:7], s23 offen' % vr(XRES), 'XRES')]]
    def smfma(qi, jp, buf, cmode):
        jj = qi + jp
        out = [W(vm=('Q%d' % qi, 'K%d' % jj))]
        if jp == 8 or jp == 0:
            val = '0' if cmode == 'A' else 'v%d' % CN
            for r in range(16):
                m = 's[%d:%d]' % (64 + 2 * r, 65 + 2 * r)
                if jp == 8: out.append(I('v_cndmask_b32 v%d, v4, %s, %s' % (CT + r, val, m)))
                else: out.append(I('v_cndmask_b32 v%d, %s, v4, %s' % (CT + r, val, m)))
            c = vr(CT, 16)
        else:
            c = '0' if cmode == 'A' else vr(CN, 16)
        out.append(I('v_mfma_f32_32x32x16_bf16 %s, %s, %s, %s' % (vr(buf, 16), vr(AK + 4 * jj), vr(AQ + 4 * qi), c)))
        return out
    def one_pass(qi, cmode, fast, proc):
        bufs = (SA, SB)
        out = smfma(qi, 8, bufs[0], cmode)
        Ld = lab('D')
        for n, jp in enumerate(range(8, -1, -1)):
            if jp > 0:
                Ls = lab('S')
                if not fast: out += [I('s_add_i32 s36, s41, %d' % (qi + jp - 1)), I('s_cmp_lt_i32 s36, 0'), I('s_cbranch_scc1 %s' % Ls)]
                out += smfma(qi, jp - 1, bufs[(n + 1) & 1], cmode)
                if not fast: out += [I(Ls + ':')]
            out += proc(jp, bufs[n & 1])
            if jp > 0 and not fast: out += [I('s_add_i32 s36, s41, %d' % (qi + jp - 1)), I('s_cmp_lt_i32 s36, 0'), I('s_cbranch_scc1 %s' % Ld)]
        if not fast: out += [I(Ld + ':'), I('s_nop 15')]
        return out
    def body(fast):
        it = []
        swapped = set()
        if not fast:
            for g in vl: it += g
            it.append(W(vm='ALL'))
            for jj in range(10):
                for r in range(4): it.append(I('v_permlane16_swap_b32 v%d, v%d' % (AV + 8 * jj + r, AV + 8 * jj + 4 + r)))
                swapped.add(jj)
        for qi in range(2):
            pend = list(vl) if (fast and qi == 0) else []
            def procA(jp, b):
                o = [I('v_max3_f32 v5, v%d, v%d, v5' % (b + 2 * i, b + 2 * i + 1)) for i in range(8)]
                if pend: o += pend.pop(0)
                if pend and jp < 3: o += pend.pop(0)
                return o
            it += (stamp() if fast else []) + [I('v_mov_b32 v5, v4')] + one_pass(qi, 'A', fast, procA)
            for g in pend: it += g
            it += [I('v_mov_b32 v6, v5'), I('v_permlane32_swap_b32 v5, v6'), I('v_max_f32 v5, v5, v6'), I('v_sub_f32 v%d, 0, v5' % CN)]
            for r in range(1, 16): it.append(I('v_mov_b32 v%d, v%d' % (CN + r, CN)))
            def procB(jp, b):
                jj = qi + jp
                o = []
                if jj not in swapped:
                    swapped.add(jj)
                    o.append(W(vm='V%d' % jj))
                    o += [I('v_permlane16_swap_b32 v%d, v%d' % (AV + 8 * jj + r, AV + 8 * jj + 4 + r)) for r in range(4)]
                o += [I('v_exp_f32 v%d, v%d' % (b + r, b + r)) for r in range(16)]
                o += [I('v_cvt_pk_bf16_f32 v%d, v%d, v%d' % (AP + p, b + 2 * p, b + 2 * p + 1)) for p in range(8)]
                for hf in range(2):
                    o.append(I('v_mfma_f32_32x32x16_bf16 %s, %s, %s, %s' % (vr(AO, 16), vr(AV + 8 * jj + 4 * hf), vr(AP + 4 * hf), '0' if (jp == 8 and hf == 0) else vr(AO, 16))))
                return o
            it += (stamp() if fast else []) + one_pass(qi, 'B', fast, procB)
            it.append(I('v_rcp_f32 v6, v%d' % (AO + 8)))
            for r in range(8): it.append(I('v_mul_f32 v%d, v%d, v6' % (AO + r, AO + r)))
            for p in range(4): it.append(I('v_cvt_pk_bf16_f32 v%d, v%d, v%d' % (8 + p, AO + 2 * p, AO + 2 * p + 1)))
            it += [I('s_lshl_b32 s36, s21, 6'), I('s_add_u32 s36, s36, s40'), I('s_lshl_b32 s36, s36, 10'), I('s_add_u32 s36, s36, %d' % (OF + qi * 32768))]
            it.append(VM('buffer_store_dwordx4 v[8:11], v14, s[16:19], s36 offen sc1', 'OST'))
        return it
    it += [I('s_cmp_ge_u32 s21, 4'), I('s_cbranch_scc1 K2_AFAST')]
    R.run(it)
    R2 = copy.deepcopy(R); R2.a = a
    R2.run(body(False) + [I('s_branch K2_AJOIN'), I('K2_AFAST:')])
    it = body(True) + [I('K2_AJOIN:')]
    it += stamp() + [W(vm='ALL')] + stamp()
    if K1M.FUSED[0]:
        it += [I('v_mov_b32 v5, %d' % FLAG), I('v_mov_b32 v6, 1'), I('s_mov_b64 exec, 1'), DS('ds_add_rtn_u32 v7, v5, v6 offset:8', 'CNT'), W(ds='ALL'), I('s_mov_b64 exec, -1'),
               I('v_readfirstlane_b32 s36, v7'), I('s_cmp_lg_u32 s36, 3'), I('s_cbranch_scc1 K2_NSIG'),
               I('v_mov_b32 v7, 2'), I('v_mov_b32 v8, s2'), I('s_mov_b64 exec, 1'), I('buffer_store_byte v7, v8, s[32:35], 0 offen sc1'), I('s_mov_b64 exec, -1'), I('K2_NSIG:'),
               I('s_cmp_lg_u32 s20, 4'), I('s_cbranch_scc1 K2_AFIN'),
               I('s_and_b32 s36, s21, 3'), I('s_lshr_b32 s37, s21, 4'), I('s_lshr_b32 s38, s21, 2'), I('s_and_b32 s38, s38, 3'), I('s_lshl_b32 s38, s38, 3'), I('s_lshl_b32 s38, 2, s38'),
               I('v_lshrrev_b32 v7, 4, v0'), I('v_cmp_eq_u32 vcc, s36, v7'), I('v_mov_b32 v8, s38'), I('v_cndmask_b32 v8, 0, v8, vcc'),
               I('v_and_b32 v7, 1, v0'), I('v_cmp_eq_u32 vcc, s37, v7'), I('v_cndmask_b32 v8, 0, v8, vcc'), I('v_lshlrev_b32 v9, 2, v0')] + lds_spin('K2_GATE', 12, 5, 7) + [
               I('K2_POLL:'), VM('buffer_load_dword v7, v9, s[32:35], 0 offen sc1', 'PL'), W(vm='ALL'), I('v_and_b32 v7, v7, v8'), I('v_cmp_eq_u32 vcc, v7, v8'),
               I('s_cmp_eq_u64 vcc, -1'), I('s_cbranch_scc1 K2_PDONE'), I('s_sleep 8'), I('s_branch K2_POLL'), I('K2_PDONE:'),
               DS('ds_write_b32 v5, v6', 'FW'), W(ds='ALL'), I('K2_AFIN:')]
    else:
        it += [I('s_lshl_b32 s37, s21, 7'), I('s_add_u32 s37, s37, %d' % FLG), I('s_lshl_b32 s36, s40, 2'), I('s_and_b32 s36, s36, 127'), I('v_mov_b32 v5, s36'), I('v_mov_b32 v6, 1'),
               I('s_mov_b64 exec, 1'), VM('buffer_store_dword v6, v5, s[16:19], s37 offen sc1', 'AT'), I('s_mov_b64 exec, -1'),
               I('s_cmp_lg_u32 s20, 4'), I('s_cbranch_scc1 K2_AFIN'),
               I('v_mov_b32 v8, %d' % FLAG)] + (lds_spin('K2_GATE', 12, 8, 9) if GATE >= 0 else []) + [I('v_and_b32 v5, 31, v0'), I('v_lshlrev_b32 v5, 2, v5'),
               I('K2_POLL:'), VM('buffer_load_dword v7, v5, s[16:19], s37 offen sc1', 'PL'), W(vm='ALL'), I('v_cmp_ne_u32 vcc, 0, v7'),
               I('s_cmp_eq_u64 vcc, -1'), I('s_cbranch_scc1 K2_PDONE'), I('s_sleep %d' % PSLEEP), I('s_branch K2_POLL'), I('K2_PDONE:'),
               I('v_mov_b32 v5, %d' % FLAG), DS('ds_write_b32 v5, v6', 'FW'), W(ds='ALL'), I('K2_AFIN:')]
    if ODMA:
        it += [I('v_mov_b32 v8, %d' % FLAG)] + lds_spin('K2_OG', 0, 8, 9)
        it += [I('s_sub_u32 s36, s20, 4'), I('s_lshl_b32 s37, s21, 6'), I('s_lshl_b32 s38, s36, 3'), I('s_add_u32 s37, s37, s38'), I('s_lshl_b32 s37, s37, 10'), I('s_add_u32 s37, s37, %d' % OF),
               I('s_lshl_b32 s38, s36, 14'), I('s_add_u32 s38, s38, %d' % OBUF)]
        for p in range(8):
            for t in range(2):
                it += [I('s_add_u32 s39, s37, %d' % (p * 1024 + t * 32768)), I('s_add_u32 m0, s38, %d' % ((2 * p + t) * 1024)),
                       VM('buffer_load_dwordx4 v14, s[16:19], s39 offen sc1 lds', 'OD')]
        it += [W(vm='ALL'), I('s_lshl_b32 s36, s36, 2'), I('v_add_u32 v8, s36, v8'), I('v_mov_b32 v9, 1'), DS('ds_write_b32 v8, v9 offset:16', 'ORD'), W(ds='ALL')]
    it += final_reduce('A')
    R.run(it)

def build_k2(a=None):
    if a is None: a = Asm()
    prologue(a)
    a('s_cmp_ge_u32 s20, 4\ns_cbranch_scc1 K2_ATT')
    gemm(a)
    a('K2_ATT:')
    attn(a)
    a('K2_END:\nK1_END:\ns_endpgm' if K1M.FUSED[0] else 'K2_END:\ns_endpgm')
    return a.finalize()

if __name__ == '__main__':
    print(len(build_k2().splitlines()))
```

```python
from asmlib import *
from sched import *
import os, struct, copy

QF, KF, VF, HF, OF, FLG = 0, 2 << 20, 4 << 20, 6 << 20, 14 << 20, 20 << 20
WS_RANGE = 32 << 20
STAMP = int(os.environ.get('STAMP', '0'))
EXP = os.environ.get('EXP', '')
NSPREAD = int(os.environ.get('NSPREAD', '20'))
STF = os.environ.get('STF', ' sc1')
FUSED = [False]
DBGT = int(os.environ.get('DBGT', '0'))
_st = [0]
def stamp():
    if not STAMP: return []
    k = _st[0]; _st[0] += 1
    return [I('s_memtime s[%d:%d]' % (64 + 2 * k, 65 + 2 * k))]
def stamp_out(base):
    if not STAMP: return []
    out = [I('s_waitcnt lgkmcnt(0)'), I('s_lshl_b32 s54, s2, 3'), I('s_add_u32 s54, s54, s20'), I('s_lshl_b32 s54, s54, 7'), I('s_add_u32 s54, s54, %d' % base), I('v_mov_b32 v1, 0')]
    for k in range(16):
        out += [I('v_mov_b32 v2, s%d' % (64 + 2 * k)), I('buffer_store_dword v2, v1, s[16:19], s54 offen offset:%d' % (4 * k))]
    return out

CSF, ST, XR0, P1G, P1U = 0, 5120, 6144, 71680, 108672
LDS_K1 = 145536
SLOT = 12288
XR, ACC, BR = 128, 48, 24
K0 = -2.0 * 0.7978845608028654 * 1.4426950408889634
K1C = K0 * 0.044715
def f2u(f): return struct.unpack('<I', struct.pack('<f', f))[0]
def vr(b, n=4): return 'v[%d:%d]' % (b, b + n - 1)
def acc(u): return vr(ACC + 16 * u, 16)
SEL1, RS, CSA1, CT1 = 96, 100, 104, 116
SQA, SQB = 15, 16
SQ4A = 16
SEL2, CSA2, CT2 = 40, 128, 136
MF, C0, C1, IRS2, RSTD, CF = 4, 15, 16, 17, 18, 8
def t_base(d): return (P1G + SLOT, P1G + 2 * SLOT, P1G, XR0)[d]
def x_base(d): return (P1U + SLOT, P1U + 2 * SLOT, P1U, XR0 + 8192)[d]

def prologue(a):
    a('''
s_cmp_ge_u32 s2, 256
s_cbranch_scc1 K1_END
s_load_dwordx2 s[4:5], s[0:1], 0
s_load_dwordx2 s[28:29], s[0:1], 8
s_load_dwordx4 s[32:35], s[0:1], 32
s_load_dwordx2 s[16:17], s[0:1], 72
s_load_dwordx2 s[96:97], s[0:1], 16
s_load_dwordx2 s[60:61], s[0:1], 48
v_lshrrev_b32 v1, 6, v0
v_and_b32 v0, 63, v0
v_readfirstlane_b32 s20, v1
s_and_b32 s36, s2, 7
s_lshr_b32 s37, s2, 3
s_and_b32 s38, s36, 1
s_lshl_b32 s38, s38, 2
s_and_b32 s39, s37, 3
s_add_u32 s21, s38, s39
s_lshr_b32 s38, s36, 1
s_lshl_b32 s38, s38, 3
s_lshr_b32 s39, s37, 2
s_add_u32 s22, s38, s39
s_lshr_b32 s30, s22, 1
s_and_b32 s23, s22, 1
s_mul_i32 s31, s30, 112
s_mul_i32 s38, s23, 48
s_add_u32 s31, s31, s38
s_lshl_b32 s21, s21, 3
s_add_u32 s21, s21, s20
s_lshl_b32 s24, s21, 15
s_add_u32 s25, s24, 8192
s_add_u32 s26, s24, 16384
s_add_u32 s27, s24, 24576
s_lshl_b32 s47, s20, 13
s_add_u32 s47, s47, %d
''' % XR0)
    a('''
v_lshrrev_b32 v2, 3, v0
v_and_b32 v3, 7, v0
v_lshrrev_b32 v4, 4, v0
v_xor_b32 v3, v3, v4
v_lshlrev_b32 v3, 4, v3
v_lshl_add_u32 v2, v2, 10, v3
v_xor_b32 v3, 64, v2
v_and_b32 v4, 31, v0
v_lshrrev_b32 v5, 5, v0
v_lshrrev_b32 v6, 1, v4
v_and_b32 v6, 7, v6
v_xor_b32 v6, v6, v5
v_lshlrev_b32 v6, 4, v6
v_lshl_add_u32 v4, v4, 7, v6
v_add_u32 v4, s47, v4
v_xor_b32 v5, 32, v4
v_xor_b32 v6, 64, v4
v_xor_b32 v7, 0x60, v4
''')
    a('''
v_bfe_u32 v28, v0, 4, 1
v_lshrrev_b32 v29, 5, v0
v_lshlrev_b32 v29, 3, v29
v_bfe_u32 v30, v0, 2, 2
v_add_u32 v29, v29, v30
v_and_b32 v30, 3, v0
v_lshlrev_b32 v30, 3, v30
v_mul_u32_u24 v8, %d, v28
v_mul_u32_u24 v31, 96, v29
v_add3_u32 v8, v8, v31, v30
v_add_u32 v8, %d, v8
s_mul_i32 s36, s20, 1536
v_add_u32 v1, s36, v8
v_lshlrev_b32 v13, 6, v29
v_lshl_add_u32 v13, v28, 5, v13
v_add_u32 v13, v13, v30
v_lshlrev_b32 v22, 4, v0
''' % (P1U - P1G, P1G))
    for i in range(3):
        a('''
v_add_u32 v31, %d, v0
v_mul_u32_u24 v32, 43691, v31
v_lshrrev_b32 v32, 18, v32
v_mul_u32_u24 v33, 6, v32
v_sub_u32 v33, v31, v33
v_mul_u32_u24 v32, 3584, v32
v_lshl_add_u32 v%d, v33, 4, v32
''' % (64 * i, 9 + i))
    a('''
v_and_b32 v31, 15, v0
v_cmp_eq_u32 vcc, v31, v28
v_mov_b32 v96, 0x3f803f80
v_cndmask_b32 v96, 0, v96, vcc
v_mov_b32 v97, v96
v_mov_b32 v98, v96
v_mov_b32 v99, v96
v_mov_b32 v15, 0
v_mov_b32 v16, 0
s_waitcnt lgkmcnt(0)
s_mov_b32 s6, 0x200000
s_mov_b32 s7, 0x20000
s_mov_b32 s18, %d
s_mov_b32 s19, 0x20000
s_cmp_lt_u32 s20, 4
s_cselect_b32 s8, s32, s34
s_cselect_b32 s9, s33, s35
s_mov_b32 s10, 1835008
s_mov_b32 s11, 0x20000
s_mov_b32 s41, %d
s_cselect_b32 s41, s41, %d
s_and_b32 s36, s20, 3
s_mul_i32 s40, s36, 114688
s_lshl_b32 s37, s31, 1
s_add_u32 s40, s40, s37
s_mul_i32 s37, s36, 3072
s_add_u32 s41, s41, s37
''' % (WS_RANGE, P1G, P1U))

def prologue2(a):
    a('''
s_mov_b32 s15, 0x20000
s_cmp_ge_u32 s20, 4
s_cselect_b32 s46, 1, 0
s_cmp_lt_u32 s20, 4
s_cbranch_scc1 K1_P2_QKV
s_cmp_eq_u32 s23, 0
s_cbranch_scc1 K1_P2_QKV
s_cmp_lt_u32 s20, 6
s_cselect_b32 s12, s32, s34
s_cselect_b32 s13, s33, s35
s_cselect_b32 s37, 0, 4224
s_mov_b32 s14, 1835008
v_lshrrev_b32 v31, 1, v0
v_mul_u32_u24 v31, 3584, v31
v_and_b32 v12, 1, v0
v_lshl_add_u32 v12, v12, 4, v31
s_and_b32 s36, s20, 1
s_mul_i32 s42, s36, 229376
s_mul_i32 s38, s30, 224
s_add_u32 s42, s42, s38
s_add_u32 s42, s42, 192
s_mov_b32 s43, 458752
s_mov_b32 s44, 114688
s_lshl_b32 s36, s36, 11
s_add_u32 s45, s37, s36
s_branch K1_P2_DONE
K1_P2_QKV:
s_mov_b32 s12, s28
s_mov_b32 s13, s29
s_mov_b32 s14, 1572864
v_lshrrev_b32 v31, 2, v0
v_mul_u32_u24 v31, 3072, v31
v_and_b32 v12, 3, v0
v_lshl_add_u32 v12, v12, 4, v31
s_and_b32 s36, s20, 3
s_mul_i32 s42, s36, 98304
s_lshl_b32 s37, s22, 6
s_lshl_b32 s38, s30, 6
s_add_u32 s38, s38, 2048
s_lshl_b32 s45, s36, 11
s_cmp_lt_u32 s20, 4
s_cselect_b32 s37, s37, s38
s_add_u32 s42, s42, s37
s_mov_b32 s43, 393216
s_mov_b32 s44, 49152
K1_P2_DONE:
s_cmp_eq_u32 s23, 0
s_cbranch_scc1 K1_XA
v_mul_u32_u24 v14, 4224, v28
v_lshl_add_u32 v14, v29, 5, v14
v_add_u32 v14, v14, v30
s_branch K1_XB
K1_XA:
v_mov_b32 v14, v13
K1_XB:
v_add_u32 v23, %d, v14
v_add_u32 v14, %d, v14
v_add_u32 v21, %d, v13
v_add_u32 v13, %d, v13
''' % (XR0 + 8192, P1U, XR0, P1G))
    a('''
s_mul_i32 s48, s21, 112
s_lshr_b32 s36, s31, 4
s_add_u32 s48, s48, s36
s_lshl_b32 s48, s48, 10
s_add_u32 s48, s48, %d
s_and_b32 s36, s22, 15
s_lshl_b32 s36, s36, 7
s_add_u32 s36, s36, s21
s_lshl_b32 s36, s36, 10
s_cmp_lt_u32 s22, 16
s_cselect_b32 s37, %d, %d
s_cselect_b32 s51, 0x%08x, 0x3f800000
s_add_u32 s49, s36, s37
s_lshl_b32 s36, s30, 7
s_add_u32 s36, s36, s21
s_lshl_b32 s36, s36, 10
s_add_u32 s36, s36, %d
s_add_u32 s37, s48, 3072
s_cmp_eq_u32 s23, 0
s_cselect_b32 s50, s36, s37
''' % (HF, QF, KF, f2u(0.25 * 1.4426950408889634), VF))

def w1_dma(d):
    out = [I('s_add_u32 s55, s40, %d' % (d * 128 * 3584))]
    for i in range(3):
        out.append(I('s_add_u32 m0, s41, %d' % ((d % 3) * SLOT + i * 1024)))
        out.append(VM('buffer_load_dwordx4 v%d, s[8:11], s55 offen lds' % (9 + i), 'W1_%d' % d))
    return out

def p2_dma(d):
    out = [I('s_mul_i32 s52, s43, %d' % d), I('s_add_u32 s52, s52, s42'), I('s_add_u32 s53, s52, s44'),
           I('s_cmp_eq_u32 s46, 0'), I('s_mov_b32 s56, %d' % t_base(d)), I('s_cselect_b32 s56, s56, %d' % x_base(d)), I('s_add_u32 s56, s56, s45')]
    for i in range(2):
        out.append(I('s_add_u32 m0, s56, %d' % (i * 1024)))
        out.append(VM('buffer_load_dwordx4 v12, s[12:15], s%d offen lds' % (52 + i), 'P2_%d' % d))
    return out

def x_dma(c):
    out = []
    for j in range(4):
        out.append(I('s_add_u32 m0, s47, %d' % ((c & 1) * 4096 + j * 1024 - c * 128)))
        out.append(VM('buffer_load_dwordx4 v%d, s[4:7], s%d offen offset:%d lds' % (2 + (j & 1), 24 + j, c * 128), 'X%d' % c))
    return out

def stage(c):
    out = [W(vm='X%d' % c)]
    for s in range(4):
        out.append(DS('ds_read_b128 %s, v%d offset:%d' % (vr(XR + 16 * c + 4 * s), 4 + s, (c & 1) * 4096), 'XF%d' % c))
    return out

B1 = (24, 36)
def tr1(ks, units=(0, 1, 2)):
    out = []
    d, k = ks >> 3, ks & 7
    for u in units:
        b = B1[ks & 1] + 4 * u
        for sec in range(2):
            out.append(DS('ds_read_b64_tr_b16 %s, v8 offset:%d' % (vr(b + 2 * sec, 2), (d % 3) * SLOT + k * 1536 + u * 32 + sec * 384), 'T1_%d_%d' % (ks, u)))
    return out

def cs1_read(d):
    return [DS('ds_read_b64_tr_b16 %s, v1 offset:%d' % (vr(CT1 + 4 * u + 2 * sec, 2), (d % 3) * SLOT + u * 32 + sec * 384), 'C1_%d' % d) for u in range(3) for sec in range(2)]
def cs1_mma(d):
    return [W(ds='C1_%d' % d)] + [I('v_mfma_f32_16x16x32_bf16 %s, %s, %s, %s' % (vr(CSA1 + 4 * u), vr(SEL1), vr(CT1 + 4 * u), '0' if d == 0 else vr(CSA1 + 4 * u))) for u in range(3)]

def tr2_addr(d, k, var, unit, sec):
    if unit == 0:
        reg, base = (13, t_base(d) - P1G) if d < 3 else (21, 0)
        return reg, base + k * 1024 + sec * 256
    reg, base = (14, x_base(d) - P1U) if d < 3 else (23, 0)
    return reg, base + (k * 1024 + sec * 256 if var == 0 else k * 512 + sec * 128)
def tr2(ks, var, unit):
    d, k = ks >> 3, ks & 7
    b = BR + 8 * (ks & 1) + 4 * unit
    out = []
    for sec in range(2):
        reg, off = tr2_addr(d, k, var, unit, sec)
        out.append(DS('ds_read_b64_tr_b16 %s, v%d offset:%d' % (vr(b + 2 * sec, 2), reg, off), 'T2_%d_%d' % (ks, unit)))
    return out
def cs2(d, var):
    out = []
    for unit in range(2):
        for sec in range(2):
            reg, off = tr2_addr(d, 0, var, unit, sec)
            if sec == 0: out.append(I('v_add_u32 v%d, s%d, v%d' % (19 + unit, 57 + (unit if var else 0), reg)))
            out.append(DS('ds_read_b64_tr_b16 %s, v%d offset:%d' % (vr(CT2 + 4 * unit + 2 * sec, 2), 19 + unit, off), 'C2_%d' % d))
    mm = [W(ds='C2_%d' % d)] + [I('v_mfma_f32_16x16x32_bf16 %s, %s, %s, %s' % (vr(CSA2 + 4 * u), vr(SEL2), vr(CT2 + 4 * u), '0' if d == 0 else vr(CSA2 + 4 * u))) for u in range(2)]
    return out, mm

def cs_publish(units, csa, tmp=(1, 2, 3)):
    ta, t2, t3 = tmp
    out = [I('s_lshr_b32 s59, s20, 2'), I('s_lshl_b32 s59, s59, 9'), I('s_and_b32 s56, s20, 3'), I('s_lshl_b32 s56, s56, 2'), I('s_add_u32 s59, s59, s56'),
           I('v_add_u32 v%d, s59, v22' % ta), I('s_mov_b64 exec, 0xffff')]
    for n, u in enumerate(units):
        for k in range(2):
            c = csa + 4 * n + k
            out += [I('v_cvt_pk_bf16_f32 v%d, v%d, v%d' % (t2, c, c)), I('v_lshlrev_b32 v%d, 16, v%d' % (t2, t2)), I('v_sub_f32 v%d, v%d, v%d' % (t3, c, t2)),
                    I('v_cvt_pk_bf16_f32 v%d, v%d, v%d' % (c, c, t3)),
                    DS('ds_write_b32 v%d, v%d offset:%d' % (ta, c, CSF + u * 1024 + 256 * k), 'CSA')]
    out += [I('s_mov_b64 exec, -1')]
    return out

def mean_fix(u, tag, swap=False):
    A = [DS('ds_read_b128 %s, v22 offset:%d' % (vr(CF), CSF + u * 1024), tag), W(ds=tag)]
    if swap: A.append(I('v_mfma_f32_32x32x16_bf16 %s, %s, %s, %s' % (acc(u), vr(MF), vr(CF), acc(u))))
    else: A.append(I('v_mfma_f32_32x32x16_bf16 %s, %s, %s, %s' % (acc(u), vr(CF), vr(MF), acc(u))))
    return A

def g_epilogue(u, soff_expr, tmp=(1, 2, 3, 12)):
    A = ACC + 16 * u
    out = []
    if 'pk' in EXP:
        for q in range(2):
            g = A + 4 * q; uu = A + 8 + 4 * q; t = 8
            p2 = lambda r: 'v[%d:%d]' % (r, r + 1)
            for i in (0, 2): out.append(I('v_pk_mul_f32 %s, %s, %s' % (p2(t + i), p2(g + i), p2(g + i))))
            for i in (0, 2): out.append(I('v_pk_fma_f32 %s, %s, v[46:47], v[44:45]' % (p2(t + i), p2(t + i))))
            for i in (0, 2): out.append(I('v_pk_mul_f32 %s, %s, %s' % (p2(t + i), p2(t + i), p2(g + i))))
            for i in range(4): out.append(I('v_exp_f32 v%d, v%d' % (t + i, t + i)))
            for i in (0, 2): out.append(I('v_pk_mul_f32 %s, %s, %s' % (p2(g + i), p2(g + i), p2(uu + i))))
            for i in (0, 2): out.append(I('v_pk_fma_f32 %s, %s, v[2:3], v[2:3]' % (p2(t + i), p2(t + i))))
            for i in range(4): out.append(I('v_rcp_f32 v%d, v%d' % (t + i, t + i)))
            for i in (0, 2): out.append(I('v_pk_mul_f32 %s, %s, %s' % (p2(g + i), p2(g + i), p2(t + i))))
            out.append(I('v_cvt_pk_bf16_f32 v%d, v%d, v%d' % (A + 8 + 2 * q, g, g + 1)))
            out.append(I('v_cvt_pk_bf16_f32 v%d, v%d, v%d' % (A + 8 + 2 * q + 1, g + 2, g + 3)))
    for q in range(2):
        if 'pk' in EXP: break
        g = [A + 4 * q + i for i in range(4)]
        uu = [A + 8 + 4 * q + i for i in range(4)]
        for i in range(4): out.append(I('v_mul_f32 v%d, v%d, v%d' % (tmp[i], g[i], g[i])))
        for i in range(4): out.append(I('v_fma_f32 v%d, v%d, v%d, v%d' % (tmp[i], tmp[i], C1, C0)))
        for i in range(4): out.append(I('v_mul_f32 v%d, v%d, v%d' % (tmp[i], tmp[i], g[i])))
        for i in range(4): out.append(I('v_exp_f32 v%d, v%d' % (tmp[i], tmp[i])))
        for i in range(4): out.append(I('v_mul_f32 v%d, v%d, v%d' % (g[i], g[i], uu[i])))
        for i in range(4): out.append(I('v_fma_f32 v%d, v%d, v%d, v%d' % (tmp[i], tmp[i], IRS2, IRS2)))
        for i in range(4): out.append(I('v_rcp_f32 v%d, v%d' % (tmp[i], tmp[i])))
        for i in range(4): out.append(I('v_mul_f32 v%d, v%d, v%d' % (g[i], g[i], tmp[i])))
        out.append(I('v_cvt_pk_bf16_f32 v%d, v%d, v%d' % (A + 8 + 2 * q, g[0], g[1])))
        out.append(I('v_cvt_pk_bf16_f32 v%d, v%d, v%d' % (A + 8 + 2 * q + 1, g[2], g[3])))
    sreg, add = soff_expr
    out.append(I('s_add_u32 s54, s%d, %d' % (sreg, add)))
    out.append(VM('buffer_store_dwordx4 %s, v22, s[16:19], s54 offen%s' % (vr(A + 8), STF), 'ST'))
    return out

def t_epilogue():
    A = ACC + 48
    o = XR + 32
    out = [I('v_mul_f32 v1, s51, v%d' % RSTD)]
    for r in range(16): out.append(I('v_mul_f32 v%d, v%d, v1' % (A + r, A + r)))
    for p in range(8): out.append(I('v_cvt_pk_bf16_f32 v%d, v%d, v%d' % (o + p, A + 2 * p, A + 2 * p + 1)))
    out.append(I('s_add_u32 s54, s49, 65536'))
    out.append(VM('buffer_store_dwordx4 %s, v22, s[16:19], s49 offen%s' % (vr(o), STF), 'ST'))
    out.append(VM('buffer_store_dwordx4 %s, v22, s[16:19], s54 offen%s' % (vr(o + 4), STF), 'ST'))
    return out

def v_pre():
    rs = XR + 48
    out = [I('v_lshrrev_b32 v19, 5, v0'), I('v_lshlrev_b32 v20, 4, v19'), I('s_lshl_b32 s59, s20, 7'), I('v_add_u32 v20, s59, v20')]
    for q in range(4):
        out.append(DS('ds_read_b128 %s, v20 offset:%d' % (vr(rs + 4 * q), ST + q * 32), 'VE'))
    out += [I('v_bfe_u32 v152, v0, 4, 1'), I('v_lshlrev_b32 v152, 16, v152'), I('v_lshl_add_u32 v152, v19, 8, v152'), I('v_and_b32 v19, 15, v0'), I('v_lshl_add_u32 v152, v19, 4, v152')]
    return out
def v_epilogue():
    A = ACC + 64
    rs, o = XR + 48, XR + 64
    out = [W(ds='VE')]
    for r in range(16): out.append(I('v_mul_f32 v%d, v%d, v%d' % (A + r, A + r, rs + r)))
    for p in range(8): out.append(I('v_cvt_pk_bf16_f32 v%d, v%d, v%d' % (o + p, A + 2 * p, A + 2 * p + 1)))
    out.append(VM('buffer_store_dwordx4 %s, v152, s[16:19], s50 offen%s' % (vr(o), STF), 'ST'))
    out.append(VM('buffer_store_dwordx4 %s, v152, s[16:19], s50 offen offset:512%s' % (vr(o + 4), STF), 'ST'))
    return out

def rne_bf16(dst, src):
    return [I('v_cvt_pk_bf16_f32 v%d, v%d, v%d' % (dst, src, src)), I('v_lshlrev_b32 v%d, 16, v%d' % (dst, dst))]

def stats_final():
    out = []
    if 'sqh' in EXP:
        out += [I('v_and_b32 v2, 3, v0'), I('v_cmp_eq_u32 vcc, 1, v2'), I('v_cndmask_b32 v16, v16, v17, vcc'), I('v_cmp_eq_u32 vcc, 2, v2'), I('v_cndmask_b32 v16, v16, v18, vcc'),
                I('v_cmp_eq_u32 vcc, 3, v2'), I('v_cndmask_b32 v16, v16, v19, vcc')]
    out += ([I('v_mov_b32 v20, v19')] if 'sq4' in EXP else []) + [I('v_and_b32 v19, 15, v0'), I('v_lshlrev_b32 v19, 2, v19'),
           DS('ds_bpermute_b32 v2, v19, v%d' % RS, 'BP'), DS('ds_bpermute_b32 v3, v19, v%d' % (RS + 1), 'BP'),
           ] + ([I('v_and_b32 v15, 3, v0'), I('v_cmp_eq_u32 vcc, 1, v15'), I('v_cndmask_b32 v16, v16, v17, vcc'), I('v_cmp_eq_u32 vcc, 2, v15'), I('v_cndmask_b32 v16, v16, v18, vcc'),
           I('v_cmp_eq_u32 vcc, 3, v15'), I('v_cndmask_b32 v16, v16, v20, vcc')] if 'sq4' in EXP else [I('v_add_f32 v16, v15, v16')]) + [I('v_mov_b32 v17, v16'), I('v_permlane32_swap_b32 v16, v17'), I('v_add_f32 v16, v16, v17'),
           I('v_and_b32 v19, 16, v0'), I('v_cmp_ne_u32 vcc, 0, v19'), W(ds='BP'), I('v_cndmask_b32 v15, v2, v3, vcc'),
           I('v_mul_f32 v15, 0x3b000000, v15'), I('v_mul_f32 v16, 0x3b000000, v16'),
           I('v_fma_f32 v16, -v15, v15, v16'), I('v_max_f32 v16, 0, v16')]
    out += rne_bf16(16, 16)
    out += [I('v_add_f32 v16, 0x%08x, v16' % f2u(1e-5))]
    out += rne_bf16(16, 16)
    out += [I('v_sqrt_f32 v16, v16')]
    out += rne_bf16(16, 16)
    out += [I('v_sub_f32 v15, 0, v15'), I('v_cvt_pk_bf16_f32 v%d, v15, v15' % MF),
            I('v_mov_b32 v%d, v%d' % (MF + 1, MF)), I('v_mov_b32 v%d, v%d' % (MF + 2, MF)), I('v_mov_b32 v%d, v%d' % (MF + 3, MF)),
            I('v_rcp_f32 v%d, v16' % RSTD), I('v_mul_f32 v%d, v16, v16' % IRS2),
            I('v_mul_f32 v%d, 0x%08x, v%d' % (C0, f2u(K0), RSTD)), I('v_mul_f32 v19, v%d, v%d' % (RSTD, RSTD)),
            I('v_mul_f32 v19, v19, v%d' % RSTD), I('v_mul_f32 v%d, 0x%08x, v19' % (C1, f2u(K1C)))]
    out += [I('v_and_b32 v19, 31, v0'), I('v_lshlrev_b32 v19, 2, v19'), I('s_lshl_b32 s54, s20, 7'), I('v_add_u32 v19, s54, v19'),
            DS('ds_write_b32 v19, v%d offset:%d' % (RSTD, ST), 'STW')]
    return out

def groups(items):
    g, cur = [], []
    for x in items:
        cur.append(x)
        if x.q == 'vm': g.append(cur); cur = []
    assert not cur
    return g

def touch():
    if 'nowpf' in EXP: return []
    out = [I('s_lshl_b32 s59, s2, 3'), I('s_add_u32 s59, s59, s20'), I('s_lshl_b32 s59, s59, 10')]
    for (lo, sz) in ((32, 1835008), (34, 1835008), (28, 1572864)):
        out += [I('s_mov_b32 s100, s%d' % lo), I('s_mov_b32 s101, s%d' % (lo + 1))] if False else []
        out += [I('s_mov_b32 s88, s%d' % lo), I('s_mov_b32 s89, s%d' % (lo + 1)), I('s_mov_b32 s90, %d' % sz), I('s_mov_b32 s91, 0x20000'),
                VM('buffer_load_dwordx4 v[252:255], v22, s[88:91], s59 offen', 'PF')]
    return out
def touch_code(tag, first_kb, nwaves, areg=31):
    if 'notouch' in EXP or 'nocode' in EXP: return []
    L = 'K1_TC%s' % tag
    return [I('s_cmp_ge_u32 s20, %d' % nwaves), I('s_cbranch_scc1 %s' % L),
            I('s_getpc_b64 s[52:53]'), I(L + 'P:'), I('s_sub_u32 s52, s52, %sP-k1_kernel' % L), I('s_subb_u32 s53, s53, 0'),
            I('s_lshl_b32 s56, s20, 13'), I('s_add_u32 s56, s56, %d' % (first_kb * 1024)), I('v_lshl_add_u32 v%d, v0, 7, s56' % areg),
            I('v_min_u32 v%d, CODE_END-k1_kernel-4, v%d' % (areg, areg)), I('global_load_dword v%d, v%d, s[52:53]' % (255 if tag == 'A' else 47, areg)), I(L + ':')]

def touch_tlb():
    if 'tlb' not in EXP: return []
    return [I('s_cmp_lg_u32 s20, 5'), I('s_cbranch_scc1 K1_TLB1'),
            I('v_lshlrev_b32 v31, 19, v0'), I('buffer_load_dword v254, v31, s[16:19], 0 offen'), I('K1_TLB1:'),
            I('s_cmp_lg_u32 s20, 6'), I('s_cbranch_scc1 K1_TLB2'),
            I('s_load_dwordx2 s[60:61], s[0:1], 56'), I('s_mov_b32 s62, 0x200000'), I('s_mov_b32 s63, 0x20000'), I('v_lshlrev_b32 v31, 15, v0'), I('s_waitcnt lgkmcnt(0)'),
            I('buffer_load_dword v254, v31, s[60:63], 0 offen'), I('K1_TLB2:')]

def build_k1():
    a = Asm()
    prologue(a)
    R = Resolver(a)
    pre = ([I('s_memrealtime s[92:93]')] if (STAMP or DBGT) else []) + stamp() + w1_dma(0) + x_dma(0) + x_dma(1)
    R.run(pre)
    prologue2(a)
    R.run(touch_code('A', 0, 3) + touch_tlb())
    tch = groups(touch())
    if tch and 'wpfl' not in EXP: R.run(touch())
    pre = [] if FUSED[0] else [I('s_or_b32 s52, s2, s20'), I('s_cmp_lg_u32 s52, 0'), I('s_cbranch_scc1 K1_NOZ'),
           I('v_mov_b32 v32, 0'), I('v_mov_b32 v33, 0'), I('v_mov_b32 v34, 0'), I('v_mov_b32 v35, 0'), I('s_mov_b32 s52, %d' % FLG)]
    if not FUSED[0]:
        pre += [I('buffer_store_dwordx4 v[32:35], v22, s[16:19], s52 offen offset:%d' % (1024 * i)) for i in range(4)]
        pre += [I('s_waitcnt vmcnt(0)'), I('K1_NOZ:')]
    if 'prio' in EXP: pre += [I('s_cmp_lt_u32 s20, 4'), I('s_cbranch_scc1 K1_NP'), I('s_setprio 1'), I('K1_NP:')]
    pre += stamp() + [W(vm='W1_0'), I('s_barrier')] + stamp()
    pre += stage(0) + tr1(0)
    R.run(pre)
    stats_final_items = stats_final()
    for ks in range(32):
        c, d = ks >> 2, ks >> 3
        it = []
        b = B1[ks & 1]; x = XR + 4 * ks
        vmg = []
        if (ks & 7) == 7 and ks < 31:
            it += cs1_mma(d)
            it += stamp() + [W(vm='W1_%d' % (d + 1), ds=['T1_%d_%d' % (ks, u) for u in range(3)]), I('s_barrier')]
            vmg += groups(w1_dma(3)) if d == 0 else groups(p2_dma(d - 1))
        if (ks & 3) == 3 and c + 3 <= 7:
            g = groups(x_dma(c + 3)); g[0] = [W(ds='XF%d' % (c + 1))] + g[0]; vmg += g
        if ks == 0: vmg += groups(w1_dma(1))
        if tch and ks < 3 and 'wpfl' in EXP: vmg.append(tch[ks])
        if ks == 1: vmg += groups(x_dma(2))
        if ks == 2: vmg += groups(w1_dma(2))
        def stat(k2):
            x2 = XR + 4 * k2
            sq = []
            for j in range(4):
                t = 17 + 2 * (j & 1)
                sq.append([I('v_lshlrev_b32 v%d, 16, v%d' % (t, x2 + j)), I('v_and_b32 v%d, 0xffff0000, v%d' % (t + 1, x2 + j)),
                           I('v_fmac_f32 v%d, v%d, v%d' % (SQA, t, t)), I('v_fmac_f32 v%d, v%d, v%d' % (SQB, t + 1, t + 1))])
            rs = I('v_mfma_f32_16x16x32_bf16 %s, %s, %s, %s' % (vr(RS), vr(SEL1), vr(x2), '0' if k2 == 0 else vr(RS)))
            if 'sqh' in EXP:
                v = lambda r: [I('v_lshlrev_b32 v20, 16, v%d' % r), I('v_fmac_f32 v15, v20, v20'), I('v_and_b32 v20, 0xffff0000, v%d' % r), I('v_fmac_f32 v15, v20, v20')]
                return [[W(ds='XF%d' % (k2 >> 2)), I('v_mfma_f32_4x4x4_16b_bf16 %s, %s, %s, %s' % (vr(SQ4A), vr(x2, 2), vr(x2, 2), '0' if k2 == 0 else vr(SQ4A)))] + v(x2 + 2)[:2],
                        v(x2 + 2)[2:] + [rs] + v(x2 + 3)[:2], v(x2 + 3)[2:]]
            if 'sq4' in EXP:
                return [[W(ds='XF%d' % (k2 >> 2)), I('v_mfma_f32_4x4x4_16b_bf16 %s, %s, %s, %s' % (vr(SQ4A), vr(x2, 2), vr(x2, 2), '0' if k2 == 0 else vr(SQ4A)))], [rs],
                        [I('v_mfma_f32_4x4x4_16b_bf16 %s, %s, %s, %s' % (vr(SQ4A), vr(x2 + 2, 2), vr(x2 + 2, 2), vr(SQ4A)))]]
            return [[W(ds='XF%d' % (k2 >> 2))] + sq[0] + [rs], sq[1] + sq[2], sq[3]]
        if ks < 26: side = stat(ks)
        elif ks < 29:
            a1, a2 = stat(26 + 2 * (ks - 26)), stat(27 + 2 * (ks - 26))
            side = [a1[0] + a1[1], a1[2] + a2[0], a2[1] + a2[2]]
        else:
            sf = stats_final_items
            n = len(sf); k3 = ks - 29
            part = sf[n * k3 // 3: n * (k3 + 1) // 3]
            side = [part[:len(part) // 3], part[len(part) // 3: 2 * len(part) // 3], part[2 * len(part) // 3:]]
        for u in range(3):
            if 'mw' in EXP: it += [W(ds=['T1_%d_%d' % (ks, uu) for uu in range(3)] + ['XF%d' % c])]
            else: it += [W(ds=('T1_%d_%d' % (ks, u), 'XF%d' % c))]
            it.append(I('v_mfma_f32_32x32x16_bf16 %s, %s, %s, %s' % (acc(u), vr(b + 4 * u), vr(x), '0' if ks == 0 else acc(u))))
            if ks < 31: it += tr1(ks + 1, (u,))
            it += side[u]
            if u < len(vmg): it += vmg[u]
        for g in vmg[3:]: it += g
        if (ks & 7) == 5: it += cs1_read(d)
        if (ks & 3) == 1 and c < 6: it += stage(c + 1)
        if ks == 24: it += stage(7)
        R.run(it)
    mid = stamp() + cs1_mma(3) + cs_publish((0, 1, 2), CSA1) + [I('v_mov_b32 v%d, v%d' % (SEL2 + r, SEL1)) for r in range(4)]
    mid += [I('s_lshl_b32 s57, s20, 10'), I('s_lshl_b32 s58, s20, 9')]
    mid += [W(vm=('P2_0', 'P2_1'), ds='ALL'), I('s_barrier')] + stamp() + p2_dma(2) + p2_dma(3)
    late = []
    if 'nopf' not in EXP:
        late += [I('s_mov_b32 s62, 1835008'), I('s_mov_b32 s63, 0x20000'), I('s_mov_b32 s98, 0x80000'), I('s_mov_b32 s99, 0x20000'),
                 I('s_lshl_b32 s59, s2, 3'), I('s_add_u32 s59, s59, s20'), I('s_lshl_b32 s59, s59, 10'),
                 VM('buffer_load_dwordx4 v[44:47], v22, s[60:63], s59 offen', 'PF'), VM('buffer_load_dwordx4 v[44:47], v22, s[96:99], s59 offen', 'PF')]
    if 'midpf' in EXP:
        mid += touch_code('B', 16, 4) + late; late = []
    R.run(mid)
    st_save = _st[0]
    a('s_cmp_eq_u32 s23, 0\ns_cbranch_scc0 K1_VARB')
    for var in range(2):
        if var == 1: a('K1_VARB:')
        RR = copy.deepcopy(R); RR.a = a; _st[0] = st_save
        main = tr2(0, var, 0) + tr2(0, var, 1)
        body = []
        for ks in range(32):
            b = BR + 8 * (ks & 1); x = XR + 4 * ks
            if ks == 15: body.append([W(vm=('P2_2', 'P2_3')), I('s_barrier')])
            body.append([W(ds=('T2_%d_0' % ks, 'T2_%d_1' % ks) if 'mw' in EXP else 'T2_%d_0' % ks), I('v_mfma_f32_32x32x16_bf16 %s, %s, %s, %s' % (acc(3), vr(b), vr(x), '0' if ks == 0 else acc(3)))])
            if ks < 31: body.append(tr2(ks + 1, var, 0))
            if var == 0: mf = I('v_mfma_f32_32x32x16_bf16 %s, %s, %s, %s' % (acc(4), vr(x), vr(b + 4), '0' if ks == 0 else acc(4)))
            else: mf = I('v_mfma_f32_32x32x16_bf16 %s, %s, %s, %s' % (acc(4), vr(b + 4), vr(x), '0' if ks == 0 else acc(4)))
            body.append([W(ds='T2_%d_1' % ks), mf])
            if ks < 31: body.append(tr2(ks + 1, var, 1))
            for dd, kk in enumerate((5, 8, 16, 18)):
                if ks == kk: body.append(cs2(dd, var)[0])
                if ks == kk + 1: body.append(cs2(dd, var)[1])
            if ks == 2 and late: body.append(late)
            if ks == 3 and late: body.append(touch_code('B%d' % var, 16, 4, 19))
            if ks == 20: body.append(cs_publish((3, 4), CSA2, tmp=(19, 20, 144)))
            if ks == 23: body.append([W(ds='CSA'), I('s_barrier')])
            if ks == 25: body.append([DS('ds_read_b128 %s, v22 offset:%d' % (vr(144 + 4 * n), CSF + (3 + n) * 1024), 'CFF') for n in range(2)] + (v_pre() if var == 0 else []))
        side = []
        for u in range(3): side += mean_fix(u, 'MF%d' % u)
        if 'pk' in EXP: side += [W(vm='PF'), I('v_mov_b32 v44, v%d' % C0), I('v_mov_b32 v45, v%d' % C0), I('v_mov_b32 v46, v%d' % C1), I('v_mov_b32 v47, v%d' % C1), I('v_mov_b32 v2, v%d' % IRS2), I('v_mov_b32 v3, v%d' % IRS2)]
        for u in range(3): side += g_epilogue(u, (48, u * 1024))
        merged = merge(body, side)
        flat = []
        for x in merged:
            if isinstance(x, list): flat += x
            else: flat.append(x)
        RR.run(main + flat)
        fin = stamp() + stamp() + [W(ds='CFF'), I('v_mfma_f32_32x32x16_bf16 %s, %s, %s, %s' % (acc(3), vr(144), vr(MF), acc(3)))]
        if var == 0: fin.append(I('v_mfma_f32_32x32x16_bf16 %s, %s, %s, %s' % (acc(4), vr(MF), vr(148), acc(4))))
        else: fin.append(I('v_mfma_f32_32x32x16_bf16 %s, %s, %s, %s' % (acc(4), vr(148), vr(MF), acc(4))))
        fin += t_epilogue()
        if var == 0: fin += v_epilogue()
        else: fin += g_epilogue(4, (50, 0))
        fin += stamp() + ([I('s_waitcnt vmcnt(0)')] if STAMP else []) + stamp() + ([I('s_memrealtime s[94:95]')] if STAMP else []) + stamp_out(16 << 20)
        if DBGT:
            fin += [I('s_waitcnt vmcnt(0)'), I('s_memrealtime s[94:95]'), I('s_waitcnt lgkmcnt(0)'), I('s_lshl_b32 s54, s2, 3'), I('s_add_u32 s54, s54, s20'), I('s_lshl_b32 s54, s54, 3'), I('s_add_u32 s54, s54, %d' % (24 << 20)),
                    I('v_mov_b32 v1, 0'), I('v_mov_b32 v2, s92'), I('v_mov_b32 v3, s94'), I('buffer_store_dwordx2 v[2:3], v1, s[16:19], s54 offen')]
        RR.run(fin)
        if FUSED[0]: a('s_branch PHASE2' if var == 0 else 's_nop 0')
        else: a('s_endpgm' if var == 0 else 'K1_END:\ns_endpgm')
    if FUSED[0]: return a
    return a.finalize()

if __name__ == '__main__':
    print(len(build_k1().splitlines()))
```

```python
from asmlib import *
from sched import *
from k1 import QF, KF, VF, HF, OF, FLG, WS_RANGE, vr, f2u
import copy, os
import k1 as K1M
STAMP = int(os.environ.get('STAMP', '0'))
EARLYBAR = int(os.environ.get('EARLYBAR', '0'))
FLAGPOS = int(os.environ.get('FLAGPOS', '27'))
_st = [0]
SB0 = 96
def stamp():
    if not STAMP: return []
    k = _st[0]; _st[0] += 1
    return [I('s_memrealtime s[96:97]' if STAMP == 2 else 's_memtime s[96:97]'), I('s_waitcnt lgkmcnt(0)'), I('v_mov_b32 v%d, s96' % (240 + k))]
def stamp_out(base):
    if not STAMP: return []
    out = [I('s_lshl_b32 s54, s2, 3'), I('s_add_u32 s54, s54, s20'), I('s_lshl_b32 s54, s54, 7'), I('s_add_u32 s54, s54, %d' % base), I('v_mov_b32 v1, 0')]
    for k in range(16):
        out += [I('buffer_store_dword v%d, v1, s[16:19], s54 offen offset:%d' % (240 + k, 4 * k))]
    return out

DEPTH = int(os.environ.get('DEPTH', '8'))
P1SLEEP = int(os.environ.get('P1SLEEP', '16'))
GATE = int(os.environ.get('GATE', '22'))
STS = eval(os.environ.get('STS', '(4, 12, 20, 28)'))
PSLEEP = int(os.environ.get('PSLEEP', '1'))
RSZ = max(17408, DEPTH * 2048 + 1024)
FLAG = 4 * RSZ
OBUF = FLAG + 256
ODMA = int(os.environ.get('ODMA', '0'))
LDS_K2 = OBUF + (65536 if ODMA else 0)
NEG_BIG = 0xf149f2ca
GA = 16; GB = GA + 8 * DEPTH; GACC = GB + 16
AQ, AK, AV, SA, SB, CN, CT, AP, AO = 16, 24, 64, 144, 160, 176, 192, 208, 216
XRES = 232

def prologue(a):
    if K1M.FUSED[0]:
        a('''
PHASE2:
s_waitcnt vmcnt(0) lgkmcnt(0)
v_lshl_add_u32 v0, s20, 6, v0
''')
    else:
        a('''
s_cmp_ge_u32 s2, 256
s_cbranch_scc1 K2_END
''')
    a('''
s_memrealtime s[98:99]
s_load_dwordx2 s[4:5], s[0:1], 0
s_load_dwordx2 s[8:9], s[0:1], 16
s_load_dwordx2 s[12:13], s[0:1], 48
s_load_dwordx4 s[24:27], s[0:1], 56
s_load_dwordx2 s[16:17], s[0:1], 72
v_mov_b32 v15, v0
v_lshrrev_b32 v1, 6, v0
v_and_b32 v0, 63, v0
v_readfirstlane_b32 s20, v1
s_and_b32 s36, s2, 7
s_lshr_b32 s37, s2, 3
s_lshl_b32 s21, s36, 2
s_lshr_b32 s38, s37, 3
s_add_u32 s21, s21, s38
s_and_b32 s22, s37, 7
v_lshlrev_b32 v14, 4, v0
v_lshrrev_b32 v1, 3, v15
v_and_b32 v2, 7, v15
v_lshlrev_b32 v13, 10, v1
v_lshl_add_u32 v13, v2, 4, v13
v_mul_u32_u24 v12, 272, v1
v_lshl_add_u32 v12, v2, 5, v12
s_lshl_b32 s23, s21, 16
s_lshl_b32 s36, s22, 7
s_add_u32 s23, s23, s36
v_mov_b32 v1, 0
v_mov_b32 v2, %d
v_and_b32 v3, 7, v0
v_lshl_add_u32 v2, v3, 2, v2
ds_write_b32 v2, v1
s_waitcnt lgkmcnt(0)
s_mov_b32 s6, 0x200000
s_mov_b32 s7, 0x20000
s_mov_b32 s10, 0x80000
s_mov_b32 s11, 0x20000
s_mov_b32 s14, 1835008
s_mov_b32 s15, 0x20000
s_mov_b32 s18, %d
s_mov_b32 s19, 0x20000
s_mov_b32 s28, s24
s_mov_b32 s29, s25
s_mov_b32 s30, 0x200000
s_mov_b32 s31, 0x20000
s_mov_b32 s32, s26
s_mov_b32 s33, s27
s_mov_b32 s34, 256
s_mov_b32 s35, 0x20000
s_barrier
''' % (FLAG, WS_RANGE))
    if K1M.FUSED[0]:
        a('''
s_cmp_lg_u32 s20, 4
s_cbranch_scc1 K2_NOF1
v_mov_b32 v1, 1
v_mov_b32 v2, s2
s_mov_b64 exec, 1
buffer_store_byte v1, v2, s[32:35], 0 offen sc1
s_mov_b64 exec, -1
K2_NOF1:
''')

def final_reduce(tagp):
    out = stamp() + [I('v_add_u32 v11, %d, v12' % (2 * RSZ)), I('s_barrier')] + stamp()
    T = 192
    for g in range(4):
        for hlf in range(2):
            out.append(DS('ds_read_b128 %s, v%d offset:%d' % (vr(T + 8 * g + 4 * hlf), 12 if g < 2 else 11, (g & 1) * RSZ + 16 * hlf), tagp + 'R'))
    out.append(W(vm='XRES'))
    for i in range(4):
        out.append(I('v_lshlrev_b32 v%d, 16, v%d' % (64 + 2 * i, XRES + i)))
        out.append(I('v_and_b32 v%d, 0xffff0000, v%d' % (65 + 2 * i, XRES + i)))
    out.append(W(ds=tagp + 'R'))
    for i in range(8): out.append(I('v_add_f32 v%d, v%d, v%d' % (T + i, T + i, T + 8 + i)))
    for i in range(8): out.append(I('v_add_f32 v%d, v%d, v%d' % (T + 16 + i, T + 16 + i, T + 24 + i)))
    for i in range(8): out.append(I('v_add_f32 v%d, v%d, v%d' % (T + i, T + i, T + 16 + i)))
    for i in range(8): out.append(I('v_add_f32 v%d, v%d, v%d' % (T + i, T + i, 64 + i)))
    for i in range(4): out.append(I('v_cvt_pk_bf16_f32 v%d, v%d, v%d' % (72 + i, T + 2 * i, T + 2 * i + 1)))
    out.append(VM('buffer_store_dwordx4 v[72:75], v13, s[28:31], s23 offen%s' % os.environ.get('OSF', ' sc1'), 'OUT'))
    out += stamp() + stamp_out(17 << 20)
    if K1M.DBGT:
        L = 'K2_DBG' + tagp
        out += [I('s_waitcnt vmcnt(0)'), I('s_memrealtime s[96:97]'), I('s_waitcnt lgkmcnt(0)'), I('v_mov_b32 v1, 0'), I('v_mov_b32 v2, s96'), I('s_not_b32 s98, s98'), I('v_mov_b32 v3, s98'),
                I('s_mov_b64 exec, 1'), I('buffer_atomic_umax v2, v1, s[32:35], 0 offen'), I('buffer_atomic_umax v3, v1, s[32:35], 0 offen offset:4'), I('s_mov_b64 exec, -1'),
                I('s_cmp_ge_u32 s2, 32'), I('s_cbranch_scc1 %s' % L),
                I('s_lshl_b32 s54, s2, 9'), I('s_add_u32 s54, s54, %d' % (24 << 20)), I('v_lshlrev_b32 v4, 3, v0'), I('buffer_load_dwordx2 v[2:3], v4, s[16:19], s54 offen'), I('s_waitcnt vmcnt(0)'),
                I('v_not_b32 v2, v2'), I('buffer_atomic_umax v2, v1, s[32:35], 0 offen offset:8'), I('buffer_atomic_umax v3, v1, s[32:35], 0 offen offset:12'), I(L + ':')]
    out.append(I('s_endpgm'))
    return out

def lds_spin(name, off, areg=4, treg=5):
    return [I(name + ':'), DS('ds_read_b32 v%d, v%d offset:%d' % (treg, areg, off), 'FL' + name), W(ds='ALL'), I('v_readfirstlane_b32 s52, v%d' % treg),
            I('s_cmp_lg_u32 s52, 0'), I('s_cbranch_scc1 %s_OK' % name), I('s_sleep 1'), I('s_branch %s' % name), I(name + '_OK:')]

def gemm(a):
    R = Resolver(a)
    txt = ('''
v_lshrrev_b32 v1, 3, v0
v_and_b32 v2, 7, v0
v_bfe_u32 v3, v0, 4, 1
v_lshlrev_b32 v3, 2, v3
v_xor_b32 v2, v2, v3
v_lshlrev_b32 v1, 10, v1
v_lshl_add_u32 v1, v2, 4, v1
v_lshrrev_b32 v2, 5, v0
v_bfe_u32 v3, v0, 2, 2
v_lshl_add_u32 v2, v2, 2, v3
v_lshlrev_b32 v2, 7, v2
v_lshrrev_b32 v3, 1, v3
v_lshl_add_u32 v2, v3, 6, v2
v_bfe_u32 v3, v0, 4, 1
v_lshl_add_u32 v2, v3, 5, v2
v_and_b32 v3, 3, v0
v_lshl_add_u32 v2, v3, 3, v2
s_mul_i32 s40, s20, %d
v_add_u32 v2, s40, v2
v_xor_b32 v3, 64, v2
s_mul_i32 s41, s21, 224
s_mul_i32 s36, s20, 28
s_add_u32 s41, s41, s36
s_lshl_b32 s41, s41, 10
s_add_u32 s41, s41, %d
s_add_u32 s42, s41, 114688
s_mul_i32 s43, s20, 458752
s_lshl_b32 s36, s22, 7
s_add_u32 s43, s43, s36
s_lshl_b32 s44, s21, 6
s_lshl_b32 s37, s20, 3
s_add_u32 s44, s44, s37
s_lshl_b32 s44, s44, 10
s_add_u32 s44, s44, %d
s_add_u32 s45, s44, 32768
s_lshl_b32 s46, s20, 17
s_add_u32 s46, s46, s36
v_mov_b32 v4, %d
''' % (RSZ, HF, OF, FLAG))
    a(txt)
    def LA(s):
        out = []
        for t in range(2):
            dst = vr(GA + 8 * (s % DEPTH) + 4 * t)
            if s < 28:
                out.append(I('s_add_u32 s50, s%d, %d' % (41 + t, s * 1024)))
                out.append(VM('buffer_load_dwordx4 %s, v14, s[16:19], s50 offen%s' % (dst, ' sc1' if K1M.FUSED[0] else ''), 'A%d' % s))
            else:
                out.append(I('s_add_u32 s50, s%d, %d' % (44 + t, (s - 28) * 1024)))
                out.append(VM('buffer_load_dwordx4 %s, v14, s[16:19], s50 offen sc1' % dst, 'A%d' % s))
        return out
    def LW(s):
        out = []
        for i in range(2):
            if s < 28:
                out.append(I('s_add_u32 s51, s43, %d' % ((16 * s + 8 * i) * 1024))); srd = 's[12:15]'
            else:
                out.append(I('s_add_u32 s51, s46, %d' % ((16 * (s - 28) + 8 * i) * 1024))); srd = 's[8:11]'
            out.append(I('s_add_u32 m0, s40, %d' % ((s % DEPTH) * 2048 + i * 1024)))
            out.append(VM('buffer_load_dwordx4 v1, %s, s51 offen lds' % srd, 'W%d' % s))
        return out
    def TR(s):
        out = [W(vm='W%d' % s)]
        for cti in range(2):
            for sec in range(2):
                out.append(DS('ds_read_b64_tr_b16 %s, v%d offset:%d' % (vr(GB + 8 * (s & 1) + 4 * cti + 2 * sec, 2), 2 + cti, (s % DEPTH) * 2048 + sec * 1024), 'T%d' % s))
        return out
    _st[0] = 0
    it = stamp() + ([I('s_barrier')] if EARLYBAR else [])
    if K1M.FUSED[0]:
        it.append(VM('buffer_load_dwordx4 %s, v13, s[4:7], s23 offen' % vr(XRES), 'XRES'))
        for s in range(8): it += LW(s)
        it += lds_spin('K2_GW1', 4)
        for s in range(8): it += LA(s)
    else:
        for s in range(DEPTH): it += LW(s) + LA(s)
    if not K1M.FUSED[0]: it.append(VM('buffer_load_dwordx4 %s, v13, s[4:7], s23 offen' % vr(XRES), 'XRES'))
    it += stamp() + TR(0)
    pend = []
    for s in range(36):
        if s in STS: it += stamp()
        if s == GATE: it += [I('v_mov_b32 v5, 1'), DS('ds_write_b32 v4, v5 offset:12', 'GT')]
        it.append(W(ds=('T%d' % s, 'A%d' % s)) if (ODMA and s >= 28) else W(vm='A%d' % s, ds='T%d' % s))
        mm = []
        for t in range(2):
            for cti in range(2):
                ac = vr(GACC + 16 * (2 * t + cti), 16)
                mm.append(I('v_mfma_f32_32x32x16_bf16 %s, %s, %s, %s' % (ac, vr(GB + 8 * (s & 1) + 4 * cti), vr(GA + 8 * (s % DEPTH) + 4 * t), '0' if s == 0 else ac)))
        it += mm[:2]
        if s < 35: it += TR(s + 1)
        it += mm[2:]
        n = s + DEPTH
        if n < 36: it += LW(n)
        n = s + DEPTH - 1
        if DEPTH <= n < 28: it += LA(n)
        if ODMA:
            if s == 27:
                it += [I('s_lshl_b32 s52, s20, 2'), I('v_add_u32 v6, s52, v4'), I('s_lshl_b32 s52, s20, 14'), I('s_add_u32 s52, s52, %d' % OBUF), I('v_add_u32 v7, s52, v14')]
                it += lds_spin('K2_FW', 16, 6, 5) + stamp()
                for p in range(28, 36):
                    for t in range(2):
                        it.append(DS('ds_read_b128 %s, v7 offset:%d' % (vr(GA + 8 * (p % DEPTH) + 4 * t), (2 * (p - 28) + t) * 1024), 'A%d' % p))
        elif s == FLAGPOS:
            it += [I('K2_FW:'), DS('ds_read_b32 v5, v4', 'FL'), W(ds='ALL'), I('v_readfirstlane_b32 s52, v5'),
                   I('s_cmp_lg_u32 s52, 0'), I('s_cbranch_scc1 K2_FOK'), I('s_sleep 1'), I('s_branch K2_FW'), I('K2_FOK:')]
            it += stamp()
            for p in range(28, min(36, n + 1)): it += LA(p)
        elif s > FLAGPOS and 28 <= n < 36: it += LA(n)
    it += [I('v_and_b32 v5, 31, v0'), I('v_mul_u32_u24 v5, 272, v5'), I('v_lshrrev_b32 v6, 5, v0'), I('v_lshl_add_u32 v5, v6, 4, v5'), I('v_add_u32 v5, s40, v5')]
    for t in range(2):
        for cti in range(2):
            for q in range(4):
                it.append(DS('ds_write_b128 v5, %s offset:%d' % (vr(GACC + 16 * (2 * t + cti) + 4 * q), t * 32 * 272 + cti * 128 + q * 32), 'RW'))
    it.append(W(ds='ALL'))
    it += final_reduce('G')
    R.run(it)

_l = [0]
def lab(p):
    _l[0] += 1
    return 'K2_%s%d' % (p, _l[0])

def attn(a):
    R = Resolver(a)
    a('''
s_setprio 3
s_sub_u32 s36, s20, 4
s_lshl_b32 s40, s22, 2
s_add_u32 s40, s40, s36
s_lshl_b32 s41, s21, 1
s_sub_u32 s41, s41, 8
s_lshl_b32 s42, s40, 16
v_and_b32 v1, 15, v0
v_lshrrev_b32 v2, 5, v0
v_lshlrev_b32 v1, 4, v1
v_lshl_add_u32 v1, v2, 8, v1
v_bfe_u32 v3, v0, 4, 1
v_lshl_add_u32 v1, v3, 9, v1
v_and_b32 v3, 31, v0
v_lshlrev_b32 v2, 2, v2
v_sub_u32 v3, v3, v2
v_mov_b32 v4, 0x%08x
''' % NEG_BIG)
    _st[0] = 0
    it = stamp()
    SC = ' sc1' if K1M.FUSED[0] else ''
    if K1M.FUSED[0]:
        it += [I('v_mov_b32 v7, %d' % FLAG), I('s_cmp_lg_u32 s20, 4'), I('s_cbranch_scc1 K2_AW1'),
               I('s_lshr_b32 s36, s21, 2'), I('s_max_i32 s37, s41, 0'), I('s_lshr_b32 s37, s37, 3'),
               I('v_bfe_u32 v5, v0, 1, 2'), I('v_mov_b32 v6, 0')]
        for sr in (36, 37):
            it += [I('s_and_b32 s38, s%d, 3' % sr), I('s_cmp_ge_u32 s%d, 4' % sr), I('s_mov_b32 s39, 0x00010001'), I('s_cselect_b32 s39, 0x01000100, s39'),
                   I('v_cmp_eq_u32 vcc, s38, v5'), I('v_mov_b32 v8, s39'), I('v_cndmask_b32 v8, 0, v8, vcc'), I('v_or_b32 v6, v6, v8')]
        it += [I('v_lshlrev_b32 v5, 2, v0'),
               I('K2_P1:'), I('s_sleep %d' % P1SLEEP), VM('buffer_load_dword v8, v5, s[32:35], 0 offen sc1', 'PL1'), W(vm='ALL'),
               I('v_lshrrev_b32 v9, 1, v8'), I('v_or_b32 v8, v8, v9'), I('v_and_b32 v8, v8, v6'), I('v_cmp_eq_u32 vcc, v8, v6'),
               I('s_cmp_eq_u64 vcc, -1'), I('s_cbranch_scc1 K2_P1D'), I('s_branch K2_P1'), I('K2_P1D:'),
               I('v_mov_b32 v8, 1'), DS('ds_write_b32 v7, v8 offset:4', 'FW1'), W(ds='ALL')]
        it += lds_spin('K2_AW1', 4, 7, 8)
    it += [I('s_lshl_b32 s37, s21, 11'), I('s_add_u32 s37, s37, s42')]
    it.append(VM('buffer_load_dwordx4 %s, v14, s[16:19], s37 offen%s' % (vr(AQ), SC), 'Q0'))
    def kload(jj):
        return [I('s_add_i32 s36, s41, %d' % jj), I('s_max_i32 s36, s36, 0'), I('s_lshl_b32 s36, s36, 10'), I('s_add_u32 s%d, s36, s42' % (44 + jj)),
                I('s_add_u32 s36, s%d, %d' % (44 + jj, KF)),
                VM('buffer_load_dwordx4 %s, v14, s[16:19], s36 offen%s' % (vr(AK + 4 * jj), SC), 'K%d' % jj)]
    def vload(jj):
        return [I('s_add_u32 s36, s%d, %d' % (44 + jj, VF)), VM('buffer_load_dwordx4 %s, v1, s[16:19], s36 offen%s' % (vr(AV + 8 * jj), SC), 'V%d' % jj)]
    for jj in range(8, -1, -1): it += kload(jj)
    it.append(VM('buffer_load_dwordx4 %s, v14, s[16:19], s37 offen offset:1024%s' % (vr(AQ + 4), SC), 'Q1'))
    it += kload(9)
    if EARLYBAR: it.append(I('s_barrier'))
    for r in range(16):
        it.append(I('v_cmp_ge_i32 s[%d:%d], v3, %d' % (64 + 2 * r, 65 + 2 * r, 8 * (r >> 2) + (r & 3))))
    for jj in range(10):
        for r in range(4): it.append(I('v_mov_b32 v%d, 0x3f803f80' % (AV + 8 * jj + 4 + r)))
    vl = [vload(jj) for jj in list(range(8, -1, -1)) + [9]] + [[VM('buffer_load_dwordx4 %s, v13, s[4:7], s23 offen' % vr(XRES), 'XRES')]]
    def smfma(qi, jp, buf, cmode):
        jj = qi + jp
        out = [W(vm=('Q%d' % qi, 'K%d' % jj))]
        if jp == 8 or jp == 0:
            val = '0' if cmode == 'A' else 'v%d' % CN
            for r in range(16):
                m = 's[%d:%d]' % (64 + 2 * r, 65 + 2 * r)
                if jp == 8: out.append(I('v_cndmask_b32 v%d, v4, %s, %s' % (CT + r, val, m)))
                else: out.append(I('v_cndmask_b32 v%d, %s, v4, %s' % (CT + r, val, m)))
            c = vr(CT, 16)
        else:
            c = '0' if cmode == 'A' else vr(CN, 16)
        out.append(I('v_mfma_f32_32x32x16_bf16 %s, %s, %s, %s' % (vr(buf, 16), vr(AK + 4 * jj), vr(AQ + 4 * qi), c)))
        return out
    def one_pass(qi, cmode, fast, proc):
        bufs = (SA, SB)
        out = smfma(qi, 8, bufs[0], cmode)
        Ld = lab('D')
        for n, jp in enumerate(range(8, -1, -1)):
            if jp > 0:
                Ls = lab('S')
                if not fast: out += [I('s_add_i32 s36, s41, %d' % (qi + jp - 1)), I('s_cmp_lt_i32 s36, 0'), I('s_cbranch_scc1 %s' % Ls)]
                out += smfma(qi, jp - 1, bufs[(n + 1) & 1], cmode)
                if not fast: out += [I(Ls + ':')]
            out += proc(jp, bufs[n & 1])
            if jp > 0 and not fast: out += [I('s_add_i32 s36, s41, %d' % (qi + jp - 1)), I('s_cmp_lt_i32 s36, 0'), I('s_cbranch_scc1 %s' % Ld)]
        if not fast: out += [I(Ld + ':'), I('s_nop 15')]
        return out
    def body(fast):
        it = []
        swapped = set()
        if not fast:
            for g in vl: it += g
            it.append(W(vm='ALL'))
            for jj in range(10):
                for r in range(4): it.append(I('v_permlane16_swap_b32 v%d, v%d' % (AV + 8 * jj + r, AV + 8 * jj + 4 + r)))
                swapped.add(jj)
        for qi in range(2):
            pend = list(vl) if (fast and qi == 0) else []
            def procA(jp, b):
                o = [I('v_max3_f32 v5, v%d, v%d, v5' % (b + 2 * i, b + 2 * i + 1)) for i in range(8)]
                if pend: o += pend.pop(0)
                if pend and jp < 3: o += pend.pop(0)
                return o
            it += (stamp() if fast else []) + [I('v_mov_b32 v5, v4')] + one_pass(qi, 'A', fast, procA)
            for g in pend: it += g
            it += [I('v_mov_b32 v6, v5'), I('v_permlane32_swap_b32 v5, v6'), I('v_max_f32 v5, v5, v6'), I('v_sub_f32 v%d, 0, v5' % CN)]
            for r in range(1, 16): it.append(I('v_mov_b32 v%d, v%d' % (CN + r, CN)))
            def procB(jp, b):
                jj = qi + jp
                o = []
                if jj not in swapped:
                    swapped.add(jj)
                    o.append(W(vm='V%d' % jj))
                    o += [I('v_permlane16_swap_b32 v%d, v%d' % (AV + 8 * jj + r, AV + 8 * jj + 4 + r)) for r in range(4)]
                o += [I('v_exp_f32 v%d, v%d' % (b + r, b + r)) for r in range(16)]
                o += [I('v_cvt_pk_bf16_f32 v%d, v%d, v%d' % (AP + p, b + 2 * p, b + 2 * p + 1)) for p in range(8)]
                for hf in range(2):
                    o.append(I('v_mfma_f32_32x32x16_bf16 %s, %s, %s, %s' % (vr(AO, 16), vr(AV + 8 * jj + 4 * hf), vr(AP + 4 * hf), '0' if (jp == 8 and hf == 0) else vr(AO, 16))))
                return o
            it += (stamp() if fast else []) + one_pass(qi, 'B', fast, procB)
            it.append(I('v_rcp_f32 v6, v%d' % (AO + 8)))
            for r in range(8): it.append(I('v_mul_f32 v%d, v%d, v6' % (AO + r, AO + r)))
            for p in range(4): it.append(I('v_cvt_pk_bf16_f32 v%d, v%d, v%d' % (8 + p, AO + 2 * p, AO + 2 * p + 1)))
            it += [I('s_lshl_b32 s36, s21, 6'), I('s_add_u32 s36, s36, s40'), I('s_lshl_b32 s36, s36, 10'), I('s_add_u32 s36, s36, %d' % (OF + qi * 32768))]
            it.append(VM('buffer_store_dwordx4 v[8:11], v14, s[16:19], s36 offen sc1', 'OST'))
        return it
    it += [I('s_cmp_ge_u32 s21, 4'), I('s_cbranch_scc1 K2_AFAST')]
    R.run(it)
    R2 = copy.deepcopy(R); R2.a = a
    R2.run(body(False) + [I('s_branch K2_AJOIN'), I('K2_AFAST:')])
    it = body(True) + [I('K2_AJOIN:')]
    it += stamp() + [W(vm='ALL')] + stamp()
    if K1M.FUSED[0]:
        it += [I('v_mov_b32 v5, %d' % FLAG), I('v_mov_b32 v6, 1'), I('s_mov_b64 exec, 1'), DS('ds_add_rtn_u32 v7, v5, v6 offset:8', 'CNT'), W(ds='ALL'), I('s_mov_b64 exec, -1'),
               I('v_readfirstlane_b32 s36, v7'), I('s_cmp_lg_u32 s36, 3'), I('s_cbranch_scc1 K2_NSIG'),
               I('v_mov_b32 v7, 2'), I('v_mov_b32 v8, s2'), I('s_mov_b64 exec, 1'), I('buffer_store_byte v7, v8, s[32:35], 0 offen sc1'), I('s_mov_b64 exec, -1'), I('K2_NSIG:'),
               I('s_cmp_lg_u32 s20, 4'), I('s_cbranch_scc1 K2_AFIN'),
               I('s_and_b32 s36, s21, 3'), I('s_lshr_b32 s37, s21, 4'), I('s_lshr_b32 s38, s21, 2'), I('s_and_b32 s38, s38, 3'), I('s_lshl_b32 s38, s38, 3'), I('s_lshl_b32 s38, 2, s38'),
               I('v_lshrrev_b32 v7, 4, v0'), I('v_cmp_eq_u32 vcc, s36, v7'), I('v_mov_b32 v8, s38'), I('v_cndmask_b32 v8, 0, v8, vcc'),
               I('v_and_b32 v7, 1, v0'), I('v_cmp_eq_u32 vcc, s37, v7'), I('v_cndmask_b32 v8, 0, v8, vcc'), I('v_lshlrev_b32 v9, 2, v0')] + lds_spin('K2_GATE', 12, 5, 7) + [
               I('K2_POLL:'), VM('buffer_load_dword v7, v9, s[32:35], 0 offen sc1', 'PL'), W(vm='ALL'), I('v_and_b32 v7, v7, v8'), I('v_cmp_eq_u32 vcc, v7, v8'),
               I('s_cmp_eq_u64 vcc, -1'), I('s_cbranch_scc1 K2_PDONE'), I('s_sleep 8'), I('s_branch K2_POLL'), I('K2_PDONE:'),
               DS('ds_write_b32 v5, v6', 'FW'), W(ds='ALL'), I('K2_AFIN:')]
    else:
        it += [I('s_lshl_b32 s37, s21, 7'), I('s_add_u32 s37, s37, %d' % FLG), I('s_lshl_b32 s36, s40, 2'), I('s_and_b32 s36, s36, 127'), I('v_mov_b32 v5, s36'), I('v_mov_b32 v6, 1'),
               I('s_mov_b64 exec, 1'), VM('buffer_store_dword v6, v5, s[16:19], s37 offen sc1', 'AT'), I('s_mov_b64 exec, -1'),
               I('s_cmp_lg_u32 s20, 4'), I('s_cbranch_scc1 K2_AFIN'),
               I('v_mov_b32 v8, %d' % FLAG)] + (lds_spin('K2_GATE', 12, 8, 9) if GATE >= 0 else []) + [I('v_and_b32 v5, 31, v0'), I('v_lshlrev_b32 v5, 2, v5'),
               I('s_mov_b32 s53, 0'),
               I('K2_POLL:'), VM('buffer_load_dword v7, v5, s[16:19], s37 offen sc1', 'PL'), W(vm='ALL'), I('v_cmp_ne_u32 vcc, 0, v7'),
               I('s_cmp_eq_u64 vcc, -1'), I('s_cbranch_scc1 K2_PDONE'), I('s_add_u32 s53, s53, 1'), I('s_cmp_gt_u32 s53, 0x100000'), I('s_cbranch_scc1 K2_PDONE'),
               I('s_sleep %d' % PSLEEP), I('s_branch K2_POLL'), I('K2_PDONE:'),
               I('v_mov_b32 v5, %d' % FLAG), DS('ds_write_b32 v5, v6', 'FW'), W(ds='ALL'), I('K2_AFIN:')]
    if ODMA:
        it += [I('v_mov_b32 v8, %d' % FLAG)] + lds_spin('K2_OG', 0, 8, 9)
        it += [I('s_sub_u32 s36, s20, 4'), I('s_lshl_b32 s37, s21, 6'), I('s_lshl_b32 s38, s36, 3'), I('s_add_u32 s37, s37, s38'), I('s_lshl_b32 s37, s37, 10'), I('s_add_u32 s37, s37, %d' % OF),
               I('s_lshl_b32 s38, s36, 14'), I('s_add_u32 s38, s38, %d' % OBUF)]
        for p in range(8):
            for t in range(2):
                it += [I('s_add_u32 s39, s37, %d' % (p * 1024 + t * 32768)), I('s_add_u32 m0, s38, %d' % ((2 * p + t) * 1024)),
                       VM('buffer_load_dwordx4 v14, s[16:19], s39 offen sc1 lds', 'OD')]
        it += [W(vm='ALL'), I('s_lshl_b32 s36, s36, 2'), I('v_add_u32 v8, s36, v8'), I('v_mov_b32 v9, 1'), DS('ds_write_b32 v8, v9 offset:16', 'ORD'), W(ds='ALL')]
    it += final_reduce('A')
    R.run(it)

def build_k2(a=None):
    if a is None: a = Asm()
    prologue(a)
    a('s_cmp_ge_u32 s20, 4\ns_cbranch_scc1 K2_ATT')
    gemm(a)
    a('K2_ATT:')
    attn(a)
    a('K2_END:\nK1_END:\ns_endpgm' if K1M.FUSED[0] else 'K2_END:\ns_endpgm')
    return a.finalize()

if __name__ == '__main__':
    print(len(build_k2().splitlines()))
```

```python
from asmlib import *
from sched import *
import os, struct, copy

QF, KF, VF, HF, OF, FLG = 0, 2 << 20, 4 << 20, 6 << 20, 14 << 20, 20 << 20
WS_RANGE = 32 << 20
STAMP = int(os.environ.get('STAMP', '0'))
EXP = os.environ.get('EXP', 'sq4')
NSPREAD = int(os.environ.get('NSPREAD', '20'))
STF = os.environ.get('STF', ' sc1')
FUSED = [False]
DBGT = int(os.environ.get('DBGT', '0'))
_st = [0]
def stamp():
    if not STAMP: return []
    k = _st[0]; _st[0] += 1
    return [I('s_memtime s[%d:%d]' % (64 + 2 * k, 65 + 2 * k))]
def stamp_out(base):
    if not STAMP: return []
    out = [I('s_waitcnt lgkmcnt(0)'), I('s_lshl_b32 s54, s2, 3'), I('s_add_u32 s54, s54, s20'), I('s_lshl_b32 s54, s54, 7'), I('s_add_u32 s54, s54, %d' % base), I('v_mov_b32 v1, 0')]
    for k in range(16):
        out += [I('v_mov_b32 v2, s%d' % (64 + 2 * k)), I('buffer_store_dword v2, v1, s[16:19], s54 offen offset:%d' % (4 * k))]
    return out

CSF, ST, XR0, P1G, P1U = 0, 5120, 6144, 71680, 108672
LDS_K1 = 145536
SLOT = 12288
XR, ACC, BR = 128, 48, 24
K0 = -2.0 * 0.7978845608028654 * 1.4426950408889634
K1C = K0 * 0.044715
def f2u(f): return struct.unpack('<I', struct.pack('<f', f))[0]
def vr(b, n=4): return 'v[%d:%d]' % (b, b + n - 1)
def acc(u): return vr(ACC + 16 * u, 16)
SEL1, RS, CSA1, CT1 = 96, 100, 104, 116
SQA, SQB = 15, 16
SQ4A = 16
SEL2, CSA2, CT2 = 40, 128, 136
MF, C0, C1, IRS2, RSTD, CF = 4, 15, 16, 17, 18, 8
def t_base(d): return (P1G + SLOT, P1G + 2 * SLOT, P1G, XR0)[d]
def x_base(d): return (P1U + SLOT, P1U + 2 * SLOT, P1U, XR0 + 8192)[d]

def prologue(a):
    a('''
s_cmp_ge_u32 s2, 256
s_cbranch_scc1 K1_END
s_load_dwordx2 s[4:5], s[0:1], 0
s_load_dwordx2 s[28:29], s[0:1], 8
s_load_dwordx4 s[32:35], s[0:1], 32
s_load_dwordx2 s[16:17], s[0:1], 72
s_load_dwordx2 s[96:97], s[0:1], 16
s_load_dwordx2 s[60:61], s[0:1], 48
v_lshrrev_b32 v1, 6, v0
v_and_b32 v0, 63, v0
v_readfirstlane_b32 s20, v1
s_and_b32 s36, s2, 7
s_lshr_b32 s37, s2, 3
s_and_b32 s38, s36, 1
s_lshl_b32 s38, s38, 2
s_and_b32 s39, s37, 3
s_add_u32 s21, s38, s39
s_lshr_b32 s38, s36, 1
s_lshl_b32 s38, s38, 3
s_lshr_b32 s39, s37, 2
s_add_u32 s22, s38, s39
s_lshr_b32 s30, s22, 1
s_and_b32 s23, s22, 1
s_mul_i32 s31, s30, 112
s_mul_i32 s38, s23, 48
s_add_u32 s31, s31, s38
s_lshl_b32 s21, s21, 3
s_add_u32 s21, s21, s20
s_lshl_b32 s24, s21, 15
s_add_u32 s25, s24, 8192
s_add_u32 s26, s24, 16384
s_add_u32 s27, s24, 24576
s_lshl_b32 s47, s20, 13
s_add_u32 s47, s47, %d
''' % XR0)
    a('''
v_lshrrev_b32 v2, 3, v0
v_and_b32 v3, 7, v0
v_lshrrev_b32 v4, 4, v0
v_xor_b32 v3, v3, v4
v_lshlrev_b32 v3, 4, v3
v_lshl_add_u32 v2, v2, 10, v3
v_xor_b32 v3, 64, v2
''')
    for i in range(3):
        a('''
v_add_u32 v31, %d, v0
v_mul_u32_u24 v32, 43691, v31
v_lshrrev_b32 v32, 18, v32
v_mul_u32_u24 v33, 6, v32
v_sub_u32 v33, v31, v33
v_mul_u32_u24 v32, 3584, v32
v_lshl_add_u32 v%d, v33, 4, v32
''' % (64 * i, 9 + i))
    a('''
s_waitcnt lgkmcnt(0)
s_mov_b32 s6, 0x200000
s_mov_b32 s7, 0x20000
s_mov_b32 s18, %d
s_mov_b32 s19, 0x20000
s_cmp_lt_u32 s20, 4
s_cselect_b32 s8, s32, s34
s_cselect_b32 s9, s33, s35
s_mov_b32 s10, 1835008
s_mov_b32 s11, 0x20000
s_mov_b32 s41, %d
s_cselect_b32 s41, s41, %d
s_and_b32 s36, s20, 3
s_mul_i32 s40, s36, 114688
s_lshl_b32 s37, s31, 1
s_add_u32 s40, s40, s37
s_mul_i32 s37, s36, 3072
s_add_u32 s41, s41, s37
''' % (WS_RANGE, P1G, P1U))

def prologue2(a):
    a('''
v_and_b32 v4, 31, v0
v_lshrrev_b32 v5, 5, v0
v_lshrrev_b32 v6, 1, v4
v_and_b32 v6, 7, v6
v_xor_b32 v6, v6, v5
v_lshlrev_b32 v6, 4, v6
v_lshl_add_u32 v4, v4, 7, v6
v_add_u32 v4, s47, v4
v_xor_b32 v5, 32, v4
v_xor_b32 v6, 64, v4
v_xor_b32 v7, 0x60, v4
''')
    a('''
v_bfe_u32 v28, v0, 4, 1
v_lshrrev_b32 v29, 5, v0
v_lshlrev_b32 v29, 3, v29
v_bfe_u32 v30, v0, 2, 2
v_add_u32 v29, v29, v30
v_and_b32 v30, 3, v0
v_lshlrev_b32 v30, 3, v30
v_mul_u32_u24 v8, %d, v28
v_mul_u32_u24 v31, 96, v29
v_add3_u32 v8, v8, v31, v30
v_add_u32 v8, %d, v8
s_mul_i32 s36, s20, 1536
v_add_u32 v1, s36, v8
v_lshlrev_b32 v13, 6, v29
v_lshl_add_u32 v13, v28, 5, v13
v_add_u32 v13, v13, v30
v_lshlrev_b32 v22, 4, v0
''' % (P1U - P1G, P1G))
    a('''
v_and_b32 v31, 15, v0
v_cmp_eq_u32 vcc, v31, v28
v_mov_b32 v96, 0x3f803f80
v_cndmask_b32 v96, 0, v96, vcc
v_mov_b32 v97, v96
v_mov_b32 v98, v96
v_mov_b32 v99, v96
v_mov_b32 v15, 0
v_mov_b32 v16, 0
''')
    a('''
s_mov_b32 s15, 0x20000
s_cmp_ge_u32 s20, 4
s_cselect_b32 s46, 1, 0
s_cmp_lt_u32 s20, 4
s_cbranch_scc1 K1_P2_QKV
s_cmp_eq_u32 s23, 0
s_cbranch_scc1 K1_P2_QKV
s_cmp_lt_u32 s20, 6
s_cselect_b32 s12, s32, s34
s_cselect_b32 s13, s33, s35
s_cselect_b32 s37, 0, 4224
s_mov_b32 s14, 1835008
v_lshrrev_b32 v31, 1, v0
v_mul_u32_u24 v31, 3584, v31
v_and_b32 v12, 1, v0
v_lshl_add_u32 v12, v12, 4, v31
s_and_b32 s36, s20, 1
s_mul_i32 s42, s36, 229376
s_mul_i32 s38, s30, 224
s_add_u32 s42, s42, s38
s_add_u32 s42, s42, 192
s_mov_b32 s43, 458752
s_mov_b32 s44, 114688
s_lshl_b32 s36, s36, 11
s_add_u32 s45, s37, s36
s_branch K1_P2_DONE
K1_P2_QKV:
s_mov_b32 s12, s28
s_mov_b32 s13, s29
s_mov_b32 s14, 1572864
v_lshrrev_b32 v31, 2, v0
v_mul_u32_u24 v31, 3072, v31
v_and_b32 v12, 3, v0
v_lshl_add_u32 v12, v12, 4, v31
s_and_b32 s36, s20, 3
s_mul_i32 s42, s36, 98304
s_lshl_b32 s37, s22, 6
s_lshl_b32 s38, s30, 6
s_add_u32 s38, s38, 2048
s_lshl_b32 s45, s36, 11
s_cmp_lt_u32 s20, 4
s_cselect_b32 s37, s37, s38
s_add_u32 s42, s42, s37
s_mov_b32 s43, 393216
s_mov_b32 s44, 49152
K1_P2_DONE:
s_cmp_eq_u32 s23, 0
s_cbranch_scc1 K1_XA
v_mul_u32_u24 v14, 4224, v28
v_lshl_add_u32 v14, v29, 5, v14
v_add_u32 v14, v14, v30
s_branch K1_XB
K1_XA:
v_mov_b32 v14, v13
K1_XB:
v_add_u32 v23, %d, v14
v_add_u32 v14, %d, v14
v_add_u32 v21, %d, v13
v_add_u32 v13, %d, v13
''' % (XR0 + 8192, P1U, XR0, P1G))
    a('''
s_mul_i32 s48, s21, 112
s_lshr_b32 s36, s31, 4
s_add_u32 s48, s48, s36
s_lshl_b32 s48, s48, 10
s_add_u32 s48, s48, %d
s_and_b32 s36, s22, 15
s_lshl_b32 s36, s36, 7
s_add_u32 s36, s36, s21
s_lshl_b32 s36, s36, 10
s_cmp_lt_u32 s22, 16
s_cselect_b32 s37, %d, %d
s_cselect_b32 s51, 0x%08x, 0x3f800000
s_add_u32 s49, s36, s37
s_lshl_b32 s36, s30, 7
s_add_u32 s36, s36, s21
s_lshl_b32 s36, s36, 10
s_add_u32 s36, s36, %d
s_add_u32 s37, s48, 3072
s_cmp_eq_u32 s23, 0
s_cselect_b32 s50, s36, s37
''' % (HF, QF, KF, f2u(0.25 * 1.4426950408889634), VF))

def w1_dma(d):
    out = [I('s_add_u32 s55, s40, %d' % (d * 128 * 3584))]
    for i in range(3):
        out.append(I('s_add_u32 m0, s41, %d' % ((d % 3) * SLOT + i * 1024)))
        out.append(VM('buffer_load_dwordx4 v%d, s[8:11], s55 offen lds' % (9 + i), 'W1_%d' % d))
    return out

def p2_dma(d):
    out = [I('s_mul_i32 s52, s43, %d' % d), I('s_add_u32 s52, s52, s42'), I('s_add_u32 s53, s52, s44'),
           I('s_cmp_eq_u32 s46, 0'), I('s_mov_b32 s56, %d' % t_base(d)), I('s_cselect_b32 s56, s56, %d' % x_base(d)), I('s_add_u32 s56, s56, s45')]
    for i in range(2):
        out.append(I('s_add_u32 m0, s56, %d' % (i * 1024)))
        out.append(VM('buffer_load_dwordx4 v12, s[12:15], s%d offen lds' % (52 + i), 'P2_%d' % d))
    return out

def x_dma(c):
    out = []
    for j in range(4):
        out.append(I('s_add_u32 m0, s47, %d' % ((c & 1) * 4096 + j * 1024 - c * 128)))
        out.append(VM('buffer_load_dwordx4 v%d, s[4:7], s%d offen offset:%d lds' % (2 + (j & 1), 24 + j, c * 128), 'X%d' % c))
    return out

def stage(c):
    out = [W(vm='X%d' % c)]
    for s in range(4):
        out.append(DS('ds_read_b128 %s, v%d offset:%d' % (vr(XR + 16 * c + 4 * s), 4 + s, (c & 1) * 4096), 'XF%d' % c))
    return out

B1 = (24, 36)
def tr1(ks, units=(0, 1, 2)):
    out = []
    d, k = ks >> 3, ks & 7
    for u in units:
        b = B1[ks & 1] + 4 * u
        for sec in range(2):
            out.append(DS('ds_read_b64_tr_b16 %s, v8 offset:%d' % (vr(b + 2 * sec, 2), (d % 3) * SLOT + k * 1536 + u * 32 + sec * 384), 'T1_%d_%d' % (ks, u)))
    return out

def cs1_read(d):
    return [DS('ds_read_b64_tr_b16 %s, v1 offset:%d' % (vr(CT1 + 4 * u + 2 * sec, 2), (d % 3) * SLOT + u * 32 + sec * 384), 'C1_%d' % d) for u in range(3) for sec in range(2)]
def cs1_mma(d):
    return [W(ds='C1_%d' % d)] + [I('v_mfma_f32_16x16x32_bf16 %s, %s, %s, %s' % (vr(CSA1 + 4 * u), vr(SEL1), vr(CT1 + 4 * u), '0' if d == 0 else vr(CSA1 + 4 * u))) for u in range(3)]

def tr2_addr(d, k, var, unit, sec):
    if unit == 0:
        reg, base = (13, t_base(d) - P1G) if d < 3 else (21, 0)
        return reg, base + k * 1024 + sec * 256
    reg, base = (14, x_base(d) - P1U) if d < 3 else (23, 0)
    return reg, base + (k * 1024 + sec * 256 if var == 0 else k * 512 + sec * 128)
def tr2(ks, var, unit):
    d, k = ks >> 3, ks & 7
    b = BR + 8 * (ks & 1) + 4 * unit
    out = []
    for sec in range(2):
        reg, off = tr2_addr(d, k, var, unit, sec)
        out.append(DS('ds_read_b64_tr_b16 %s, v%d offset:%d' % (vr(b + 2 * sec, 2), reg, off), 'T2_%d_%d' % (ks, unit)))
    return out
def cs2(d, var):
    out = []
    for unit in range(2):
        for sec in range(2):
            reg, off = tr2_addr(d, 0, var, unit, sec)
            if sec == 0: out.append(I('v_add_u32 v%d, s%d, v%d' % (19 + unit, 57 + (unit if var else 0), reg)))
            out.append(DS('ds_read_b64_tr_b16 %s, v%d offset:%d' % (vr(CT2 + 4 * unit + 2 * sec, 2), 19 + unit, off), 'C2_%d' % d))
    mm = [W(ds='C2_%d' % d)] + [I('v_mfma_f32_16x16x32_bf16 %s, %s, %s, %s' % (vr(CSA2 + 4 * u), vr(SEL2), vr(CT2 + 4 * u), '0' if d == 0 else vr(CSA2 + 4 * u))) for u in range(2)]
    return out, mm

def cs_publish(units, csa, tmp=(1, 2, 3)):
    ta, t2, t3 = tmp
    out = [I('s_lshr_b32 s59, s20, 2'), I('s_lshl_b32 s59, s59, 9'), I('s_and_b32 s56, s20, 3'), I('s_lshl_b32 s56, s56, 2'), I('s_add_u32 s59, s59, s56'),
           I('v_add_u32 v%d, s59, v22' % ta), I('s_mov_b64 exec, 0xffff')]
    for n, u in enumerate(units):
        for k in range(2):
            c = csa + 4 * n + k
            out += [I('v_cvt_pk_bf16_f32 v%d, v%d, v%d' % (t2, c, c)), I('v_lshlrev_b32 v%d, 16, v%d' % (t2, t2)), I('v_sub_f32 v%d, v%d, v%d' % (t3, c, t2)),
                    I('v_cvt_pk_bf16_f32 v%d, v%d, v%d' % (c, c, t3)),
                    DS('ds_write_b32 v%d, v%d offset:%d' % (ta, c, CSF + u * 1024 + 256 * k), 'CSA')]
    out += [I('s_mov_b64 exec, -1')]
    return out

def mean_fix(u, tag, swap=False):
    A = [DS('ds_read_b128 %s, v22 offset:%d' % (vr(CF), CSF + u * 1024), tag), W(ds=tag)]
    if swap: A.append(I('v_mfma_f32_32x32x16_bf16 %s, %s, %s, %s' % (acc(u), vr(MF), vr(CF), acc(u))))
    else: A.append(I('v_mfma_f32_32x32x16_bf16 %s, %s, %s, %s' % (acc(u), vr(CF), vr(MF), acc(u))))
    return A

def g_epilogue(u, soff_expr, tmp=(1, 2, 3, 12)):
    A = ACC + 16 * u
    out = []
    if 'pk' in EXP:
        for q in range(2):
            g = A + 4 * q; uu = A + 8 + 4 * q; t = 8
            p2 = lambda r: 'v[%d:%d]' % (r, r + 1)
            for i in (0, 2): out.append(I('v_pk_mul_f32 %s, %s, %s' % (p2(t + i), p2(g + i), p2(g + i))))
            for i in (0, 2): out.append(I('v_pk_fma_f32 %s, %s, v[46:47], v[44:45]' % (p2(t + i), p2(t + i))))
            for i in (0, 2): out.append(I('v_pk_mul_f32 %s, %s, %s' % (p2(t + i), p2(t + i), p2(g + i))))
            for i in range(4): out.append(I('v_exp_f32 v%d, v%d' % (t + i, t + i)))
            for i in (0, 2): out.append(I('v_pk_mul_f32 %s, %s, %s' % (p2(g + i), p2(g + i), p2(uu + i))))
            for i in (0, 2): out.append(I('v_pk_fma_f32 %s, %s, v[2:3], v[2:3]' % (p2(t + i), p2(t + i))))
            for i in range(4): out.append(I('v_rcp_f32 v%d, v%d' % (t + i, t + i)))
            for i in (0, 2): out.append(I('v_pk_mul_f32 %s, %s, %s' % (p2(g + i), p2(g + i), p2(t + i))))
            out.append(I('v_cvt_pk_bf16_f32 v%d, v%d, v%d' % (A + 8 + 2 * q, g, g + 1)))
            out.append(I('v_cvt_pk_bf16_f32 v%d, v%d, v%d' % (A + 8 + 2 * q + 1, g + 2, g + 3)))
    for q in range(2):
        if 'pk' in EXP: break
        g = [A + 4 * q + i for i in range(4)]
        uu = [A + 8 + 4 * q + i for i in range(4)]
        for i in range(4): out.append(I('v_mul_f32 v%d, v%d, v%d' % (tmp[i], g[i], g[i])))
        for i in range(4): out.append(I('v_fma_f32 v%d, v%d, v%d, v%d' % (tmp[i], tmp[i], C1, C0)))
        for i in range(4): out.append(I('v_mul_f32 v%d, v%d, v%d' % (tmp[i], tmp[i], g[i])))
        for i in range(4): out.append(I('v_exp_f32 v%d, v%d' % (tmp[i], tmp[i])))
        for i in range(4): out.append(I('v_mul_f32 v%d, v%d, v%d' % (g[i], g[i], uu[i])))
        for i in range(4): out.append(I('v_fma_f32 v%d, v%d, v%d, v%d' % (tmp[i], tmp[i], IRS2, IRS2)))
        for i in range(4): out.append(I('v_rcp_f32 v%d, v%d' % (tmp[i], tmp[i])))
        for i in range(4): out.append(I('v_mul_f32 v%d, v%d, v%d' % (g[i], g[i], tmp[i])))
        out.append(I('v_cvt_pk_bf16_f32 v%d, v%d, v%d' % (A + 8 + 2 * q, g[0], g[1])))
        out.append(I('v_cvt_pk_bf16_f32 v%d, v%d, v%d' % (A + 8 + 2 * q + 1, g[2], g[3])))
    sreg, add = soff_expr
    out.append(I('s_add_u32 s54, s%d, %d' % (sreg, add)))
    out.append(VM('buffer_store_dwordx4 %s, v22, s[16:19], s54 offen%s' % (vr(A + 8), STF), 'ST'))
    return out

def t_epilogue():
    A = ACC + 48
    o = XR + 32
    out = [I('v_mul_f32 v1, s51, v%d' % RSTD)]
    for r in range(16): out.append(I('v_mul_f32 v%d, v%d, v1' % (A + r, A + r)))
    for p in range(8): out.append(I('v_cvt_pk_bf16_f32 v%d, v%d, v%d' % (o + p, A + 2 * p, A + 2 * p + 1)))
    out.append(I('s_add_u32 s54, s49, 65536'))
    out.append(VM('buffer_store_dwordx4 %s, v22, s[16:19], s49 offen%s' % (vr(o), STF), 'ST'))
    out.append(VM('buffer_store_dwordx4 %s, v22, s[16:19], s54 offen%s' % (vr(o + 4), STF), 'ST'))
    return out

def v_pre():
    rs = XR + 48
    out = [I('v_lshrrev_b32 v19, 5, v0'), I('v_lshlrev_b32 v20, 4, v19'), I('s_lshl_b32 s59, s20, 7'), I('v_add_u32 v20, s59, v20')]
    for q in range(4):
        out.append(DS('ds_read_b128 %s, v20 offset:%d' % (vr(rs + 4 * q), ST + q * 32), 'VE'))
    out += [I('v_bfe_u32 v152, v0, 4, 1'), I('v_lshlrev_b32 v152, 16, v152'), I('v_lshl_add_u32 v152, v19, 8, v152'), I('v_and_b32 v19, 15, v0'), I('v_lshl_add_u32 v152, v19, 4, v152')]
    return out
def v_epilogue():
    A = ACC + 64
    rs, o = XR + 48, XR + 64
    out = [W(ds='VE')]
    for r in range(16): out.append(I('v_mul_f32 v%d, v%d, v%d' % (A + r, A + r, rs + r)))
    for p in range(8): out.append(I('v_cvt_pk_bf16_f32 v%d, v%d, v%d' % (o + p, A + 2 * p, A + 2 * p + 1)))
    out.append(VM('buffer_store_dwordx4 %s, v152, s[16:19], s50 offen%s' % (vr(o), STF), 'ST'))
    out.append(VM('buffer_store_dwordx4 %s, v152, s[16:19], s50 offen offset:512%s' % (vr(o + 4), STF), 'ST'))
    return out

def rne_bf16(dst, src):
    return [I('v_cvt_pk_bf16_f32 v%d, v%d, v%d' % (dst, src, src)), I('v_lshlrev_b32 v%d, 16, v%d' % (dst, dst))]

def stats_final():
    out = []
    if 'sqh' in EXP:
        out += [I('v_and_b32 v2, 3, v0'), I('v_cmp_eq_u32 vcc, 1, v2'), I('v_cndmask_b32 v16, v16, v17, vcc'), I('v_cmp_eq_u32 vcc, 2, v2'), I('v_cndmask_b32 v16, v16, v18, vcc'),
                I('v_cmp_eq_u32 vcc, 3, v2'), I('v_cndmask_b32 v16, v16, v19, vcc')]
    out += ([I('v_mov_b32 v20, v19')] if 'sq4' in EXP else []) + [I('v_and_b32 v19, 15, v0'), I('v_lshlrev_b32 v19, 2, v19'),
           DS('ds_bpermute_b32 v2, v19, v%d' % RS, 'BP'), DS('ds_bpermute_b32 v3, v19, v%d' % (RS + 1), 'BP'),
           ] + ([I('v_and_b32 v15, 3, v0'), I('v_cmp_eq_u32 vcc, 1, v15'), I('v_cndmask_b32 v16, v16, v17, vcc'), I('v_cmp_eq_u32 vcc, 2, v15'), I('v_cndmask_b32 v16, v16, v18, vcc'),
           I('v_cmp_eq_u32 vcc, 3, v15'), I('v_cndmask_b32 v16, v16, v20, vcc')] if 'sq4' in EXP else [I('v_add_f32 v16, v15, v16')]) + [I('v_mov_b32 v17, v16'), I('v_permlane32_swap_b32 v16, v17'), I('v_add_f32 v16, v16, v17'),
           I('v_and_b32 v19, 16, v0'), I('v_cmp_ne_u32 vcc, 0, v19'), W(ds='BP'), I('v_cndmask_b32 v15, v2, v3, vcc'),
           I('v_mul_f32 v15, 0x3b000000, v15'), I('v_mul_f32 v16, 0x3b000000, v16'),
           I('v_fma_f32 v16, -v15, v15, v16'), I('v_max_f32 v16, 0, v16')]
    out += rne_bf16(16, 16)
    out += [I('v_add_f32 v16, 0x%08x, v16' % f2u(1e-5))]
    out += rne_bf16(16, 16)
    out += [I('v_sqrt_f32 v16, v16')]
    out += rne_bf16(16, 16)
    out += [I('v_sub_f32 v15, 0, v15'), I('v_cvt_pk_bf16_f32 v%d, v15, v15' % MF),
            I('v_mov_b32 v%d, v%d' % (MF + 1, MF)), I('v_mov_b32 v%d, v%d' % (MF + 2, MF)), I('v_mov_b32 v%d, v%d' % (MF + 3, MF)),
            I('v_rcp_f32 v%d, v16' % RSTD), I('v_mul_f32 v%d, v16, v16' % IRS2),
            I('v_mul_f32 v%d, 0x%08x, v%d' % (C0, f2u(K0), RSTD)), I('v_mul_f32 v19, v%d, v%d' % (RSTD, RSTD)),
            I('v_mul_f32 v19, v19, v%d' % RSTD), I('v_mul_f32 v%d, 0x%08x, v19' % (C1, f2u(K1C)))]
    out += [I('v_and_b32 v19, 31, v0'), I('v_lshlrev_b32 v19, 2, v19'), I('s_lshl_b32 s54, s20, 7'), I('v_add_u32 v19, s54, v19'),
            DS('ds_write_b32 v19, v%d offset:%d' % (RSTD, ST), 'STW')]
    return out

def groups(items):
    g, cur = [], []
    for x in items:
        cur.append(x)
        if x.q == 'vm': g.append(cur); cur = []
    assert not cur
    return g

def touch():
    if 'nowpf' in EXP: return []
    out = [I('s_lshl_b32 s59, s2, 3'), I('s_add_u32 s59, s59, s20'), I('s_lshl_b32 s59, s59, 10')]
    for (lo, sz) in ((32, 1835008), (34, 1835008), (28, 1572864)):
        out += [I('s_mov_b32 s100, s%d' % lo), I('s_mov_b32 s101, s%d' % (lo + 1))] if False else []
        out += [I('s_mov_b32 s88, s%d' % lo), I('s_mov_b32 s89, s%d' % (lo + 1)), I('s_mov_b32 s90, %d' % sz), I('s_mov_b32 s91, 0x20000'),
                VM('buffer_load_dwordx4 v[252:255], v22, s[88:91], s59 offen', 'PF')]
    return out
def touch_code(tag, first_kb, nwaves, areg=31):
    if 'notouch' in EXP or 'nocode' in EXP: return []
    L = 'K1_TC%s' % tag
    return [I('s_cmp_ge_u32 s20, %d' % nwaves), I('s_cbranch_scc1 %s' % L),
            I('s_getpc_b64 s[52:53]'), I(L + 'P:'), I('s_sub_u32 s52, s52, %sP-k1_kernel' % L), I('s_subb_u32 s53, s53, 0'),
            I('s_lshl_b32 s56, s20, 13'), I('s_add_u32 s56, s56, %d' % (first_kb * 1024)), I('v_lshl_add_u32 v%d, v0, 7, s56' % areg),
            I('v_min_u32 v%d, CODE_END-k1_kernel-4, v%d' % (areg, areg)), I('global_load_dword v%d, v%d, s[52:53]' % (255 if tag == 'A' else 47, areg)), I(L + ':')]

def touch_tlb():
    if 'tlb' not in EXP: return []
    return [I('s_cmp_lg_u32 s20, 5'), I('s_cbranch_scc1 K1_TLB1'),
            I('v_lshlrev_b32 v31, 19, v0'), I('buffer_load_dword v254, v31, s[16:19], 0 offen'), I('K1_TLB1:'),
            I('s_cmp_lg_u32 s20, 6'), I('s_cbranch_scc1 K1_TLB2'),
            I('s_load_dwordx2 s[60:61], s[0:1], 56'), I('s_mov_b32 s62, 0x200000'), I('s_mov_b32 s63, 0x20000'), I('v_lshlrev_b32 v31, 15, v0'), I('s_waitcnt lgkmcnt(0)'),
            I('buffer_load_dword v254, v31, s[60:63], 0 offen'), I('K1_TLB2:')]

def build_k1():
    a = Asm()
    prologue(a)
    R = Resolver(a)
    pre = ([I('s_memrealtime s[92:93]')] if (STAMP or DBGT) else []) + stamp() + w1_dma(0) + x_dma(0) + x_dma(1)
    R.run(pre)
    prologue2(a)
    R.run(touch_code('A', 0, 3) + touch_tlb())
    tch = groups(touch())
    if tch and 'wpfl' not in EXP: R.run(touch())
    pre = [] if FUSED[0] else [I('s_or_b32 s52, s2, s20'), I('s_cmp_lg_u32 s52, 0'), I('s_cbranch_scc1 K1_NOZ'),
           I('v_mov_b32 v32, 0'), I('v_mov_b32 v33, 0'), I('v_mov_b32 v34, 0'), I('v_mov_b32 v35, 0'), I('s_mov_b32 s52, %d' % FLG)]
    if not FUSED[0]:
        pre += [I('buffer_store_dwordx4 v[32:35], v22, s[16:19], s52 offen offset:%d' % (1024 * i)) for i in range(4)]
        pre += [I('s_waitcnt vmcnt(0)'), I('K1_NOZ:')]
    if 'prio' in EXP: pre += [I('s_cmp_lt_u32 s20, 4'), I('s_cbranch_scc1 K1_NP'), I('s_setprio 1'), I('K1_NP:')]
    pre += stamp() + [W(vm='W1_0'), I('s_barrier')] + stamp()
    pre += stage(0) + tr1(0)
    R.run(pre)
    stats_final_items = stats_final()
    for ks in range(32):
        c, d = ks >> 2, ks >> 3
        it = []
        b = B1[ks & 1]; x = XR + 4 * ks
        vmg = []
        if (ks & 7) == 7 and ks < 31:
            it += cs1_mma(d)
            it += stamp() + [W(vm='W1_%d' % (d + 1), ds=['T1_%d_%d' % (ks, u) for u in range(3)]), I('s_barrier')]
            vmg += groups(w1_dma(3)) if d == 0 else groups(p2_dma(d - 1))
        if (ks & 3) == 3 and c + 3 <= 7:
            g = groups(x_dma(c + 3)); g[0] = [W(ds='XF%d' % (c + 1))] + g[0]; vmg += g
        if ks == 0: vmg += groups(w1_dma(1))
        if tch and ks < 3 and 'wpfl' in EXP: vmg.append(tch[ks])
        if ks == 1: vmg += groups(x_dma(2))
        if ks == 2: vmg += groups(w1_dma(2))
        def stat(k2):
            x2 = XR + 4 * k2
            sq = []
            for j in range(4):
                t = 17 + 2 * (j & 1)
                sq.append([I('v_lshlrev_b32 v%d, 16, v%d' % (t, x2 + j)), I('v_and_b32 v%d, 0xffff0000, v%d' % (t + 1, x2 + j)),
                           I('v_fmac_f32 v%d, v%d, v%d' % (SQA, t, t)), I('v_fmac_f32 v%d, v%d, v%d' % (SQB, t + 1, t + 1))])
            rs = I('v_mfma_f32_16x16x32_bf16 %s, %s, %s, %s' % (vr(RS), vr(SEL1), vr(x2), '0' if k2 == 0 else vr(RS)))
            if 'sqh' in EXP:
                v = lambda r: [I('v_lshlrev_b32 v20, 16, v%d' % r), I('v_fmac_f32 v15, v20, v20'), I('v_and_b32 v20, 0xffff0000, v%d' % r), I('v_fmac_f32 v15, v20, v20')]
                return [[W(ds='XF%d' % (k2 >> 2)), I('v_mfma_f32_4x4x4_16b_bf16 %s, %s, %s, %s' % (vr(SQ4A), vr(x2, 2), vr(x2, 2), '0' if k2 == 0 else vr(SQ4A)))] + v(x2 + 2)[:2],
                        v(x2 + 2)[2:] + [rs] + v(x2 + 3)[:2], v(x2 + 3)[2:]]
            if 'sq4' in EXP:
                return [[W(ds='XF%d' % (k2 >> 2)), I('v_mfma_f32_4x4x4_16b_bf16 %s, %s, %s, %s' % (vr(SQ4A), vr(x2, 2), vr(x2, 2), '0' if k2 == 0 else vr(SQ4A)))], [rs],
                        [I('v_mfma_f32_4x4x4_16b_bf16 %s, %s, %s, %s' % (vr(SQ4A), vr(x2 + 2, 2), vr(x2 + 2, 2), vr(SQ4A)))]]
            return [[W(ds='XF%d' % (k2 >> 2))] + sq[0] + [rs], sq[1] + sq[2], sq[3]]
        if ks < 26: side = stat(ks)
        elif ks < 29:
            a1, a2 = stat(26 + 2 * (ks - 26)), stat(27 + 2 * (ks - 26))
            side = [a1[0] + a1[1], a1[2] + a2[0], a2[1] + a2[2]]
        else:
            sf = stats_final_items
            n = len(sf); k3 = ks - 29
            part = sf[n * k3 // 3: n * (k3 + 1) // 3]
            side = [part[:len(part) // 3], part[len(part) // 3: 2 * len(part) // 3], part[2 * len(part) // 3:]]
        for u in range(3):
            if 'mw' in EXP: it += [W(ds=['T1_%d_%d' % (ks, uu) for uu in range(3)] + ['XF%d' % c])]
            else: it += [W(ds=('T1_%d_%d' % (ks, u), 'XF%d' % c))]
            it.append(I('v_mfma_f32_32x32x16_bf16 %s, %s, %s, %s' % (acc(u), vr(b + 4 * u), vr(x), '0' if ks == 0 else acc(u))))
            if ks < 31: it += tr1(ks + 1, (u,))
            it += side[u]
            if u < len(vmg): it += vmg[u]
        for g in vmg[3:]: it += g
        if (ks & 7) == 5: it += cs1_read(d)
        if (ks & 3) == 1 and c < 6: it += stage(c + 1)
        if ks == 24: it += stage(7)
        R.run(it)
    mid = stamp() + cs1_mma(3) + cs_publish((0, 1, 2), CSA1) + [I('v_mov_b32 v%d, v%d' % (SEL2 + r, SEL1)) for r in range(4)]
    mid += [I('s_lshl_b32 s57, s20, 10'), I('s_lshl_b32 s58, s20, 9')]
    mid += [W(vm=('P2_0', 'P2_1'), ds='ALL'), I('s_barrier')] + stamp() + p2_dma(2) + p2_dma(3)
    late = []
    if 'nopf' not in EXP:
        late += [I('s_mov_b32 s62, 1835008'), I('s_mov_b32 s63, 0x20000'), I('s_mov_b32 s98, 0x80000'), I('s_mov_b32 s99, 0x20000'),
                 I('s_lshl_b32 s59, s2, 3'), I('s_add_u32 s59, s59, s20'), I('s_lshl_b32 s59, s59, 10'),
                 VM('buffer_load_dwordx4 v[44:47], v22, s[60:63], s59 offen', 'PF'), VM('buffer_load_dwordx4 v[44:47], v22, s[96:99], s59 offen', 'PF')]
    if 'midpf' in EXP:
        mid += touch_code('B', 16, 4) + late; late = []
    R.run(mid)
    st_save = _st[0]
    a('s_cmp_eq_u32 s23, 0\ns_cbranch_scc0 K1_VARB')
    for var in range(2):
        if var == 1: a('K1_VARB:')
        RR = copy.deepcopy(R); RR.a = a; _st[0] = st_save
        main = tr2(0, var, 0) + tr2(0, var, 1)
        body = []
        for ks in range(32):
            b = BR + 8 * (ks & 1); x = XR + 4 * ks
            if ks == 15: body.append([W(vm=('P2_2', 'P2_3')), I('s_barrier')])
            body.append([W(ds=('T2_%d_0' % ks, 'T2_%d_1' % ks) if 'mw' in EXP else 'T2_%d_0' % ks), I('v_mfma_f32_32x32x16_bf16 %s, %s, %s, %s' % (acc(3), vr(b), vr(x), '0' if ks == 0 else acc(3)))])
            if ks < 31: body.append(tr2(ks + 1, var, 0))
            if var == 0: mf = I('v_mfma_f32_32x32x16_bf16 %s, %s, %s, %s' % (acc(4), vr(x), vr(b + 4), '0' if ks == 0 else acc(4)))
            else: mf = I('v_mfma_f32_32x32x16_bf16 %s, %s, %s, %s' % (acc(4), vr(b + 4), vr(x), '0' if ks == 0 else acc(4)))
            body.append([W(ds='T2_%d_1' % ks), mf])
            if ks < 31: body.append(tr2(ks + 1, var, 1))
            for dd, kk in enumerate((5, 8, 16, 18)):
                if ks == kk: body.append(cs2(dd, var)[0])
                if ks == kk + 1: body.append(cs2(dd, var)[1])
            if ks == 2 and late: body.append(late)
            if ks == 3 and late: body.append(touch_code('B%d' % var, 16, 4, 19))
            if ks == 20: body.append(cs_publish((3, 4), CSA2, tmp=(19, 20, 144)))
            if ks == 23: body.append([W(ds='CSA'), I('s_barrier')])
            if ks == 25: body.append([DS('ds_read_b128 %s, v22 offset:%d' % (vr(144 + 4 * n), CSF + (3 + n) * 1024), 'CFF') for n in range(2)] + (v_pre() if var == 0 else []))
        side = []
        for u in range(3): side += mean_fix(u, 'MF%d' % u)
        if 'pk' in EXP: side += [W(vm='PF'), I('v_mov_b32 v44, v%d' % C0), I('v_mov_b32 v45, v%d' % C0), I('v_mov_b32 v46, v%d' % C1), I('v_mov_b32 v47, v%d' % C1), I('v_mov_b32 v2, v%d' % IRS2), I('v_mov_b32 v3, v%d' % IRS2)]
        for u in range(3): side += g_epilogue(u, (48, u * 1024))
        merged = merge(body, side)
        flat = []
        for x in merged:
            if isinstance(x, list): flat += x
            else: flat.append(x)
        RR.run(main + flat)
        fin = stamp() + stamp() + [W(ds='CFF'), I('v_mfma_f32_32x32x16_bf16 %s, %s, %s, %s' % (acc(3), vr(144), vr(MF), acc(3)))]
        if var == 0: fin.append(I('v_mfma_f32_32x32x16_bf16 %s, %s, %s, %s' % (acc(4), vr(MF), vr(148), acc(4))))
        else: fin.append(I('v_mfma_f32_32x32x16_bf16 %s, %s, %s, %s' % (acc(4), vr(148), vr(MF), acc(4))))
        fin += t_epilogue()
        if var == 0: fin += v_epilogue()
        else: fin += g_epilogue(4, (50, 0))
        fin += stamp() + ([I('s_waitcnt vmcnt(0)')] if STAMP else []) + stamp() + ([I('s_memrealtime s[94:95]')] if STAMP else []) + stamp_out(16 << 20)
        if DBGT:
            fin += [I('s_waitcnt vmcnt(0)'), I('s_memrealtime s[94:95]'), I('s_waitcnt lgkmcnt(0)'), I('s_lshl_b32 s54, s2, 3'), I('s_add_u32 s54, s54, s20'), I('s_lshl_b32 s54, s54, 3'), I('s_add_u32 s54, s54, %d' % (24 << 20)),
                    I('v_mov_b32 v1, 0'), I('v_mov_b32 v2, s92'), I('v_mov_b32 v3, s94'), I('buffer_store_dwordx2 v[2:3], v1, s[16:19], s54 offen')]
        RR.run(fin)
        if FUSED[0]: a('s_branch PHASE2' if var == 0 else 's_nop 0')
        else: a('s_endpgm' if var == 0 else 'K1_END:\ns_endpgm')
    if FUSED[0]: return a
    return a.finalize()

if __name__ == '__main__':
    print(len(build_k1().splitlines()))
```

```python
from asmlib import *
from sched import *
from k1 import QF, KF, VF, HF, OF, FLG, WS_RANGE, vr, f2u
import copy, os
import k1 as K1M
STAMP = int(os.environ.get('STAMP', '0'))
EARLYBAR = int(os.environ.get('EARLYBAR', '0'))
FLAGPOS = int(os.environ.get('FLAGPOS', '27'))
_st = [0]
SB0 = 96
def stamp():
    if not STAMP: return []
    k = _st[0]; _st[0] += 1
    return [I('s_memrealtime s[96:97]' if STAMP == 2 else 's_memtime s[96:97]'), I('s_waitcnt lgkmcnt(0)'), I('v_mov_b32 v%d, s96' % (240 + k))]
def stamp_out(base):
    if not STAMP: return []
    out = [I('s_lshl_b32 s54, s2, 3'), I('s_add_u32 s54, s54, s20'), I('s_lshl_b32 s54, s54, 7'), I('s_add_u32 s54, s54, %d' % base), I('v_mov_b32 v1, 0')]
    for k in range(16):
        out += [I('buffer_store_dword v%d, v1, s[16:19], s54 offen offset:%d' % (240 + k, 4 * k))]
    return out

DEPTH = int(os.environ.get('DEPTH', '8'))
LATEBAR = int(os.environ.get('LATEBAR', '0'))
P1SLEEP = int(os.environ.get('P1SLEEP', '16'))
GATE = int(os.environ.get('GATE', '22'))
STS = eval(os.environ.get('STS', '(4, 12, 20, 28)'))
PSLEEP = int(os.environ.get('PSLEEP', '1'))
RSZ = max(17408, DEPTH * 2048 + 1024)
FLAG = 4 * RSZ
OBUF = FLAG + 256
ODMA = int(os.environ.get('ODMA', '0'))
LDS_K2 = OBUF + (65536 if ODMA else 0)
NEG_BIG = 0xf149f2ca
GA = 16; GB = GA + 8 * DEPTH; GACC = GB + 16
AQ, AK, AV, SA, SB, CN, CT, AP, AO = 16, 24, 64, 144, 160, 176, 192, 208, 216
XRES = 232

def prologue(a):
    if K1M.FUSED[0]:
        a('''
PHASE2:
s_waitcnt vmcnt(0) lgkmcnt(0)
v_lshl_add_u32 v0, s20, 6, v0
''')
    else:
        a('''
s_cmp_ge_u32 s2, 256
s_cbranch_scc1 K2_END
''')
    a('''
s_memrealtime s[98:99]
s_load_dwordx2 s[4:5], s[0:1], 0
s_load_dwordx2 s[8:9], s[0:1], 16
s_load_dwordx2 s[12:13], s[0:1], 48
s_load_dwordx4 s[24:27], s[0:1], 56
s_load_dwordx2 s[16:17], s[0:1], 72
v_mov_b32 v15, v0
v_lshrrev_b32 v1, 6, v0
v_and_b32 v0, 63, v0
v_readfirstlane_b32 s20, v1
s_and_b32 s36, s2, 7
s_lshr_b32 s37, s2, 3
s_lshl_b32 s21, s36, 2
s_lshr_b32 s38, s37, 3
s_add_u32 s21, s21, s38
s_and_b32 s22, s37, 7
v_lshlrev_b32 v14, 4, v0
v_lshrrev_b32 v1, 3, v15
v_and_b32 v2, 7, v15
v_lshlrev_b32 v13, 10, v1
v_lshl_add_u32 v13, v2, 4, v13
v_mul_u32_u24 v12, 272, v1
v_lshl_add_u32 v12, v2, 5, v12
s_lshl_b32 s23, s21, 16
s_lshl_b32 s36, s22, 7
s_add_u32 s23, s23, s36
v_mov_b32 v1, 0
v_mov_b32 v2, %d
v_and_b32 v3, 7, v0
v_lshl_add_u32 v2, v3, 2, v2
ds_write_b32 v2, v1
s_waitcnt lgkmcnt(0)
s_mov_b32 s6, 0x200000
s_mov_b32 s7, 0x20000
s_mov_b32 s10, 0x80000
s_mov_b32 s11, 0x20000
s_mov_b32 s14, 1835008
s_mov_b32 s15, 0x20000
s_mov_b32 s18, %d
s_mov_b32 s19, 0x20000
s_mov_b32 s28, s24
s_mov_b32 s29, s25
s_mov_b32 s30, 0x200000
s_mov_b32 s31, 0x20000
s_mov_b32 s32, s26
s_mov_b32 s33, s27
s_mov_b32 s34, 256
s_mov_b32 s35, 0x20000
%s''' % (FLAG, WS_RANGE, 's_barrier\n' if (K1M.FUSED[0] or not LATEBAR) else ''))
    if K1M.FUSED[0]:
        a('''
s_cmp_lg_u32 s20, 4
s_cbranch_scc1 K2_NOF1
v_mov_b32 v1, 1
v_mov_b32 v2, s2
s_mov_b64 exec, 1
buffer_store_byte v1, v2, s[32:35], 0 offen sc1
s_mov_b64 exec, -1
K2_NOF1:
''')

def final_reduce(tagp):
    out = stamp() + [I('v_add_u32 v11, %d, v12' % (2 * RSZ)), I('s_barrier')] + stamp()
    T = 192
    for g in range(4):
        for hlf in range(2):
            out.append(DS('ds_read_b128 %s, v%d offset:%d' % (vr(T + 8 * g + 4 * hlf), 12 if g < 2 else 11, (g & 1) * RSZ + 16 * hlf), tagp + 'R'))
    out.append(W(vm='XRES'))
    for i in range(4):
        out.append(I('v_lshlrev_b32 v%d, 16, v%d' % (64 + 2 * i, XRES + i)))
        out.append(I('v_and_b32 v%d, 0xffff0000, v%d' % (65 + 2 * i, XRES + i)))
    out.append(W(ds=tagp + 'R'))
    for i in range(8): out.append(I('v_add_f32 v%d, v%d, v%d' % (T + i, T + i, T + 8 + i)))
    for i in range(8): out.append(I('v_add_f32 v%d, v%d, v%d' % (T + 16 + i, T + 16 + i, T + 24 + i)))
    for i in range(8): out.append(I('v_add_f32 v%d, v%d, v%d' % (T + i, T + i, T + 16 + i)))
    for i in range(8): out.append(I('v_add_f32 v%d, v%d, v%d' % (T + i, T + i, 64 + i)))
    for i in range(4): out.append(I('v_cvt_pk_bf16_f32 v%d, v%d, v%d' % (72 + i, T + 2 * i, T + 2 * i + 1)))
    out.append(VM('buffer_store_dwordx4 v[72:75], v13, s[28:31], s23 offen%s' % os.environ.get('OSF', ' sc1'), 'OUT'))
    out += stamp() + stamp_out(17 << 20)
    if K1M.DBGT:
        L = 'K2_DBG' + tagp
        out += [I('s_waitcnt vmcnt(0)'), I('s_memrealtime s[96:97]'), I('s_waitcnt lgkmcnt(0)'), I('v_mov_b32 v1, 0'), I('v_mov_b32 v2, s96'), I('s_not_b32 s98, s98'), I('v_mov_b32 v3, s98'),
                I('s_mov_b64 exec, 1'), I('buffer_atomic_umax v2, v1, s[32:35], 0 offen'), I('buffer_atomic_umax v3, v1, s[32:35], 0 offen offset:4'), I('s_mov_b64 exec, -1'),
                I('s_cmp_ge_u32 s2, 32'), I('s_cbranch_scc1 %s' % L),
                I('s_lshl_b32 s54, s2, 9'), I('s_add_u32 s54, s54, %d' % (24 << 20)), I('v_lshlrev_b32 v4, 3, v0'), I('buffer_load_dwordx2 v[2:3], v4, s[16:19], s54 offen'), I('s_waitcnt vmcnt(0)'),
                I('v_not_b32 v2, v2'), I('buffer_atomic_umax v2, v1, s[32:35], 0 offen offset:8'), I('buffer_atomic_umax v3, v1, s[32:35], 0 offen offset:12'), I(L + ':')]
    out.append(I('s_endpgm'))
    return out

def lds_spin(name, off, areg=4, treg=5):
    return [I(name + ':'), DS('ds_read_b32 v%d, v%d offset:%d' % (treg, areg, off), 'FL' + name), W(ds='ALL'), I('v_readfirstlane_b32 s52, v%d' % treg),
            I('s_cmp_lg_u32 s52, 0'), I('s_cbranch_scc1 %s_OK' % name), I('s_sleep 1'), I('s_branch %s' % name), I(name + '_OK:')]

def gemm(a):
    R = Resolver(a)
    txt = ('''
v_lshrrev_b32 v1, 3, v0
v_and_b32 v2, 7, v0
v_bfe_u32 v3, v0, 4, 1
v_lshlrev_b32 v3, 2, v3
v_xor_b32 v2, v2, v3
v_lshlrev_b32 v1, 10, v1
v_lshl_add_u32 v1, v2, 4, v1
v_lshrrev_b32 v2, 5, v0
v_bfe_u32 v3, v0, 2, 2
v_lshl_add_u32 v2, v2, 2, v3
v_lshlrev_b32 v2, 7, v2
v_lshrrev_b32 v3, 1, v3
v_lshl_add_u32 v2, v3, 6, v2
v_bfe_u32 v3, v0, 4, 1
v_lshl_add_u32 v2, v3, 5, v2
v_and_b32 v3, 3, v0
v_lshl_add_u32 v2, v3, 3, v2
s_mul_i32 s40, s20, %d
v_add_u32 v2, s40, v2
v_xor_b32 v3, 64, v2
s_mul_i32 s41, s21, 224
s_mul_i32 s36, s20, 28
s_add_u32 s41, s41, s36
s_lshl_b32 s41, s41, 10
s_add_u32 s41, s41, %d
s_add_u32 s42, s41, 114688
s_mul_i32 s43, s20, 458752
s_lshl_b32 s36, s22, 7
s_add_u32 s43, s43, s36
s_lshl_b32 s44, s21, 6
s_lshl_b32 s37, s20, 3
s_add_u32 s44, s44, s37
s_lshl_b32 s44, s44, 10
s_add_u32 s44, s44, %d
s_add_u32 s45, s44, 32768
s_lshl_b32 s46, s20, 17
s_add_u32 s46, s46, s36
v_mov_b32 v4, %d
''' % (RSZ, HF, OF, FLAG))
    a(txt)
    def LA(s):
        out = []
        for t in range(2):
            dst = vr(GA + 8 * (s % DEPTH) + 4 * t)
            if s < 28:
                out.append(I('s_add_u32 s50, s%d, %d' % (41 + t, s * 1024)))
                out.append(VM('buffer_load_dwordx4 %s, v14, s[16:19], s50 offen%s' % (dst, ' sc1' if K1M.FUSED[0] else ''), 'A%d' % s))
            else:
                out.append(I('s_add_u32 s50, s%d, %d' % (44 + t, (s - 28) * 1024)))
                out.append(VM('buffer_load_dwordx4 %s, v14, s[16:19], s50 offen sc1' % dst, 'A%d' % s))
        return out
    def LW(s):
        out = []
        for i in range(2):
            if s < 28:
                out.append(I('s_add_u32 s51, s43, %d' % ((16 * s + 8 * i) * 1024))); srd = 's[12:15]'
            else:
                out.append(I('s_add_u32 s51, s46, %d' % ((16 * (s - 28) + 8 * i) * 1024))); srd = 's[8:11]'
            out.append(I('s_add_u32 m0, s40, %d' % ((s % DEPTH) * 2048 + i * 1024)))
            out.append(VM('buffer_load_dwordx4 v1, %s, s51 offen lds' % srd, 'W%d' % s))
        return out
    def TR(s):
        out = [W(vm='W%d' % s)]
        for cti in range(2):
            for sec in range(2):
                out.append(DS('ds_read_b64_tr_b16 %s, v%d offset:%d' % (vr(GB + 8 * (s & 1) + 4 * cti + 2 * sec, 2), 2 + cti, (s % DEPTH) * 2048 + sec * 1024), 'T%d' % s))
        return out
    _st[0] = 0
    it = stamp() + ([I('s_barrier')] if EARLYBAR else [])
    if K1M.FUSED[0]:
        it.append(VM('buffer_load_dwordx4 %s, v13, s[4:7], s23 offen' % vr(XRES), 'XRES'))
        for s in range(8): it += LW(s)
        it += lds_spin('K2_GW1', 4)
        for s in range(8): it += LA(s)
    else:
        for s in range(DEPTH): it += LW(s) + LA(s)
    if not K1M.FUSED[0]: it.append(VM('buffer_load_dwordx4 %s, v13, s[4:7], s23 offen' % vr(XRES), 'XRES'))
    it += stamp() + TR(0)
    pend = []
    for s in range(36):
        if s in STS: it += stamp()
        if s == 4 and LATEBAR and not K1M.FUSED[0]: it.append(I('s_barrier'))
        if s == GATE: it += [I('v_mov_b32 v5, 1'), DS('ds_write_b32 v4, v5 offset:12', 'GT')]
        it.append(W(ds=('T%d' % s, 'A%d' % s)) if (ODMA and s >= 28) else W(vm='A%d' % s, ds='T%d' % s))
        mm = []
        for t in range(2):
            for cti in range(2):
                ac = vr(GACC + 16 * (2 * t + cti), 16)
                mm.append(I('v_mfma_f32_32x32x16_bf16 %s, %s, %s, %s' % (ac, vr(GB + 8 * (s & 1) + 4 * cti), vr(GA + 8 * (s % DEPTH) + 4 * t), '0' if s == 0 else ac)))
        it += mm[:2]
        if s < 35: it += TR(s + 1)
        it += mm[2:]
        n = s + DEPTH
        if n < 36: it += LW(n)
        n = s + DEPTH - 1
        if DEPTH <= n < 28: it += LA(n)
        if ODMA:
            if s == 27:
                it += [I('s_lshl_b32 s52, s20, 2'), I('v_add_u32 v6, s52, v4'), I('s_lshl_b32 s52, s20, 14'), I('s_add_u32 s52, s52, %d' % OBUF), I('v_add_u32 v7, s52, v14')]
                it += lds_spin('K2_FW', 16, 6, 5) + stamp()
                for p in range(28, 36):
                    for t in range(2):
                        it.append(DS('ds_read_b128 %s, v7 offset:%d' % (vr(GA + 8 * (p % DEPTH) + 4 * t), (2 * (p - 28) + t) * 1024), 'A%d' % p))
        elif s == FLAGPOS:
            it += [I('K2_FW:'), DS('ds_read_b32 v5, v4', 'FL'), W(ds='ALL'), I('v_readfirstlane_b32 s52, v5'),
                   I('s_cmp_lg_u32 s52, 0'), I('s_cbranch_scc1 K2_FOK'), I('s_sleep 1'), I('s_branch K2_FW'), I('K2_FOK:')]
            it += stamp()
            for p in range(28, min(36, n + 1)): it += LA(p)
        elif s > FLAGPOS and 28 <= n < 36: it += LA(n)
    it += [I('v_and_b32 v5, 31, v0'), I('v_mul_u32_u24 v5, 272, v5'), I('v_lshrrev_b32 v6, 5, v0'), I('v_lshl_add_u32 v5, v6, 4, v5'), I('v_add_u32 v5, s40, v5')]
    for t in range(2):
        for cti in range(2):
            for q in range(4):
                it.append(DS('ds_write_b128 v5, %s offset:%d' % (vr(GACC + 16 * (2 * t + cti) + 4 * q), t * 32 * 272 + cti * 128 + q * 32), 'RW'))
    it.append(W(ds='ALL'))
    it += final_reduce('G')
    R.run(it)

_l = [0]
def lab(p):
    _l[0] += 1
    return 'K2_%s%d' % (p, _l[0])

def attn(a):
    R = Resolver(a)
    a('''
s_setprio APRIO
s_sub_u32 s36, s20, 4
s_lshl_b32 s40, s22, 2
s_add_u32 s40, s40, s36
s_lshl_b32 s41, s21, 1
s_sub_u32 s41, s41, 8
s_lshl_b32 s42, s40, 16
v_and_b32 v1, 15, v0
v_lshrrev_b32 v2, 5, v0
v_lshlrev_b32 v1, 4, v1
v_lshl_add_u32 v1, v2, 8, v1
v_bfe_u32 v3, v0, 4, 1
v_lshl_add_u32 v1, v3, 9, v1
v_and_b32 v3, 31, v0
v_lshlrev_b32 v2, 2, v2
v_sub_u32 v3, v3, v2
v_mov_b32 v4, 0x%08x
'''.replace('APRIO', os.environ.get('APRIO', '3')) % NEG_BIG)
    _st[0] = 0
    it = stamp()
    SC = ' sc1' if K1M.FUSED[0] else ''
    if K1M.FUSED[0]:
        it += [I('v_mov_b32 v7, %d' % FLAG), I('s_cmp_lg_u32 s20, 4'), I('s_cbranch_scc1 K2_AW1'),
               I('s_lshr_b32 s36, s21, 2'), I('s_max_i32 s37, s41, 0'), I('s_lshr_b32 s37, s37, 3'),
               I('v_bfe_u32 v5, v0, 1, 2'), I('v_mov_b32 v6, 0')]
        for sr in (36, 37):
            it += [I('s_and_b32 s38, s%d, 3' % sr), I('s_cmp_ge_u32 s%d, 4' % sr), I('s_mov_b32 s39, 0x00010001'), I('s_cselect_b32 s39, 0x01000100, s39'),
                   I('v_cmp_eq_u32 vcc, s38, v5'), I('v_mov_b32 v8, s39'), I('v_cndmask_b32 v8, 0, v8, vcc'), I('v_or_b32 v6, v6, v8')]
        it += [I('v_lshlrev_b32 v5, 2, v0'),
               I('K2_P1:'), I('s_sleep %d' % P1SLEEP), VM('buffer_load_dword v8, v5, s[32:35], 0 offen sc1', 'PL1'), W(vm='ALL'),
               I('v_lshrrev_b32 v9, 1, v8'), I('v_or_b32 v8, v8, v9'), I('v_and_b32 v8, v8, v6'), I('v_cmp_eq_u32 vcc, v8, v6'),
               I('s_cmp_eq_u64 vcc, -1'), I('s_cbranch_scc1 K2_P1D'), I('s_branch K2_P1'), I('K2_P1D:'),
               I('v_mov_b32 v8, 1'), DS('ds_write_b32 v7, v8 offset:4', 'FW1'), W(ds='ALL')]
        it += lds_spin('K2_AW1', 4, 7, 8)
    it += [I('s_lshl_b32 s37, s21, 11'), I('s_add_u32 s37, s37, s42')]
    it.append(VM('buffer_load_dwordx4 %s, v14, s[16:19], s37 offen%s' % (vr(AQ), SC), 'Q0'))
    def kload(jj):
        return [I('s_add_i32 s36, s41, %d' % jj), I('s_max_i32 s36, s36, 0'), I('s_lshl_b32 s36, s36, 10'), I('s_add_u32 s%d, s36, s42' % (44 + jj)),
                I('s_add_u32 s36, s%d, %d' % (44 + jj, KF)),
                VM('buffer_load_dwordx4 %s, v14, s[16:19], s36 offen%s' % (vr(AK + 4 * jj), SC), 'K%d' % jj)]
    def vload(jj):
        return [I('s_add_u32 s36, s%d, %d' % (44 + jj, VF)), VM('buffer_load_dwordx4 %s, v1, s[16:19], s36 offen%s' % (vr(AV + 8 * jj), SC), 'V%d' % jj)]
    for jj in range(8, -1, -1): it += kload(jj)
    it.append(VM('buffer_load_dwordx4 %s, v14, s[16:19], s37 offen offset:1024%s' % (vr(AQ + 4), SC), 'Q1'))
    it += kload(9)
    if EARLYBAR: it.append(I('s_barrier'))
    for r in range(16):
        it.append(I('v_cmp_ge_i32 s[%d:%d], v3, %d' % (64 + 2 * r, 65 + 2 * r, 8 * (r >> 2) + (r & 3))))
    for jj in range(10):
        for r in range(4): it.append(I('v_mov_b32 v%d, 0x3f803f80' % (AV + 8 * jj + 4 + r)))
    vl = [vload(jj) for jj in list(range(8, -1, -1)) + [9]] + [[VM('buffer_load_dwordx4 %s, v13, s[4:7], s23 offen' % vr(XRES), 'XRES')]]
    def smfma(qi, jp, buf, cmode):
        jj = qi + jp
        out = [W(vm=('Q%d' % qi, 'K%d' % jj))]
        if jp == 8 or jp == 0:
            val = '0' if cmode == 'A' else 'v%d' % CN
            for r in range(16):
                m = 's[%d:%d]' % (64 + 2 * r, 65 + 2 * r)
                if jp == 8: out.append(I('v_cndmask_b32 v%d, v4, %s, %s' % (CT + r, val, m)))
                else: out.append(I('v_cndmask_b32 v%d, %s, v4, %s' % (CT + r, val, m)))
            c = vr(CT, 16)
        else:
            c = '0' if cmode == 'A' else vr(CN, 16)
        out.append(I('v_mfma_f32_32x32x16_bf16 %s, %s, %s, %s' % (vr(buf, 16), vr(AK + 4 * jj), vr(AQ + 4 * qi), c)))
        return out
    def one_pass(qi, cmode, fast, proc):
        bufs = (SA, SB)
        out = smfma(qi, 8, bufs[0], cmode)
        Ld = lab('D')
        for n, jp in enumerate(range(8, -1, -1)):
            if jp > 0:
                Ls = lab('S')
                if not fast: out += [I('s_add_i32 s36, s41, %d' % (qi + jp - 1)), I('s_cmp_lt_i32 s36, 0'), I('s_cbranch_scc1 %s' % Ls)]
                out += smfma(qi, jp - 1, bufs[(n + 1) & 1], cmode)
                if not fast: out += [I(Ls + ':')]
            out += proc(jp, bufs[n & 1])
            if jp > 0 and not fast: out += [I('s_add_i32 s36, s41, %d' % (qi + jp - 1)), I('s_cmp_lt_i32 s36, 0'), I('s_cbranch_scc1 %s' % Ld)]
        if not fast: out += [I(Ld + ':'), I('s_nop 15')]
        return out
    def body(fast):
        it = []
        swapped = set()
        if not fast:
            for g in vl: it += g
            it.append(W(vm='ALL'))
            for jj in range(10):
                for r in range(4): it.append(I('v_permlane16_swap_b32 v%d, v%d' % (AV + 8 * jj + r, AV + 8 * jj + 4 + r)))
                swapped.add(jj)
        for qi in range(2):
            pend = list(vl) if (fast and qi == 0) else []
            def procA(jp, b):
                o = [I('v_max3_f32 v5, v%d, v%d, v5' % (b + 2 * i, b + 2 * i + 1)) for i in range(8)]
                if pend: o += pend.pop(0)
                if pend and jp < 3: o += pend.pop(0)
                return o
            it += (stamp() if fast else []) + [I('v_mov_b32 v5, v4')] + one_pass(qi, 'A', fast, procA)
            for g in pend: it += g
            it += [I('v_mov_b32 v6, v5'), I('v_permlane32_swap_b32 v5, v6'), I('v_max_f32 v5, v5, v6'), I('v_sub_f32 v%d, 0, v5' % CN)]
            for r in range(1, 16): it.append(I('v_mov_b32 v%d, v%d' % (CN + r, CN)))
            def procB(jp, b):
                jj = qi + jp
                o = []
                if jj not in swapped:
                    swapped.add(jj)
                    o.append(W(vm='V%d' % jj))
                    o += [I('v_permlane16_swap_b32 v%d, v%d' % (AV + 8 * jj + r, AV + 8 * jj + 4 + r)) for r in range(4)]
                o += [I('v_exp_f32 v%d, v%d' % (b + r, b + r)) for r in range(16)]
                o += [I('v_cvt_pk_bf16_f32 v%d, v%d, v%d' % (AP + p, b + 2 * p, b + 2 * p + 1)) for p in range(8)]
                for hf in range(2):
                    o.append(I('v_mfma_f32_32x32x16_bf16 %s, %s, %s, %s' % (vr(AO, 16), vr(AV + 8 * jj + 4 * hf), vr(AP + 4 * hf), '0' if (jp == 8 and hf == 0) else vr(AO, 16))))
                return o
            it += (stamp() if fast else []) + one_pass(qi, 'B', fast, procB)
            it.append(I('v_rcp_f32 v6, v%d' % (AO + 8)))
            for r in range(8): it.append(I('v_mul_f32 v%d, v%d, v6' % (AO + r, AO + r)))
            for p in range(4): it.append(I('v_cvt_pk_bf16_f32 v%d, v%d, v%d' % (8 + p, AO + 2 * p, AO + 2 * p + 1)))
            it += [I('s_lshl_b32 s36, s21, 6'), I('s_add_u32 s36, s36, s40'), I('s_lshl_b32 s36, s36, 10'), I('s_add_u32 s36, s36, %d' % (OF + qi * 32768))]
            it.append(VM('buffer_store_dwordx4 v[8:11], v14, s[16:19], s36 offen sc1', 'OST'))
            if qi == 0 and LATEBAR and not K1M.FUSED[0]: it.append(I('s_barrier'))
        return it
    it += [I('s_cmp_ge_u32 s21, 4'), I('s_cbranch_scc1 K2_AFAST')]
    R.run(it)
    R2 = copy.deepcopy(R); R2.a = a
    R2.run(body(False) + [I('s_branch K2_AJOIN'), I('K2_AFAST:')])
    it = body(True) + [I('K2_AJOIN:')]
    it += stamp() + [W(vm='ALL')] + stamp()
    if K1M.FUSED[0]:
        it += [I('v_mov_b32 v5, %d' % FLAG), I('v_mov_b32 v6, 1'), I('s_mov_b64 exec, 1'), DS('ds_add_rtn_u32 v7, v5, v6 offset:8', 'CNT'), W(ds='ALL'), I('s_mov_b64 exec, -1'),
               I('v_readfirstlane_b32 s36, v7'), I('s_cmp_lg_u32 s36, 3'), I('s_cbranch_scc1 K2_NSIG'),
               I('v_mov_b32 v7, 2'), I('v_mov_b32 v8, s2'), I('s_mov_b64 exec, 1'), I('buffer_store_byte v7, v8, s[32:35], 0 offen sc1'), I('s_mov_b64 exec, -1'), I('K2_NSIG:'),
               I('s_cmp_lg_u32 s20, 4'), I('s_cbranch_scc1 K2_AFIN'),
               I('s_and_b32 s36, s21, 3'), I('s_lshr_b32 s37, s21, 4'), I('s_lshr_b32 s38, s21, 2'), I('s_and_b32 s38, s38, 3'), I('s_lshl_b32 s38, s38, 3'), I('s_lshl_b32 s38, 2, s38'),
               I('v_lshrrev_b32 v7, 4, v0'), I('v_cmp_eq_u32 vcc, s36, v7'), I('v_mov_b32 v8, s38'), I('v_cndmask_b32 v8, 0, v8, vcc'),
               I('v_and_b32 v7, 1, v0'), I('v_cmp_eq_u32 vcc, s37, v7'), I('v_cndmask_b32 v8, 0, v8, vcc'), I('v_lshlrev_b32 v9, 2, v0')] + lds_spin('K2_GATE', 12, 5, 7) + [
               I('K2_POLL:'), VM('buffer_load_dword v7, v9, s[32:35], 0 offen sc1', 'PL'), W(vm='ALL'), I('v_and_b32 v7, v7, v8'), I('v_cmp_eq_u32 vcc, v7, v8'),
               I('s_cmp_eq_u64 vcc, -1'), I('s_cbranch_scc1 K2_PDONE'), I('s_sleep 8'), I('s_branch K2_POLL'), I('K2_PDONE:'),
               DS('ds_write_b32 v5, v6', 'FW'), W(ds='ALL'), I('K2_AFIN:')]
    else:
        it += [I('s_lshl_b32 s37, s21, 7'), I('s_add_u32 s37, s37, %d' % FLG), I('s_lshl_b32 s36, s40, 2'), I('s_and_b32 s36, s36, 127'), I('v_mov_b32 v5, s36'), I('v_mov_b32 v6, 1'),
               I('s_mov_b64 exec, 1'), VM('buffer_store_dword v6, v5, s[16:19], s37 offen sc1', 'AT'), I('s_mov_b64 exec, -1'),
               I('s_cmp_lg_u32 s20, 4'), I('s_cbranch_scc1 K2_AFIN'),
               I('v_mov_b32 v8, %d' % FLAG)] + (lds_spin('K2_GATE', 12, 8, 9) if GATE >= 0 else []) + [I('v_and_b32 v5, 31, v0'), I('v_lshlrev_b32 v5, 2, v5'),
               I('s_mov_b32 s53, 0'),
               I('K2_POLL:'), VM('buffer_load_dword v7, v5, s[16:19], s37 offen sc1', 'PL'), W(vm='ALL'), I('v_cmp_ne_u32 vcc, 0, v7'),
               I('s_cmp_eq_u64 vcc, -1'), I('s_cbranch_scc1 K2_PDONE'), I('s_add_u32 s53, s53, 1'), I('s_cmp_gt_u32 s53, 0x100000'), I('s_cbranch_scc1 K2_PDONE'),
               I('s_sleep %d' % PSLEEP), I('s_branch K2_POLL'), I('K2_PDONE:'),
               I('v_mov_b32 v5, %d' % FLAG), DS('ds_write_b32 v5, v6', 'FW'), W(ds='ALL'), I('K2_AFIN:')]
    if ODMA:
        it += [I('v_mov_b32 v8, %d' % FLAG)] + lds_spin('K2_OG', 0, 8, 9)
        it += [I('s_sub_u32 s36, s20, 4'), I('s_lshl_b32 s37, s21, 6'), I('s_lshl_b32 s38, s36, 3'), I('s_add_u32 s37, s37, s38'), I('s_lshl_b32 s37, s37, 10'), I('s_add_u32 s37, s37, %d' % OF),
               I('s_lshl_b32 s38, s36, 14'), I('s_add_u32 s38, s38, %d' % OBUF)]
        for p in range(8):
            for t in range(2):
                it += [I('s_add_u32 s39, s37, %d' % (p * 1024 + t * 32768)), I('s_add_u32 m0, s38, %d' % ((2 * p + t) * 1024)),
                       VM('buffer_load_dwordx4 v14, s[16:19], s39 offen sc1 lds', 'OD')]
        it += [W(vm='ALL'), I('s_lshl_b32 s36, s36, 2'), I('v_add_u32 v8, s36, v8'), I('v_mov_b32 v9, 1'), DS('ds_write_b32 v8, v9 offset:16', 'ORD'), W(ds='ALL')]
    it += final_reduce('A')
    R.run(it)

def build_k2(a=None):
    if a is None: a = Asm()
    prologue(a)
    a('s_cmp_ge_u32 s20, 4\ns_cbranch_scc1 K2_ATT')
    gemm(a)
    a('K2_ATT:')
    attn(a)
    a('K2_END:\nK1_END:\ns_endpgm' if K1M.FUSED[0] else 'K2_END:\ns_endpgm')
    return a.finalize()

if __name__ == '__main__':
    print(len(build_k2().splitlines()))
```

```python
from asmlib import *
from sched import *
from k1 import QF, KF, VF, HF, OF, FLG, WS_RANGE, vr, f2u
import copy, os
import k1 as K1M
STAMP = int(os.environ.get('STAMP', '0'))
EARLYBAR = int(os.environ.get('EARLYBAR', '0'))
FLAGPOS = int(os.environ.get('FLAGPOS', '27'))
_st = [0]
SB0 = 96
def stamp():
    if not STAMP: return []
    k = _st[0]; _st[0] += 1
    return [I('s_memrealtime s[96:97]' if STAMP == 2 else 's_memtime s[96:97]'), I('s_waitcnt lgkmcnt(0)'), I('v_mov_b32 v%d, s96' % (240 + k))]
def stamp_out(base):
    if not STAMP: return []
    out = [I('s_lshl_b32 s54, s2, 3'), I('s_add_u32 s54, s54, s20'), I('s_lshl_b32 s54, s54, 7'), I('s_add_u32 s54, s54, %d' % base), I('v_mov_b32 v1, 0')]
    for k in range(16):
        out += [I('buffer_store_dword v%d, v1, s[16:19], s54 offen offset:%d' % (240 + k, 4 * k))]
    return out

DEPTH = int(os.environ.get('DEPTH', '8'))
LATEBAR = int(os.environ.get('LATEBAR', '0'))
P1SLEEP = int(os.environ.get('P1SLEEP', '16'))
GATE = int(os.environ.get('GATE', '22'))
STS = eval(os.environ.get('STS', '(4, 12, 20, 28)'))
PSLEEP = int(os.environ.get('PSLEEP', '1'))
RSZ = max(17408, DEPTH * 2048 + 1024)
FLAG = 4 * RSZ
OBUF = FLAG + 256
ODMA = int(os.environ.get('ODMA', '0'))
LDS_K2 = OBUF + (65536 if ODMA else 0)
NEG_BIG = 0xf149f2ca
GA = 16; GB = GA + 8 * DEPTH; GACC = GB + 16
AQ, AK, AV, SA, SB, CN, CT, AP, AO = 16, 24, 64, 144, 160, 176, 192, 208, 216
XRES = 232

def prologue(a):
    if K1M.FUSED[0]:
        a('''
PHASE2:
s_waitcnt vmcnt(0) lgkmcnt(0)
v_lshl_add_u32 v0, s20, 6, v0
''')
    else:
        a('''
s_cmp_ge_u32 s2, 256
s_cbranch_scc1 K2_END
''')
    if K1M.DBGT: a('s_memrealtime s[98:99]')
    a('''
s_load_dwordx2 s[4:5], s[0:1], 0
s_load_dwordx2 s[8:9], s[0:1], 16
s_load_dwordx2 s[12:13], s[0:1], 48
s_load_dwordx4 s[24:27], s[0:1], 56
s_load_dwordx2 s[16:17], s[0:1], 72
v_mov_b32 v15, v0
v_lshrrev_b32 v1, 6, v0
v_and_b32 v0, 63, v0
v_readfirstlane_b32 s20, v1
s_and_b32 s36, s2, 7
s_lshr_b32 s37, s2, 3
s_lshl_b32 s21, s36, 2
s_lshr_b32 s38, s37, 3
s_add_u32 s21, s21, s38
s_and_b32 s22, s37, 7
v_lshlrev_b32 v14, 4, v0
v_lshrrev_b32 v1, 3, v15
v_and_b32 v2, 7, v15
v_lshlrev_b32 v13, 10, v1
v_lshl_add_u32 v13, v2, 4, v13
v_mul_u32_u24 v12, 272, v1
v_lshl_add_u32 v12, v2, 5, v12
s_lshl_b32 s23, s21, 16
s_lshl_b32 s36, s22, 7
s_add_u32 s23, s23, s36
v_mov_b32 v1, 0
v_mov_b32 v2, %d
v_and_b32 v3, 7, v0
v_lshl_add_u32 v2, v3, 2, v2
ds_write_b32 v2, v1
s_waitcnt lgkmcnt(0)
s_mov_b32 s6, 0x200000
s_mov_b32 s7, 0x20000
s_mov_b32 s10, 0x80000
s_mov_b32 s11, 0x20000
s_mov_b32 s14, 1835008
s_mov_b32 s15, 0x20000
s_mov_b32 s18, %d
s_mov_b32 s19, 0x20000
s_mov_b32 s28, s24
s_mov_b32 s29, s25
s_mov_b32 s30, 0x200000
s_mov_b32 s31, 0x20000
s_mov_b32 s32, s26
s_mov_b32 s33, s27
s_mov_b32 s34, 256
s_mov_b32 s35, 0x20000
%s''' % (FLAG, WS_RANGE, 's_barrier\n' if (K1M.FUSED[0] or not (LATEBAR or EARLYBAR)) else ''))
    if K1M.FUSED[0]:
        a('''
s_cmp_lg_u32 s20, 4
s_cbranch_scc1 K2_NOF1
v_mov_b32 v1, 1
v_mov_b32 v2, s2
s_mov_b64 exec, 1
buffer_store_byte v1, v2, s[32:35], 0 offen sc1
s_mov_b64 exec, -1
K2_NOF1:
''')

def final_reduce(tagp):
    out = stamp() + [I('v_add_u32 v11, %d, v12' % (2 * RSZ)), I('s_barrier')] + stamp()
    T = 192
    for g in range(4):
        for hlf in range(2):
            out.append(DS('ds_read_b128 %s, v%d offset:%d' % (vr(T + 8 * g + 4 * hlf), 12 if g < 2 else 11, (g & 1) * RSZ + 16 * hlf), tagp + 'R'))
    out.append(W(vm='XRES'))
    for i in range(4):
        out.append(I('v_lshlrev_b32 v%d, 16, v%d' % (64 + 2 * i, XRES + i)))
        out.append(I('v_and_b32 v%d, 0xffff0000, v%d' % (65 + 2 * i, XRES + i)))
    out.append(W(ds=tagp + 'R'))
    for i in range(8): out.append(I('v_add_f32 v%d, v%d, v%d' % (T + i, T + i, T + 8 + i)))
    for i in range(8): out.append(I('v_add_f32 v%d, v%d, v%d' % (T + 16 + i, T + 16 + i, T + 24 + i)))
    for i in range(8): out.append(I('v_add_f32 v%d, v%d, v%d' % (T + i, T + i, T + 16 + i)))
    for i in range(8): out.append(I('v_add_f32 v%d, v%d, v%d' % (T + i, T + i, 64 + i)))
    for i in range(4): out.append(I('v_cvt_pk_bf16_f32 v%d, v%d, v%d' % (72 + i, T + 2 * i, T + 2 * i + 1)))
    out.append(VM('buffer_store_dwordx4 v[72:75], v13, s[28:31], s23 offen%s' % os.environ.get('OSF', ' sc1'), 'OUT'))
    out += stamp() + stamp_out(17 << 20)
    if K1M.DBGT:
        L = 'K2_DBG' + tagp
        out += [I('s_waitcnt vmcnt(0)'), I('s_memrealtime s[96:97]'), I('s_waitcnt lgkmcnt(0)'), I('v_mov_b32 v1, 0'), I('v_mov_b32 v2, s96'), I('s_not_b32 s98, s98'), I('v_mov_b32 v3, s98'),
                I('s_mov_b64 exec, 1'), I('buffer_atomic_umax v2, v1, s[32:35], 0 offen'), I('buffer_atomic_umax v3, v1, s[32:35], 0 offen offset:4'), I('s_mov_b64 exec, -1'),
                I('s_cmp_ge_u32 s2, 32'), I('s_cbranch_scc1 %s' % L),
                I('s_lshl_b32 s54, s2, 9'), I('s_add_u32 s54, s54, %d' % (24 << 20)), I('v_lshlrev_b32 v4, 3, v0'), I('buffer_load_dwordx2 v[2:3], v4, s[16:19], s54 offen'), I('s_waitcnt vmcnt(0)'),
                I('v_not_b32 v2, v2'), I('buffer_atomic_umax v2, v1, s[32:35], 0 offen offset:8'), I('buffer_atomic_umax v3, v1, s[32:35], 0 offen offset:12'), I(L + ':')]
    out.append(I('s_endpgm'))
    return out

def lds_spin(name, off, areg=4, treg=5):
    return [I(name + ':'), DS('ds_read_b32 v%d, v%d offset:%d' % (treg, areg, off), 'FL' + name), W(ds='ALL'), I('v_readfirstlane_b32 s52, v%d' % treg),
            I('s_cmp_lg_u32 s52, 0'), I('s_cbranch_scc1 %s_OK' % name), I('s_sleep 1'), I('s_branch %s' % name), I(name + '_OK:')]

def gemm(a):
    R = Resolver(a)
    txt = ('''
v_lshrrev_b32 v1, 3, v0
v_and_b32 v2, 7, v0
v_bfe_u32 v3, v0, 4, 1
v_lshlrev_b32 v3, 2, v3
v_xor_b32 v2, v2, v3
v_lshlrev_b32 v1, 10, v1
v_lshl_add_u32 v1, v2, 4, v1
v_lshrrev_b32 v2, 5, v0
v_bfe_u32 v3, v0, 2, 2
v_lshl_add_u32 v2, v2, 2, v3
v_lshlrev_b32 v2, 7, v2
v_lshrrev_b32 v3, 1, v3
v_lshl_add_u32 v2, v3, 6, v2
v_bfe_u32 v3, v0, 4, 1
v_lshl_add_u32 v2, v3, 5, v2
v_and_b32 v3, 3, v0
v_lshl_add_u32 v2, v3, 3, v2
s_mul_i32 s40, s20, %d
v_add_u32 v2, s40, v2
v_xor_b32 v3, 64, v2
s_mul_i32 s41, s21, 224
s_mul_i32 s36, s20, 28
s_add_u32 s41, s41, s36
s_lshl_b32 s41, s41, 10
s_add_u32 s41, s41, %d
s_add_u32 s42, s41, 114688
s_mul_i32 s43, s20, 458752
s_lshl_b32 s36, s22, 7
s_add_u32 s43, s43, s36
s_lshl_b32 s44, s21, 6
s_lshl_b32 s37, s20, 3
s_add_u32 s44, s44, s37
s_lshl_b32 s44, s44, 10
s_add_u32 s44, s44, %d
s_add_u32 s45, s44, 32768
s_lshl_b32 s46, s20, 17
s_add_u32 s46, s46, s36
v_mov_b32 v4, %d
''' % (RSZ, HF, OF, FLAG))
    a(txt)
    def LA(s):
        out = []
        for t in range(2):
            dst = vr(GA + 8 * (s % DEPTH) + 4 * t)
            if s < 28:
                out.append(I('s_add_u32 s50, s%d, %d' % (41 + t, s * 1024)))
                out.append(VM('buffer_load_dwordx4 %s, v14, s[16:19], s50 offen%s' % (dst, ' sc1' if K1M.FUSED[0] else ''), 'A%d' % s))
            else:
                out.append(I('s_add_u32 s50, s%d, %d' % (44 + t, (s - 28) * 1024)))
                out.append(VM('buffer_load_dwordx4 %s, v14, s[16:19], s50 offen sc1' % dst, 'A%d' % s))
        return out
    def LW(s):
        out = []
        for i in range(2):
            if s < 28:
                out.append(I('s_add_u32 s51, s43, %d' % ((16 * s + 8 * i) * 1024))); srd = 's[12:15]'
            else:
                out.append(I('s_add_u32 s51, s46, %d' % ((16 * (s - 28) + 8 * i) * 1024))); srd = 's[8:11]'
            out.append(I('s_add_u32 m0, s40, %d' % ((s % DEPTH) * 2048 + i * 1024)))
            out.append(VM('buffer_load_dwordx4 v1, %s, s51 offen lds' % srd, 'W%d' % s))
        return out
    def TR(s):
        out = [W(vm='W%d' % s)]
        for cti in range(2):
            for sec in range(2):
                out.append(DS('ds_read_b64_tr_b16 %s, v%d offset:%d' % (vr(GB + 8 * (s & 1) + 4 * cti + 2 * sec, 2), 2 + cti, (s % DEPTH) * 2048 + sec * 1024), 'T%d' % s))
        return out
    _st[0] = 0
    it = stamp() + ([I('s_barrier')] if EARLYBAR == 1 else [])
    if K1M.FUSED[0]:
        it.append(VM('buffer_load_dwordx4 %s, v13, s[4:7], s23 offen' % vr(XRES), 'XRES'))
        for s in range(8): it += LW(s)
        it += lds_spin('K2_GW1', 4)
        for s in range(8): it += LA(s)
    else:
        for s in range(DEPTH):
            it += LW(s) + LA(s)
            if EARLYBAR == 2 and s == 0: it.append(I('s_barrier'))
    if not K1M.FUSED[0]: it.append(VM('buffer_load_dwordx4 %s, v13, s[4:7], s23 offen' % vr(XRES), 'XRES'))
    it += stamp() + TR(0)
    pend = []
    for s in range(36):
        if s in STS: it += stamp()
        if s == 4 and LATEBAR and not K1M.FUSED[0]: it.append(I('s_barrier'))
        if s == GATE: it += [I('v_mov_b32 v5, 1'), DS('ds_write_b32 v4, v5 offset:12', 'GT')]
        it.append(W(ds=('T%d' % s, 'A%d' % s)) if (ODMA and s >= 28) else W(vm='A%d' % s, ds='T%d' % s))
        mm = []
        for t in range(2):
            for cti in range(2):
                ac = vr(GACC + 16 * (2 * t + cti), 16)
                mm.append(I('v_mfma_f32_32x32x16_bf16 %s, %s, %s, %s' % (ac, vr(GB + 8 * (s & 1) + 4 * cti), vr(GA + 8 * (s % DEPTH) + 4 * t), '0' if s == 0 else ac)))
        it += mm[:2]
        if s < 35: it += TR(s + 1)
        it += mm[2:]
        n = s + DEPTH
        if n < 36: it += LW(n)
        n = s + DEPTH - 1
        if DEPTH <= n < 28: it += LA(n)
        if ODMA:
            if s == 27:
                it += [I('s_lshl_b32 s52, s20, 2'), I('v_add_u32 v6, s52, v4'), I('s_lshl_b32 s52, s20, 14'), I('s_add_u32 s52, s52, %d' % OBUF), I('v_add_u32 v7, s52, v14')]
                it += lds_spin('K2_FW', 16, 6, 5) + stamp()
                for p in range(28, 36):
                    for t in range(2):
                        it.append(DS('ds_read_b128 %s, v7 offset:%d' % (vr(GA + 8 * (p % DEPTH) + 4 * t), (2 * (p - 28) + t) * 1024), 'A%d' % p))
        elif s == FLAGPOS:
            it += [I('K2_FW:'), DS('ds_read_b32 v5, v4', 'FL'), W(ds='ALL'), I('v_readfirstlane_b32 s52, v5'),
                   I('s_cmp_lg_u32 s52, 0'), I('s_cbranch_scc1 K2_FOK'), I('s_sleep 1'), I('s_branch K2_FW'), I('K2_FOK:')]
            it += stamp()
            for p in range(28, min(36, n + 1)): it += LA(p)
        elif s > FLAGPOS and 28 <= n < 36: it += LA(n)
    it += [I('v_and_b32 v5, 31, v0'), I('v_mul_u32_u24 v5, 272, v5'), I('v_lshrrev_b32 v6, 5, v0'), I('v_lshl_add_u32 v5, v6, 4, v5'), I('v_add_u32 v5, s40, v5')]
    for t in range(2):
        for cti in range(2):
            for q in range(4):
                it.append(DS('ds_write_b128 v5, %s offset:%d' % (vr(GACC + 16 * (2 * t + cti) + 4 * q), t * 32 * 272 + cti * 128 + q * 32), 'RW'))
    it.append(W(ds='ALL'))
    it += final_reduce('G')
    R.run(it)

_l = [0]
def lab(p):
    _l[0] += 1
    return 'K2_%s%d' % (p, _l[0])

def attn(a):
    R = Resolver(a)
    a('''
s_setprio APRIO
s_sub_u32 s36, s20, 4
s_lshl_b32 s40, s22, 2
s_add_u32 s40, s40, s36
s_lshl_b32 s41, s21, 1
s_sub_u32 s41, s41, 8
s_lshl_b32 s42, s40, 16
v_and_b32 v1, 15, v0
v_lshrrev_b32 v2, 5, v0
v_lshlrev_b32 v1, 4, v1
v_lshl_add_u32 v1, v2, 8, v1
v_bfe_u32 v3, v0, 4, 1
v_lshl_add_u32 v1, v3, 9, v1
v_and_b32 v3, 31, v0
v_lshlrev_b32 v2, 2, v2
v_sub_u32 v3, v3, v2
v_mov_b32 v4, 0x%08x
'''.replace('APRIO', os.environ.get('APRIO', '3')) % NEG_BIG)
    _st[0] = 0
    it = stamp()
    SC = ' sc1' if K1M.FUSED[0] else ''
    if K1M.FUSED[0]:
        it += [I('v_mov_b32 v7, %d' % FLAG), I('s_cmp_lg_u32 s20, 4'), I('s_cbranch_scc1 K2_AW1'),
               I('s_lshr_b32 s36, s21, 2'), I('s_max_i32 s37, s41, 0'), I('s_lshr_b32 s37, s37, 3'),
               I('v_bfe_u32 v5, v0, 1, 2'), I('v_mov_b32 v6, 0')]
        for sr in (36, 37):
            it += [I('s_and_b32 s38, s%d, 3' % sr), I('s_cmp_ge_u32 s%d, 4' % sr), I('s_mov_b32 s39, 0x00010001'), I('s_cselect_b32 s39, 0x01000100, s39'),
                   I('v_cmp_eq_u32 vcc, s38, v5'), I('v_mov_b32 v8, s39'), I('v_cndmask_b32 v8, 0, v8, vcc'), I('v_or_b32 v6, v6, v8')]
        it += [I('v_lshlrev_b32 v5, 2, v0'),
               I('K2_P1:'), I('s_sleep %d' % P1SLEEP), VM('buffer_load_dword v8, v5, s[32:35], 0 offen sc1', 'PL1'), W(vm='ALL'),
               I('v_lshrrev_b32 v9, 1, v8'), I('v_or_b32 v8, v8, v9'), I('v_and_b32 v8, v8, v6'), I('v_cmp_eq_u32 vcc, v8, v6'),
               I('s_cmp_eq_u64 vcc, -1'), I('s_cbranch_scc1 K2_P1D'), I('s_branch K2_P1'), I('K2_P1D:'),
               I('v_mov_b32 v8, 1'), DS('ds_write_b32 v7, v8 offset:4', 'FW1'), W(ds='ALL')]
        it += lds_spin('K2_AW1', 4, 7, 8)
    it += [I('s_lshl_b32 s37, s21, 11'), I('s_add_u32 s37, s37, s42')]
    it.append(VM('buffer_load_dwordx4 %s, v14, s[16:19], s37 offen%s' % (vr(AQ), SC), 'Q0'))
    def kload(jj):
        return [I('s_add_i32 s36, s41, %d' % jj), I('s_max_i32 s36, s36, 0'), I('s_lshl_b32 s36, s36, 10'), I('s_add_u32 s%d, s36, s42' % (44 + jj)),
                I('s_add_u32 s36, s%d, %d' % (44 + jj, KF)),
                VM('buffer_load_dwordx4 %s, v14, s[16:19], s36 offen%s' % (vr(AK + 4 * jj), SC), 'K%d' % jj)]
    def vload(jj):
        return [I('s_add_u32 s36, s%d, %d' % (44 + jj, VF)), VM('buffer_load_dwordx4 %s, v1, s[16:19], s36 offen%s' % (vr(AV + 8 * jj), SC), 'V%d' % jj)]
    for jj in range(8, -1, -1): it += kload(jj)
    it.append(VM('buffer_load_dwordx4 %s, v14, s[16:19], s37 offen offset:1024%s' % (vr(AQ + 4), SC), 'Q1'))
    it += kload(9)
    if EARLYBAR: it.append(I('s_barrier'))
    for r in range(16):
        it.append(I('v_cmp_ge_i32 s[%d:%d], v3, %d' % (64 + 2 * r, 65 + 2 * r, 8 * (r >> 2) + (r & 3))))
    for jj in range(10):
        for r in range(4): it.append(I('v_mov_b32 v%d, 0x3f803f80' % (AV + 8 * jj + 4 + r)))
    vl = [vload(jj) for jj in list(range(8, -1, -1)) + [9]] + [[VM('buffer_load_dwordx4 %s, v13, s[4:7], s23 offen' % vr(XRES), 'XRES')]]
    def smfma(qi, jp, buf, cmode):
        jj = qi + jp
        out = [W(vm=('Q%d' % qi, 'K%d' % jj))]
        if jp == 8 or jp == 0:
            val = '0' if cmode == 'A' else 'v%d' % CN
            for r in range(16):
                m = 's[%d:%d]' % (64 + 2 * r, 65 + 2 * r)
                if jp == 8: out.append(I('v_cndmask_b32 v%d, v4, %s, %s' % (CT + r, val, m)))
                else: out.append(I('v_cndmask_b32 v%d, %s, v4, %s' % (CT + r, val, m)))
            c = vr(CT, 16)
        else:
            c = '0' if cmode == 'A' else vr(CN, 16)
        out.append(I('v_mfma_f32_32x32x16_bf16 %s, %s, %s, %s' % (vr(buf, 16), vr(AK + 4 * jj), vr(AQ + 4 * qi), c)))
        return out
    def one_pass(qi, cmode, fast, proc):
        bufs = (SA, SB)
        out = smfma(qi, 8, bufs[0], cmode)
        Ld = lab('D')
        for n, jp in enumerate(range(8, -1, -1)):
            if jp > 0:
                Ls = lab('S')
                if not fast: out += [I('s_add_i32 s36, s41, %d' % (qi + jp - 1)), I('s_cmp_lt_i32 s36, 0'), I('s_cbranch_scc1 %s' % Ls)]
                out += smfma(qi, jp - 1, bufs[(n + 1) & 1], cmode)
                if not fast: out += [I(Ls + ':')]
            out += proc(jp, bufs[n & 1])
            if jp > 0 and not fast: out += [I('s_add_i32 s36, s41, %d' % (qi + jp - 1)), I('s_cmp_lt_i32 s36, 0'), I('s_cbranch_scc1 %s' % Ld)]
        if not fast: out += [I(Ld + ':'), I('s_nop 15')]
        return out
    def body(fast):
        it = []
        swapped = set()
        if not fast:
            for g in vl: it += g
            it.append(W(vm='ALL'))
            for jj in range(10):
                for r in range(4): it.append(I('v_permlane16_swap_b32 v%d, v%d' % (AV + 8 * jj + r, AV + 8 * jj + 4 + r)))
                swapped.add(jj)
        for qi in range(2):
            pend = list(vl) if (fast and qi == 0) else []
            def procA(jp, b):
                o = [I('v_max3_f32 v5, v%d, v%d, v5' % (b + 2 * i, b + 2 * i + 1)) for i in range(8)]
                if pend: o += pend.pop(0)
                if pend and jp < 3: o += pend.pop(0)
                return o
            it += (stamp() if fast else []) + [I('v_mov_b32 v5, v4')] + one_pass(qi, 'A', fast, procA)
            for g in pend: it += g
            it += [I('v_mov_b32 v6, v5'), I('v_permlane32_swap_b32 v5, v6'), I('v_max_f32 v5, v5, v6'), I('v_sub_f32 v%d, 0, v5' % CN)]
            for r in range(1, 16): it.append(I('v_mov_b32 v%d, v%d' % (CN + r, CN)))
            def procB(jp, b):
                jj = qi + jp
                o = []
                if jj not in swapped:
                    swapped.add(jj)
                    o.append(W(vm='V%d' % jj))
                    o += [I('v_permlane16_swap_b32 v%d, v%d' % (AV + 8 * jj + r, AV + 8 * jj + 4 + r)) for r in range(4)]
                o += [I('v_exp_f32 v%d, v%d' % (b + r, b + r)) for r in range(16)]
                o += [I('v_cvt_pk_bf16_f32 v%d, v%d, v%d' % (AP + p, b + 2 * p, b + 2 * p + 1)) for p in range(8)]
                for hf in range(2):
                    o.append(I('v_mfma_f32_32x32x16_bf16 %s, %s, %s, %s' % (vr(AO, 16), vr(AV + 8 * jj + 4 * hf), vr(AP + 4 * hf), '0' if (jp == 8 and hf == 0) else vr(AO, 16))))
                return o
            it += (stamp() if fast else []) + one_pass(qi, 'B', fast, procB)
            it.append(I('v_rcp_f32 v6, v%d' % (AO + 8)))
            for r in range(8): it.append(I('v_mul_f32 v%d, v%d, v6' % (AO + r, AO + r)))
            for p in range(4): it.append(I('v_cvt_pk_bf16_f32 v%d, v%d, v%d' % (8 + p, AO + 2 * p, AO + 2 * p + 1)))
            it += [I('s_lshl_b32 s36, s21, 6'), I('s_add_u32 s36, s36, s40'), I('s_lshl_b32 s36, s36, 10'), I('s_add_u32 s36, s36, %d' % (OF + qi * 32768))]
            it.append(VM('buffer_store_dwordx4 v[8:11], v14, s[16:19], s36 offen sc1', 'OST'))
            if qi == 0 and LATEBAR and not K1M.FUSED[0]: it.append(I('s_barrier'))
        return it
    it += [I('s_cmp_ge_u32 s21, 4'), I('s_cbranch_scc1 K2_AFAST')]
    R.run(it)
    R2 = copy.deepcopy(R); R2.a = a
    R2.run(body(False) + [I('s_branch K2_AJOIN'), I('K2_AFAST:')])
    it = body(True) + [I('K2_AJOIN:')]
    it += stamp() + [W(vm='ALL')] + stamp()
    if K1M.FUSED[0]:
        it += [I('v_mov_b32 v5, %d' % FLAG), I('v_mov_b32 v6, 1'), I('s_mov_b64 exec, 1'), DS('ds_add_rtn_u32 v7, v5, v6 offset:8', 'CNT'), W(ds='ALL'), I('s_mov_b64 exec, -1'),
               I('v_readfirstlane_b32 s36, v7'), I('s_cmp_lg_u32 s36, 3'), I('s_cbranch_scc1 K2_NSIG'),
               I('v_mov_b32 v7, 2'), I('v_mov_b32 v8, s2'), I('s_mov_b64 exec, 1'), I('buffer_store_byte v7, v8, s[32:35], 0 offen sc1'), I('s_mov_b64 exec, -1'), I('K2_NSIG:'),
               I('s_cmp_lg_u32 s20, 4'), I('s_cbranch_scc1 K2_AFIN'),
               I('s_and_b32 s36, s21, 3'), I('s_lshr_b32 s37, s21, 4'), I('s_lshr_b32 s38, s21, 2'), I('s_and_b32 s38, s38, 3'), I('s_lshl_b32 s38, s38, 3'), I('s_lshl_b32 s38, 2, s38'),
               I('v_lshrrev_b32 v7, 4, v0'), I('v_cmp_eq_u32 vcc, s36, v7'), I('v_mov_b32 v8, s38'), I('v_cndmask_b32 v8, 0, v8, vcc'),
               I('v_and_b32 v7, 1, v0'), I('v_cmp_eq_u32 vcc, s37, v7'), I('v_cndmask_b32 v8, 0, v8, vcc'), I('v_lshlrev_b32 v9, 2, v0')] + lds_spin('K2_GATE', 12, 5, 7) + [
               I('K2_POLL:'), VM('buffer_load_dword v7, v9, s[32:35], 0 offen sc1', 'PL'), W(vm='ALL'), I('v_and_b32 v7, v7, v8'), I('v_cmp_eq_u32 vcc, v7, v8'),
               I('s_cmp_eq_u64 vcc, -1'), I('s_cbranch_scc1 K2_PDONE'), I('s_sleep 8'), I('s_branch K2_POLL'), I('K2_PDONE:'),
               DS('ds_write_b32 v5, v6', 'FW'), W(ds='ALL'), I('K2_AFIN:')]
    else:
        it += [I('s_lshl_b32 s37, s21, 7'), I('s_add_u32 s37, s37, %d' % FLG), I('s_lshl_b32 s36, s40, 2'), I('s_and_b32 s36, s36, 127'), I('v_mov_b32 v5, s36'), I('v_mov_b32 v6, 1'),
               I('s_mov_b64 exec, 1'), VM('buffer_store_dword v6, v5, s[16:19], s37 offen sc1', 'AT'), I('s_mov_b64 exec, -1'),
               I('s_cmp_lg_u32 s20, 4'), I('s_cbranch_scc1 K2_AFIN'),
               I('v_mov_b32 v8, %d' % FLAG)] + (lds_spin('K2_GATE', 12, 8, 9) if GATE >= 0 else []) + [I('v_and_b32 v5, 31, v0'), I('v_lshlrev_b32 v5, 2, v5'),
               I('s_mov_b32 s53, 0'),
               I('K2_POLL:'), VM('buffer_load_dword v7, v5, s[16:19], s37 offen sc1', 'PL'), W(vm='ALL'), I('v_cmp_ne_u32 vcc, 0, v7'),
               I('s_cmp_eq_u64 vcc, -1'), I('s_cbranch_scc1 K2_PDONE'), I('s_add_u32 s53, s53, 1'), I('s_cmp_gt_u32 s53, 0x100000'), I('s_cbranch_scc1 K2_PDONE'),
               I('s_sleep %d' % PSLEEP), I('s_branch K2_POLL'), I('K2_PDONE:'),
               I('v_mov_b32 v5, %d' % FLAG), DS('ds_write_b32 v5, v6', 'FW'), W(ds='ALL'), I('K2_AFIN:')]
    if ODMA:
        it += [I('v_mov_b32 v8, %d' % FLAG)] + lds_spin('K2_OG', 0, 8, 9)
        it += [I('s_sub_u32 s36, s20, 4'), I('s_lshl_b32 s37, s21, 6'), I('s_lshl_b32 s38, s36, 3'), I('s_add_u32 s37, s37, s38'), I('s_lshl_b32 s37, s37, 10'), I('s_add_u32 s37, s37, %d' % OF),
               I('s_lshl_b32 s38, s36, 14'), I('s_add_u32 s38, s38, %d' % OBUF)]
        for p in range(8):
            for t in range(2):
                it += [I('s_add_u32 s39, s37, %d' % (p * 1024 + t * 32768)), I('s_add_u32 m0, s38, %d' % ((2 * p + t) * 1024)),
                       VM('buffer_load_dwordx4 v14, s[16:19], s39 offen sc1 lds', 'OD')]
        it += [W(vm='ALL'), I('s_lshl_b32 s36, s36, 2'), I('v_add_u32 v8, s36, v8'), I('v_mov_b32 v9, 1'), DS('ds_write_b32 v8, v9 offset:16', 'ORD'), W(ds='ALL')]
    it += final_reduce('A')
    R.run(it)

def build_k2(a=None):
    if a is None: a = Asm()
    prologue(a)
    a('s_cmp_ge_u32 s20, 4\ns_cbranch_scc1 K2_ATT')
    gemm(a)
    a('K2_ATT:')
    attn(a)
    a('K2_END:\nK1_END:\ns_endpgm' if K1M.FUSED[0] else 'K2_END:\ns_endpgm')
    return a.finalize()

if __name__ == '__main__':
    print(len(build_k2().splitlines()))
```
